```python
import torch

def _softmax(x, axis=-1):
    return torch.softmax(x, dim=axis)
def _gelu(x):
    return torch.nn.functional.gelu(x, approximate="tanh")
def _silu(x):
    return torch.nn.functional.silu(x)
def _sigmoid(x):
    return torch.sigmoid(x)
def _layernorm(x, axis=-1, eps=1e-5):
    m = x.mean(dim=axis, keepdim=True)
    v = x.var(dim=axis, keepdim=True, unbiased=False)
    return (x - m) / torch.sqrt(v + eps)
def _scatter_add(tgt, idx, src, axis=0):
    return tgt.clone().index_add_(axis, idx, src)
def _segment_sum(src, seg, n):
    out = torch.zeros((n,) + src.shape[1:], dtype=src.dtype)
    return out.index_add_(0, seg, src)
def _pad(x, pw):
    flat = tuple(v for pair in reversed(pw) for v in pair)
    return torch.nn.functional.pad(x, flat)

kernel_name = 'interleave_layers__linear_kernel_hedgehog__grouped_kv_mqa__prompt'

def setup_inputs():

    _w = (lambda a: (lambda t: t.to(torch.bfloat16) if t.is_floating_point() else t)(torch.as_tensor(a)))
    def _A_setup():
        B, S, D, H = 1, 2048, 1024, 32
        Dh = D // H
        return {
            "x": _w((lambda *s: torch.randn(*s, dtype=torch.bfloat16) * 0.05)(B, S, D)),
            "wqkv": _w((lambda *s: torch.randn(*s, dtype=torch.bfloat16) * 0.2)(D, 3 * D)),
            "w_phi": _w((lambda *s: torch.randn(*s, dtype=torch.bfloat16) * 0.2)(H, Dh, Dh) * (Dh ** -0.5)),
            "wo": _w((lambda *s: torch.randn(*s, dtype=torch.bfloat16) * 0.05)(D, D)),
        }
    _A_in = _A_setup()

    def _B_setup():
        B, S, D, H = 1, 2048, 1024, 32
        Dh = D // H
        return {
            "x": _w((lambda *s: torch.randn(*s, dtype=torch.bfloat16) * 0.05)(B, S, D)),
            "wq": _w((lambda *s: torch.randn(*s, dtype=torch.bfloat16) * 0.1)(D, H * Dh)),
            "wk": _w((lambda *s: torch.randn(*s, dtype=torch.bfloat16) * 0.1)(D, Dh)),
            "wv": _w((lambda *s: torch.randn(*s, dtype=torch.bfloat16) * 0.05)(D, Dh)),
            "wo": _w((lambda *s: torch.randn(*s, dtype=torch.bfloat16) * 0.05)(H * Dh, D)),
        }
    _B_in = _B_setup()

    return {
        "A_x": _A_in["x"],
        "A_wqkv": _A_in["wqkv"],
        "A_w_phi": _A_in["w_phi"],
        "A_wo": _A_in["wo"],
        "B_x": _B_in["x"],
        "B_wq": _B_in["wq"],
        "B_wk": _B_in["wk"],
        "B_wv": _B_in["wv"],
        "B_wo": _B_in["wo"],
    }

def reference(A_x, A_wqkv, A_w_phi, A_wo, B_x, B_wq, B_wk, B_wv, B_wo):
    def _A_ref(x, wqkv, w_phi, wo):
        B, S, D = x.shape
        H = 32; Dh = D // H
        qkv = (lambda x, *d: x.permute(*d))((x @ wqkv).reshape(B, S, 3, H, Dh), 2, 0, 3, 1, 4)
        q, k, v = qkv[0], qkv[1], qkv[2]
        pq = torch.einsum("bhsd,hdf->bhsf", q, w_phi)
        pk = torch.einsum("bhsd,hdf->bhsf", k, w_phi)
        phi_q = torch.concatenate([_softmax(pq, axis=-1), _softmax(-pq, axis=-1)], axis=-1)
        phi_k = torch.concatenate([_softmax(pk, axis=-1), _softmax(-pk, axis=-1)], axis=-1)
        kv = torch.einsum("bhsf,bhsd->bhfd", phi_k, v)
        z  = torch.einsum("bhsf->bhf", phi_k)
        num = torch.einsum("bhqf,bhfd->bhqd", phi_q, kv)
        den = torch.einsum("bhqf,bhf->bhq", phi_q, z)[..., None] + 1e-6
        o = num / den
        return (lambda x, *d: x.permute(*d))(o, 0, 2, 1, 3).reshape(B, S, D) @ wo

    def _B_ref(x, wq, wk, wv, wo):
        B, S, D = x.shape
        H = 32
        Dh = D // H
        q = (lambda x, *d: x.permute(*d))((x @ wq).reshape(B, S, H, Dh), 0, 2, 1, 3)
        k = x @ wk
        v = x @ wv
        scores = torch.einsum("bhqd,bkd->bhqk", q, k) * (Dh ** -0.5)
        p = _softmax(scores, axis=-1)
        o = torch.einsum("bhqk,bkd->bhqd", p, v)
        return (lambda x, *d: x.permute(*d))(o, 0, 2, 1, 3).reshape(B, S, H * Dh) @ wo

    x = A_x
    x = x + _A_ref(_layernorm(x, axis=-1), A_wqkv, A_w_phi, A_wo)
    x = x + _B_ref(_layernorm(x, axis=-1), B_wq, B_wk, B_wv, B_wo)
    x = x + _A_ref(_layernorm(x, axis=-1), A_wqkv, A_w_phi, A_wo)
    x = x + _B_ref(_layernorm(x, axis=-1), B_wq, B_wk, B_wv, B_wo)
    return x
```

```python
import re

TRANS = ("v_exp_f32", "v_log_f32", "v_rcp_f32", "v_rsq_f32", "v_sqrt_f32", "v_sin_f32", "v_cos_f32",
         "v_rcp_iflag_f32", "v_exp_f16", "v_log_f16", "v_rcp_f16", "v_rsq_f16", "v_sqrt_f16")

_reg_re = re.compile(r"^(-|\|)?(abs\()?([vsa])(\d+)\)?\|?$")
_rng_re = re.compile(r"^(-)?([vsa])\[(\d+):(\d+)\]$")


def parse_regs(op):
    op = op.strip()
    if op in ("vcc",):
        return {("s", 106), ("s", 107)}
    if op == "vcc_lo":
        return {("s", 106)}
    if op == "vcc_hi":
        return {("s", 107)}
    if op == "exec":
        return {("x", 0), ("x", 1)}
    if op == "m0":
        return {("m", 0)}
    m = _rng_re.match(op)
    if m:
        k = m.group(2)
        return {(k, i) for i in range(int(m.group(3)), int(m.group(4)) + 1)}
    m = _reg_re.match(op)
    if m:
        return {(m.group(3), int(m.group(4)))}
    return set()


def split_ops(s):
    out, depth, cur = [], 0, ""
    for ch in s:
        if ch in "[(":
            depth += 1
        if ch in "])":
            depth -= 1
        if ch == "," and depth == 0:
            out.append(cur.strip())
            cur = ""
        else:
            cur += ch
    if cur.strip():
        out.append(cur.strip())
    return out


class Ins:
    __slots__ = ("text", "mn", "cls", "dst", "src", "srcC", "srcAB", "passes", "ws", "dpp", "storedata", "lds_dma")

    def __init__(self, text):
        self.text = text
        t = text.split(";")[0].strip()
        parts = t.split(None, 1)
        mn = parts[0]
        self.mn = mn
        rest = parts[1] if len(parts) > 1 else ""
        ops = split_ops(rest)
        mods = ""
        if ops:
            l = ops[-1].split(None, 1)
            if len(l) > 1 and not ops[-1].startswith("hwreg"):
                ops[-1] = l[0]
                mods = l[1]
        self.dst, self.src, self.srcC, self.srcAB = set(), set(), set(), set()
        self.passes = 0
        self.ws = 1
        self.dpp = ("dpp" in mn) or ("quad_perm" in mods) or ("row_" in mods)
        self.storedata = set()
        self.lds_dma = False
        R = [parse_regs(o) for o in ops]
        if mn == "s_nop":
            self.cls = "nop"
            self.ws = int(ops[0], 0) + 1
        elif mn.startswith("v_mfma"):
            self.cls = "mfma"
            self.dst = R[0]
            self.srcAB = R[1] | R[2]
            self.srcC = R[3]
            self.src = self.srcAB | self.srcC
            self.passes = 8 if "32x32" in mn else 4
        elif mn.startswith("v_"):
            self.cls = "valu"
            if mn.startswith("v_cmp"):
                self.dst = R[0]
                for r in R[1:]:
                    self.src |= r
            elif mn.startswith("v_permlane") and "swap" in mn:
                self.dst = R[0] | R[1]
                self.src = R[0] | R[1]
            elif mn.startswith(("v_add_co", "v_sub_co", "v_addc_co", "v_subb_co")):
                self.dst = R[0] | R[1]
                for r in R[2:]:
                    self.src |= r
            else:
                self.dst = R[0]
                for r in R[1:]:
                    self.src |= r
                if mn.startswith(("v_fmac", "v_dot2c", "v_pk_fmac")) or self.dpp:
                    self.src |= R[0]
                if mn.startswith("v_cndmask") and len(ops) == 3:
                    self.src |= parse_regs("vcc")
        elif mn.startswith("ds_"):
            self.cls = "ds"
            if mn.startswith(("ds_read", "ds_bpermute", "ds_permute", "ds_swizzle")):
                self.dst = R[0]
                for r in R[1:]:
                    self.src |= r
            else:
                for r in R:
                    self.src |= r
        elif mn.startswith(("buffer_", "global_")):
            self.cls = "vmem"
            islds = bool(re.search(r"\blds\b", mods)) or "load_lds" in mn
            if "load" in mn and not islds:
                self.dst = R[0]
                for r in R[1:]:
                    self.src |= r
            else:
                for r in R:
                    self.src |= r
                if islds:
                    self.lds_dma = True
                    self.src |= {("m", 0)}
                if "store" in mn and ("x4" in mn or "x3" in mn):
                    self.storedata = R[0] if mn.startswith("buffer_") else R[1]
                if "atomic" in mn and "sc0" in mods:
                    self.dst = R[0]
        elif mn.startswith("s_"):
            self.cls = "salu"
            if mn.startswith(("s_cmp", "s_cbranch", "s_branch", "s_waitcnt", "s_barrier", "s_endpgm", "s_setprio",
                              "s_sleep", "s_bitcmp")):
                for r in R:
                    self.src |= r
            else:
                if R:
                    self.dst = R[0]
                for r in R[1:]:
                    self.src |= r
                if "saveexec" in mn:
                    self.dst |= {("x", 0), ("x", 1)}
        else:
            raise ValueError("unknown instruction: " + text)


def vonly(s):
    return {r for r in s if r[0] in ("v", "a")}


def sonly(s):
    return {r for r in s if r[0] == "s"}


def need(prev, cur):
    n = 0
    if prev.cls == "valu":
        vd = vonly(prev.dst)
        sd = sonly(prev.dst)
        if cur.cls == "mfma" and vd & cur.src:
            n = max(n, 2)
        if cur.cls == "valu":
            if vd & cur.src:
                if cur.mn.startswith("v_permlane") or cur.dpp:
                    n = max(n, 2)
                if cur.mn.startswith(("v_readlane", "v_readfirstlane")):
                    n = max(n, 1)
                if prev.mn.startswith(TRANS) and not cur.mn.startswith(TRANS):
                    n = max(n, 1)
                if prev.mn.startswith("v_dot") and prev.mn != cur.mn:
                    n = max(n, 3)
                if prev.mn.startswith("v_dot") and prev.mn == cur.mn:
                    n = max(n, 0)
            if prev.mn.startswith("v_dot") and (vd & cur.dst) and prev.mn != cur.mn:
                n = max(n, 3)
            if sd & cur.src:
                n = max(n, 2)
                if cur.mn.startswith(("v_readlane", "v_writelane")):
                    n = max(n, 4)
        if cur.cls in ("vmem",) and sd & cur.src:
            n = max(n, 5)
        if cur.cls in ("vmem", "ds") and prev.mn.startswith("v_dot") and vd & cur.src:
            n = max(n, 3)
        if cur.cls in ("vmem", "ds") and prev.mn.startswith(TRANS) and vd & cur.src:
            n = max(n, 1)
        if cur.cls == "salu" and sd & cur.src:
            n = max(n, 1)
    elif prev.cls == "mfma":
        p = prev.passes
        big = 12 if p == 8 else 8
        if cur.cls == "mfma":
            if prev.dst & cur.srcAB:
                n = max(n, big)
            if prev.dst & cur.srcC:
                if not (prev.dst == cur.srcC and prev.passes == cur.passes):
                    n = max(n, p + 2)
            elif prev.dst & cur.dst:
                n = max(n, p + 2)
        elif cur.cls in ("valu", "vmem", "ds"):
            if prev.dst & (cur.src | cur.dst):
                n = max(n, big)
            if cur.cls == "valu" and prev.srcC & cur.dst:
                n = max(n, p - 1)
            if cur.cls in ("ds", "vmem") and prev.srcC & cur.dst:
                n = max(n, p - 1)
    elif prev.cls == "salu":
        if ("m", 0) in prev.dst and (cur.lds_dma or "addtid" in cur.mn):
            n = max(n, 1)
    elif prev.cls == "vmem":
        if prev.storedata and prev.storedata & cur.dst:
            n = max(n, 2 if cur.cls in ("valu", "mfma") else 1)
    return n


MAXD = 20


class Kern:
    def __init__(self, name):
        self.name = name
        self.items = []
        self.maxv = 0
        self.maxs = 0
        self._n = 0

    def __call__(self, text):
        for line in text.split("\n"):
            line = line.strip()
            if not line:
                continue
            if line.startswith(";"):
                self.items.append(("c", line))
            elif line.endswith(":"):
                self.items.append(("l", line[:-1]))
            else:
                ins = Ins(line)
                for k, i in ins.dst | ins.src:
                    if k == "v":
                        self.maxv = max(self.maxv, i)
                    if k == "s" and i < 106:
                        self.maxs = max(self.maxs, i)
                self.items.append(("i", ins))

    def label(self, base):
        self._n += 1
        return f"L_{base}_{self._n}"

    def _fix_linear(self):
        out = []
        hist = []
        for kind, it in self.items:
            if kind != "i":
                out.append((kind, it))
                continue
            req = 0
            d = 0
            for p in reversed(hist):
                r = need(p, it) - d
                if r > req:
                    req = r
                d += p.ws
                if d >= MAXD:
                    break
            while req > 0:
                k = min(req, 16)
                nop = Ins(f"s_nop {k-1}")
                out.append(("i", nop))
                hist.append(nop)
                req -= k
            out.append(("i", it))
            hist.append(it)
            if it.mn in ("s_branch", "s_endpgm"):
                hist = []
        self.items = out

    def _fix_branches(self):
        changed = True
        while changed:
            changed = False
            pos = {it: i for i, (k, it) in enumerate(self.items) if k == "l"}
            for bi, (kind, it) in enumerate(self.items):
                if kind != "i" or not it.mn.startswith(("s_cbranch", "s_branch")):
                    continue
                tgt = it.text.split(None, 1)[1].split(";")[0].strip()
                if tgt not in pos:
                    continue
                hist = []
                j = bi
                d = 0
                while j >= 0 and d < MAXD:
                    k2, i2 = self.items[j]
                    if k2 == "i":
                        if j != bi and i2.mn in ("s_branch", "s_endpgm"):
                            break
                        hist.append(i2)
                        d += i2.ws
                    j -= 1
                j = pos[tgt]
                fw = 0
                req = 0
                while j < len(self.items) and fw < MAXD:
                    k2, i2 = self.items[j]
                    if k2 == "i":
                        d = fw
                        for p in hist:
                            r = need(p, i2) - d
                            req = max(req, r)
                            d += p.ws
                        fw += i2.ws
                        if i2.mn in ("s_branch", "s_endpgm"):
                            break
                    j += 1
                if req > 0:
                    self.items.insert(bi, ("i", Ins(f"s_nop {req-1}")))
                    changed = True
                    break

    def text(self):
        self._fix_linear()
        self._fix_branches()
        s = f".p2align 8\n.globl {self.name}\n.type {self.name},@function\n{self.name}:\n"
        for kind, it in self.items:
            if kind == "i":
                s += "    " + it.text + "\n"
            elif kind == "l":
                s += it + ":\n"
            else:
                s += "    " + it + "\n"
        return s

    def desc(self, nv=None, ns=None):
        nv = nv or (self.maxv + 1)
        nv = (nv + 7) // 8 * 8
        ns = ns or max(self.maxs + 1, 16)
        return f""".p2align 6
.amdhsa_kernel {self.name}
  .amdhsa_next_free_vgpr {nv}
  .amdhsa_next_free_sgpr {ns}
  .amdhsa_accum_offset {nv}
  .amdhsa_group_segment_fixed_size 0
  .amdhsa_kernarg_size 96
  .amdhsa_user_sgpr_count 2
  .amdhsa_user_sgpr_kernarg_segment_ptr 1
  .amdhsa_system_sgpr_workgroup_id_x 1
.end_amdhsa_kernel
"""


def vr(a, n=1):
    return f"v{a}" if n == 1 else f"v[{a}:{a+n-1}]"


def sr(a, n=1):
    return f"s{a}" if n == 1 else f"s[{a}:{a+n-1}]"
```

```python
import sys, struct, math
from asmlib import Kern, vr, sr

S, D, H, DH = 2048, 1024, 32, 32
KA_X, KA_WQKV, KA_WPHI, KA_WOA, KA_BX, KA_WQ, KA_WK, KA_WV, KA_WOB, KA_OUT, KA_DBG, KA_WS = [8 * i for i in range(12)]
MB = 1 << 20
WS_X = [None, 0 * MB, 4 * MB, 8 * MB]
WS_O = 12 * MB
WS_PQ = 16 * MB
WS_QB = 20 * MB
WS_KVP = 24 * MB
WS_KV = 28 * MB
WS_ZP = 28 * MB + 0x40000
WS_ST = [28 * MB + 0x80000 + i * 0x40000 for i in range(4)]
WS_CSA = 29 * MB + 0x80000
WS_CSB = 29 * MB + 0x90000
WS_END = 30 * MB
LOG2E = 1.4426950408889634


def f32(x):
    return "0x%08x" % struct.unpack("<I", struct.pack("<f", x))[0]


def srd(k, d, ptr, nbytes):
    k(f"""s_mov_b32 s{d}, s{ptr}
    s_and_b32 s{d+1}, s{ptr+1}, 0xffff
    s_mov_b32 s{d+2}, {hex(nbytes)}
    s_mov_b32 s{d+3}, 0x20000""")


def srd_off(k, d, ptr, off, nbytes):
    k(f"""s_add_u32 s{d}, s{ptr}, {hex(off)}
    s_addc_u32 s{d+1}, s{ptr+1}, 0
    s_and_b32 s{d+1}, s{d+1}, 0xffff
    s_mov_b32 s{d+2}, {hex(nbytes)}
    s_mov_b32 s{d+3}, 0x20000""")


ONES2 = "0x3f803f80"


def gen_prep():
    k = Kern("prep_kernel")
    k(f"""
    s_cmp_ge_u32 s2, 258
    s_cbranch_scc1 prep_end
    s_load_dwordx4 s[4:7], s[0:1], {KA_X}
    s_load_dwordx4 s[8:11], s[0:1], {KA_WQ}
    s_load_dwordx2 s[12:13], s[0:1], {KA_WV}
    s_load_dwordx2 s[14:15], s[0:1], {KA_WS}
    v_lshrrev_b32 v1, 6, v0
    v_and_b32 v2, 63, v0
    v_readfirstlane_b32 s3, v1
    s_waitcnt lgkmcnt(0)
    """)
    srd(k, 16, 14, WS_END)
    k("""s_cmp_ge_u32 s2, 128
    s_cbranch_scc1 prep_cols""")
    srd(k, 20, 4, S * D * 2)
    k(f"""
    s_lshl_b32 s24, s2, 4
    s_lshl_b32 s25, s3, 2
    s_add_u32 s24, s24, s25
    s_lshl_b32 s25, s24, 11
    v_lshlrev_b32 v3, 4, v2
    s_mov_b32 s26, {ONES2}
    """)
    for i in range(4):
        k(f"buffer_load_dwordx4 {vr(8+8*i,4)}, v3, s[20:23], s25 offen offset:0")
        k(f"buffer_load_dwordx4 {vr(12+8*i,4)}, v3, s[20:23], s25 offen offset:1024")
        k(f"s_add_u32 s25, s25, 2048")
    k(f"""
    v_and_b32 v4, 1, v2
    v_lshlrev_b32 v4, 17, v4
    v_and_b32 v5, 0x3c, v2
    v_add_u32 v4, v4, v5
    s_lshl_b32 s25, s24, 6
    s_add_u32 s25, s25, {hex(WS_ST[0])}
    v_and_b32 v5, 1, v2
    v_cmp_eq_u32 vcc, 1, v5
    """)
    for i in range(4):
        k(f"s_waitcnt vmcnt({6-2*i})" if i < 3 else "s_waitcnt vmcnt(3)")
        k("v_mov_b32 v40, 0\nv_mov_b32 v41, 0")
        for j in range(8):
            k(f"v_dot2_f32_bf16 v40, v{8+8*i+j}, s26, v40")
            k(f"v_dot2_f32_bf16 v41, v{8+8*i+j}, v{8+8*i+j}, v41")
        k("""v_cndmask_b32 v42, v40, v41, vcc
        v_cndmask_b32 v43, v41, v40, vcc
        v_add_f32_dpp v42, v43, v42 quad_perm:[1,0,3,2] row_mask:0xf bank_mask:0xf
        v_add_f32_dpp v44, v42, v42 quad_perm:[2,3,0,1] row_mask:0xf bank_mask:0xf
        """)
        k(f"buffer_store_dword v44, v4, s[16:19], s25 offen offset:{64*i}")
    k("s_endpgm")
    k("prep_cols:")
    k(f"""
    s_sub_u32 s24, s2, 128
    s_and_b32 s25, s24, 3
    s_lshr_b32 s26, s24, 2
    s_cmp_ge_u32 s2, 256
    s_cbranch_scc1 prep_small
    s_cmp_ge_u32 s2, 224
    s_cbranch_scc1 prep_wq
    """)
    srd(k, 20, 6, D * 3 * D * 2)
    k(f"""s_mov_b32 s27, 6144
    s_lshl_b32 s28, s26, 11
    s_add_u32 s28, s28, {hex(WS_CSA)}
    s_branch prep_big
    prep_wq:""")
    srd(k, 20, 8, D * D * 2)
    k(f"""s_mov_b32 s27, 2048
    s_sub_u32 s26, s26, 24
    s_lshl_b32 s28, s26, 11
    s_add_u32 s28, s28, {hex(WS_CSB)}
    prep_big:
    s_lshl_b32 s29, s25, 8
    s_lshl_b32 s30, s3, 6
    s_add_u32 s29, s29, s30
    s_mul_i32 s29, s29, s27
    s_lshl_b32 s30, s26, 8
    s_add_u32 s29, s29, s30
    s_lshl_b32 s30, s25, 2
    s_add_u32 s28, s28, s30
    v_lshlrev_b32 v6, 4, v0
    s_mov_b32 s31, 0
    s_branch prep_sum
    prep_small:
    s_cmp_eq_u32 s2, 257
    s_cselect_b32 s32, s12, s10
    s_cselect_b32 s33, s13, s11
    s_cselect_b32 s28, 512, 0
    s_add_u32 s28, s28, {hex(WS_CSB + 1024*16)}
    """)
    srd(k, 20, 32, D * 32 * 2)
    k(f"""s_mov_b32 s27, 256
    s_lshl_b32 s29, s3, 14
    v_and_b32 v6, 31, v0
    v_lshlrev_b32 v6, 4, v6
    v_lshrrev_b32 v7, 5, v0
    v_lshl_add_u32 v6, v7, 2, v6
    s_mov_b32 s31, 1
    prep_sum:
    v_lshrrev_b32 v3, 4, v2
    v_mul_lo_u32 v3, v3, s27
    v_and_b32 v4, 15, v2
    v_lshl_add_u32 v3, v4, 4, v3
    s_lshl_b32 s30, s27, 2
    """)
    for i in range(16):
        k(f"buffer_load_dwordx4 {vr(16+4*i,4)}, v3, s[20:23], s29 offen")
        k("s_add_u32 s29, s29, s30")
    k("s_mov_b32 s34, 0x3f80\ns_mov_b32 s35, 0x3f800000")
    for j in range(8):
        k(f"v_mov_b32 v{8+j}, 0")
    for i in range(16):
        k(f"s_waitcnt vmcnt({15-i})")
        for j in range(4):
            k(f"v_dot2_f32_bf16 v{8+2*j}, v{16+4*i+j}, s34, v{8+2*j}")
            k(f"v_dot2_f32_bf16 v{9+2*j}, v{16+4*i+j}, s35, v{9+2*j}")
    k(f"""
    v_lshlrev_b32 v3, 5, v0
    ds_write_b128 v3, v[8:11]
    ds_write_b128 v3, v[12:15] offset:16
    s_waitcnt lgkmcnt(0)
    s_barrier
    s_cmp_ge_u32 s3, 2
    s_cbranch_scc1 prep_end
    s_cmp_eq_u32 s31, 1
    s_cbranch_scc1 prep_red_small
    v_lshlrev_b32 v3, 2, v0
    """)
    for g in range(16):
        k(f"ds_read_b32 v{16+g}, v3 offset:{g*512}")
    k(f"""s_branch prep_red
    prep_red_small:
    v_and_b32 v3, 31, v0
    v_lshlrev_b32 v3, 2, v3
    v_lshrrev_b32 v4, 5, v0
    v_lshl_add_u32 v3, v4, 11, v3
    """)
    for g in range(16):
        k(f"ds_read_b32 v{16+g}, v3 offset:{(g>>2)*512 + (g&3)*128}")
    k("prep_red:\ns_waitcnt lgkmcnt(0)")
    for st in (8, 4, 2, 1):
        for g in range(st):
            k(f"v_add_f32 v{16+g}, v{16+g}, v{16+g+st}")
    k("""
    v_cvt_pk_bf16_f32 v17, v16, v16
    v_lshlrev_b32 v18, 16, v17
    v_sub_f32 v18, v16, v18
    v_cvt_pk_bf16_f32 v17, v16, v18
    buffer_store_dword v17, v6, s[16:19], s28 offen
    prep_end:
    s_endpgm
    """)
    return k, (258, 256, 8192)


NST = 16


def tile_map(k, mode):
    if mode == "4x8":
        k("""s_and_b32 s6, s2, 7
        s_lshr_b32 s7, s2, 3
        s_lshr_b32 s4, s6, 1
        s_lshl_b32 s4, s4, 2
        s_lshr_b32 s5, s7, 3
        s_add_u32 s4, s4, s5
        s_and_b32 s5, s6, 1
        s_lshl_b32 s5, s5, 3
        s_and_b32 s7, s7, 7
        s_add_u32 s5, s5, s7""")
    elif mode == "8x4":
        k("""s_and_b32 s6, s2, 7
        s_lshr_b32 s7, s2, 3
        s_lshr_b32 s4, s6, 2
        s_lshl_b32 s4, s4, 3
        s_lshr_b32 s5, s7, 2
        s_add_u32 s4, s4, s5
        s_and_b32 s5, s6, 3
        s_lshl_b32 s5, s5, 2
        s_and_b32 s7, s7, 3
        s_add_u32 s5, s5, s7""")
    elif mode == "2x16":
        k("""s_and_b32 s6, s2, 7
        s_lshr_b32 s7, s2, 3
        s_lshl_b32 s4, s6, 1
        s_lshr_b32 s5, s7, 4
        s_add_u32 s4, s4, s5
        s_and_b32 s5, s7, 15""")


def gemm_loader(k, nseg, wstride, R, stage_bytes, extra):
    k(f"""
    s_sub_u32 s30, s3, 4
    v_lshrrev_b32 v2, 3, v1
    v_and_b32 v3, 7, v1
    s_lshl_b32 s31, s4, 7
    s_lshl_b32 s32, s30, 5
    s_add_u32 s31, s31, s32
    """)
    for jj in range(4):
        k(f"""
        v_add_u32 v4, {8*jj}, v2
        v_lshrrev_b32 v5, 1, v4
        v_and_b32 v5, 7, v5
        v_xor_b32 v5, v5, v3
        v_add_u32 v4, s31, v4
        v_lshlrev_b32 v4, 11, v4
        v_lshl_add_u32 v{8+jj}, v5, 4, v4
        """)
        if jj:
            k(f"v_subrev_u32 v{8+jj}, {1024*jj}, v{8+jj}")
    k(f"""
    s_lshl_b32 s31, s30, 4
    s_mov_b32 s33, {wstride}
    v_lshrrev_b32 v5, 1, v2
    v_and_b32 v5, 1, v5
    v_lshlrev_b32 v5, 2, v5
    v_xor_b32 v5, v5, v3
    v_lshlrev_b32 v5, 4, v5
    s_lshl_b32 s32, s5, 7
    v_add_u32 v5, s32, v5
    """)
    for jj in range(2):
        k(f"""
        v_add_u32 v4, {8*jj}, v2
        v_add_u32 v4, s31, v4
        v_mul_lo_u32 v4, v4, s33
        v_add_u32 v{12+jj}, v4, v5
        """)
        if jj:
            k(f"v_subrev_u32 v{12+jj}, {1024*jj}, v{12+jj}")
    for p in range(1, nseg):
        for jj in range(2):
            k(f"v_add_u32 v{12+2*p+jj}, {2048*p}, v{12+jj}")
    if extra:
        k(f"""v_lshlrev_b32 v20, 4, v1
        s_lshl_b32 s31, s30, 10
        v_add_u32 v20, s31, v20""")
    k(f"""
    s_lshl_b32 s34, s30, 12
    s_lshl_b32 s35, s30, 11
    s_add_u32 s35, s35, 16384
    s_lshl_b32 s36, s30, 10
    s_add_u32 s36, s36, {16384 + nseg*8192}
    s_mov_b32 s37, 0
    s_mov_b32 s38, 0
    s_mov_b32 s39, 0
    """)
    n = 4 + 2 * nseg + (1 if extra else 0)

    def issue(st):
        slot = (st % R) * stage_bytes
        k(f"s_add_u32 m0, s34, {slot}")
        for jj in range(4):
            k(f"buffer_load_dwordx4 v{8+jj}, s[8:11], s37 offen offset:{1024*jj} lds")
        for p in range(nseg):
            k(f"s_add_u32 m0, s35, {slot + p*8192}")
            for jj in range(2):
                k(f"buffer_load_dwordx4 v{12+2*p+jj}, s[12:15], s38 offen offset:{1024*jj} lds")
        if extra:
            k(f"s_add_u32 m0, s36, {slot}")
            k(f"buffer_load_dwordx4 v20, s[20:23], s39 offen lds")
            k("s_add_u32 s39, s39, 4096")
        k(f"s_add_u32 s37, s37, 128\ns_add_u32 s38, s38, {64*wstride}")

    for st in range(R - 1):
        issue(st)
    for i in range(NST):
        outstanding_after = min(NST - 1, i + R - 2) - i
        k(f"s_waitcnt vmcnt({outstanding_after*n})")
        k("s_barrier")
        if i + R - 1 < NST:
            issue(i + R - 1)
    k("s_endpgm")


def gemm_compute(k, R, stage_bytes, G, xaddr, xoffs, waddr_list, frag_base, mfmas, nfragregs, ab, loopname):
    nb = len(xaddr)
    ngroups = 4 // G

    def upd():
        for i, b in enumerate(xaddr):
            k(f"v_add_u32 v{ab+i}, s32, v{b}")

    def reads(g, st):
        cnt = 0
        for tt in range(G):
            t = g * G + tt
            fr = frag_base + st * G * nfragregs + tt * nfragregs
            for i, xo in enumerate(xoffs):
                k(f"ds_read_b128 {vr(fr+4*i,4)}, v{ab+t} offset:{xo}")
                cnt += 1
            fr += 4 * len(xoffs)
            for i, (wi, wo, rb) in enumerate(waddr_list):
                for rd in range(2):
                    k(f"ds_read_b64_tr_b16 {vr(fr+4*i+2*rd,2)}, v{ab+wi} offset:{wo + (16*t+4*rd)*rb}")
                    cnt += 1
        return cnt

    def mm(st):
        for tt in range(G):
            mfmas(frag_base + st * G * nfragregs + tt * nfragregs)

    k(f"s_mov_b32 s32, 0\ns_mov_b32 s33, 0\ns_barrier")
    upd()
    nrd = reads(0, 0)
    k(f"{loopname}:")
    cur = 0
    for g in range(ngroups - 1):
        reads(g + 1, cur ^ 1)
        k(f"s_waitcnt lgkmcnt({min(nrd,15)})")
        mm(cur)
        cur ^= 1
    assert cur == 1 or ngroups == 1
    k(f"""s_waitcnt lgkmcnt(0)
    s_add_u32 s33, s33, 1
    s_cmp_eq_u32 s33, {NST}
    s_cbranch_scc1 {loopname}_done
    s_add_u32 s32, s32, {stage_bytes}
    s_cmp_eq_u32 s32, {R*stage_bytes}
    s_cselect_b32 s32, 0, s32
    s_barrier""")
    upd()
    reads(0, cur ^ 1)
    mm(cur)
    k(f"s_branch {loopname}\n{loopname}_done:")
    mm(cur)


def ln_stats(k, st_off, tokv, tmp, out_rstd, out_bop, nload_wait):
    t = tmp
    for s_ in (8, 4, 2, 1):
        for g in range(s_):
            k(f"v_add_f32 v{t+g}, v{t+g}, v{t+g+s_}")
    k(f"""
    v_mov_b32 v{t+1}, v{t}
    v_permlane32_swap_b32 v{t}, v{t+1}
    """)
    k(f"""
    v_mul_f32 v{t}, {f32(1.0/D)}, v{t}
    v_mul_f32 v{t+1}, {f32(1.0/D)}, v{t+1}
    v_fma_f32 v{t+1}, -v{t}, v{t}, v{t+1}
    v_max_f32 v{t+1}, 0, v{t+1}
    v_add_f32 v{t+1}, {f32(1e-5)}, v{t+1}
    v_rsq_f32 v{out_rstd}, v{t+1}
    v_sub_f32 v{t}, 0, v{t}
    v_cvt_pk_bf16_f32 v{t+2}, v{t}, v{t}
    v_lshlrev_b32 v{t+3}, 16, v{t+2}
    v_sub_f32 v{t+3}, v{t}, v{t+3}
    v_cvt_pk_bf16_f32 v{t+3}, v{t+3}, v{t+3}
    v_cndmask_b32 v{out_bop}, v{t+2}, v{t+3}, s[40:41]
    v_mov_b32 v{out_bop+1}, v{out_bop}
    v_mov_b32 v{out_bop+2}, v{out_bop}
    v_mov_b32 v{out_bop+3}, v{out_bop}
    """)


def common_head(k, name, mode):
    k(f"""
    s_cmp_ge_u32 s2, 256
    s_cbranch_scc1 {name}_exit
    v_lshrrev_b32 v1, 6, v0
    s_nop 0
    v_readfirstlane_b32 s3, v1
    v_and_b32 v1, 63, v0
    """)
    tile_map(k, mode)


def lane_consts(k):
    k("""
    v_and_b32 v2, 31, v1
    v_lshrrev_b32 v3, 5, v1
    v_cmp_eq_u32 s[40:41], 1, v3
    """)


def w_tr_base(k, dst, colbyte_sreg_or_const, rb, swz):
    k(f"""
    v_and_b32 v4, 15, v1
    v_lshrrev_b32 v5, 2, v4
    v_lshl_add_u32 v5, v3, 3, v5
    v_mul_u32_u24 v5, {rb}, v5
    v_and_b32 v6, 3, v4
    v_lshlrev_b32 v6, 3, v6
    v_bfe_u32 v7, v1, 4, 1
    v_lshl_add_u32 v6, v7, 5, v6
    v_add_u32 v6, {colbyte_sreg_or_const}, v6
    """)
    if swz:
        k(f"""v_bfe_u32 v7, v1, 3, 1
        v_lshlrev_b32 v7, 6, v7
        v_xor_b32 v6, v6, v7""")
    k(f"v_add_u32 v{dst}, v5, v6")


def x_addr(k, dst, rowsreg):
    k(f"""
    v_add_u32 v4, {rowsreg}, v2
    v_bfe_u32 v5, v4, 1, 3
    v_lshlrev_b32 v4, 7, v4
    """)
    for t in range(4):
        k(f"""v_add_u32 v6, {2*t}, v3
        v_xor_b32 v6, v6, v5
        v_lshl_add_u32 v{dst+t}, v6, 4, v4""")


def M32(d, a, b, c=None):
    c = vr(d, 16) if c is None else c
    return f"v_mfma_f32_32x32x16_bf16 {vr(d,16)}, {vr(a,4)}, {vr(b,4)}, {c}"


def M16(d, a, b, c=None):
    c = vr(d, 4) if c is None else c
    return f"v_mfma_f32_16x16x32_bf16 {vr(d,4)}, {vr(a,4)}, {vr(b,4)}, {c}"


def gen_wo(name, ka_w, lin, final):
    k = Kern(name)
    R, STG = 6, 24576
    common_head(k, name, "4x8")
    k(f"""
    s_load_dwordx2 s[28:29], s[0:1], {ka_w}
    s_load_dwordx2 s[42:43], s[0:1], {KA_WS}
    s_load_dwordx2 s[44:45], s[0:1], {KA_X}
    s_load_dwordx2 s[46:47], s[0:1], {KA_OUT}
    s_waitcnt lgkmcnt(0)
    """)
    srd_off(k, 8, 42, WS_O, S * D * 2)
    srd(k, 12, 28, D * D * 2)
    srd(k, 16, 42, WS_END)
    if lin == 0:
        srd(k, 20, 44, S * D * 2)
    else:
        srd_off(k, 20, 42, WS_X[lin], S * D * 2)
    if final:
        srd(k, 24, 46, S * D * 2)
    else:
        srd_off(k, 24, 42, WS_X[lin + 1], S * D * 2)
    k(f"s_cmp_ge_u32 s3, 4\ns_cbranch_scc1 {name}_loader")
    lane_consts(k)
    k(f"""
    s_lshl_b32 s30, s3, 5
    s_lshl_b32 s31, s4, 7
    s_add_u32 s31, s31, s30
    v_add_u32 v9, s31, v2
    v_lshlrev_b32 v10, 11, v9
    v_lshl_add_u32 v10, v3, 4, v10
    s_lshl_b32 s34, s5, 7
    v_add_u32 v10, s34, v10
    """)
    RES = 112
    for q in range(4):
        k(f"buffer_load_dwordx4 {vr(RES+4*q,4)}, v10, s[20:23], 0 offen offset:{32*q}")
    x_addr(k, 12, "s30")
    w_tr_base(k, 16, "0", 128, True)
    k("v_xor_b32 v17, 64, v16")
    ACC = 32
    for i in range(32):
        k(f"v_mov_b32 v{ACC+i}, 0")

    def mf(fr):
        k(M32(ACC, fr + 4, fr))
        k(M32(ACC + 16, fr + 8, fr))

    gemm_compute(k, R, STG, 2, [12, 13, 14, 15, 16, 17], [0], [(4, 16384, 128), (5, 16384, 128)], 64, mf, 12, 20,
                 name + "_loop")
    k("s_waitcnt vmcnt(0)")
    k(f"s_mov_b32 s35, {ONES2}\nv_mov_b32 v20, 0\nv_mov_b32 v21, 0")
    for q in range(4):
        a = RES + 4 * q
        k(f"v_permlane32_swap_b32 v{a}, v{a+2}\nv_permlane32_swap_b32 v{a+1}, v{a+3}")
    for q in range(4):
        a = RES + 4 * q
        for j in range(4):
            ac = ACC + 8 * q + 2 * j
            k(f"""v_lshlrev_b32 v22, 16, v{a+j}
            v_and_b32 v23, 0xffff0000, v{a+j}
            v_add_f32 v22, v22, v{ac}
            v_add_f32 v23, v23, v{ac+1}
            v_cvt_pk_bf16_f32 v{a+j}, v22, v23""")
            if not final:
                k(f"v_dot2_f32_bf16 v20, v{a+j}, s35, v20\nv_dot2_f32_bf16 v21, v{a+j}, v{a+j}, v21")
        k(f"v_permlane32_swap_b32 v{a}, v{a+2}\nv_permlane32_swap_b32 v{a+1}, v{a+3}")
        k(f"buffer_store_dwordx4 {vr(a,4)}, v10, s[24:27], 0 offen offset:{32*q}")
    if not final:
        k(f"""
        v_permlane32_swap_b32 v20, v21
        v_lshlrev_b32 v22, 6, v9
        v_lshl_add_u32 v22, v3, 17, v22
        s_lshl_b32 s34, s5, 2
        s_add_u32 s34, s34, {hex(WS_ST[lin+1])}
        v_add_f32 v20, v20, v21
        buffer_store_dword v20, v22, s[16:19], s34 offen
        """)
    k(f"s_endpgm\n{name}_loader:")
    gemm_loader(k, 1, 2048, R, STG, False)
    k(f"{name}_exit:\ns_endpgm")
    return k, (256, 512, R * STG)


def stats_loads(k, dst, tokv, tmpv, st_off):
    k(f"""v_lshlrev_b32 v{tmpv}, 6, v{tokv}
    v_lshl_add_u32 v{tmpv}, v3, 17, v{tmpv}
    s_mov_b32 s34, {hex(st_off)}""")
    for q in range(4):
        k(f"buffer_load_dwordx4 {vr(dst+4*q,4)}, v{tmpv}, s[16:19], s34 offen offset:{16*q}")


def gen_qkvb(name, lin):
    k = Kern(name)
    R, STG = 5, 28672
    common_head(k, name, "4x8")
    k(f"""
    s_load_dwordx4 s[44:47], s[0:1], {KA_WQ}
    s_load_dwordx2 s[48:49], s[0:1], {KA_WV}
    s_load_dwordx2 s[42:43], s[0:1], {KA_WS}
    s_waitcnt lgkmcnt(0)
    """)
    srd_off(k, 8, 42, WS_X[lin], S * D * 2)
    srd(k, 12, 44, D * D * 2)
    srd(k, 16, 42, WS_END)
    k("""s_bitcmp1_b32 s5, 0
    s_cselect_b32 s46, s48, s46
    s_cselect_b32 s47, s49, s47""")
    srd(k, 20, 46, D * 32 * 2)
    k(f"s_cmp_ge_u32 s3, 4\ns_cbranch_scc1 {name}_loader")
    lane_consts(k)
    k(f"""
    s_lshl_b32 s30, s3, 5
    s_lshl_b32 s31, s4, 7
    s_add_u32 s31, s31, s30
    v_add_u32 v9, s31, v2
    """)
    STT = 144
    stats_loads(k, STT, 9, 10, WS_ST[lin])
    CS = 160
    k(f"""
    v_lshlrev_b32 v10, 4, v2
    s_lshl_b32 s34, s5, 10
    s_add_u32 s34, s34, {hex(WS_CSB)}
    s_and_b32 s35, s5, 1
    s_lshl_b32 s35, s35, 9
    s_add_u32 s35, s35, {hex(WS_CSB + 1024*16)}
    buffer_load_dwordx4 {vr(CS,4)}, v10, s[16:19], s34 offen
    buffer_load_dwordx4 {vr(CS+4,4)}, v10, s[16:19], s34 offen offset:512
    buffer_load_dwordx4 {vr(CS+8,4)}, v10, s[16:19], s35 offen
    """)
    x_addr(k, 12, "s30")
    w_tr_base(k, 16, "0", 128, True)
    k("v_xor_b32 v17, 64, v16")
    w_tr_base(k, 18, "0", 64, False)
    ACC = 32
    for i in range(48):
        k(f"v_mov_b32 v{ACC+i}, 0")
    k(f"""s_lshr_b32 s36, s5, 1
    s_and_b32 s36, s36, 3
    s_cmp_eq_u32 s36, s3
    s_cbranch_scc1 {name}_extra""")

    def mf(fr):
        k(M32(ACC, fr + 4, fr))
        k(M32(ACC + 16, fr + 8, fr))

    def mf3(fr):
        mf(fr)
        k(M32(ACC + 32, fr + 12, fr))

    RSTD, BOP = 20, 24

    def q_epi():
        k("s_waitcnt vmcnt(0)")
        ln_stats(k, None, 9, STT, RSTD, BOP, 0)
        k(M32(ACC, CS, BOP))
        k(M32(ACC + 16, CS + 4, BOP))
        k(f"""v_mul_f32 v21, {f32(LOG2E * DH**-0.5)}, v{RSTD}
        v_lshlrev_b32 v10, 4, v1
        s_lshl_b32 s34, s5, 18
        s_lshl_b32 s35, s4, 13
        s_add_u32 s34, s34, s35
        s_lshl_b32 s35, s3, 11
        s_add_u32 s34, s34, s35
        s_add_u32 s34, s34, {hex(WS_QB)}
        s_add_u32 s35, s34, {1<<17}
        """)
        for blk in range(2):
            for i in range(16):
                k(f"v_mul_f32 v{ACC+16*blk+i}, v21, v{ACC+16*blk+i}")
            for i in range(8):
                k(f"v_cvt_pk_bf16_f32 v{80+8*blk+i}, v{ACC+16*blk+2*i}, v{ACC+16*blk+2*i+1}")
            for t in range(2):
                k(f"buffer_store_dwordx4 {vr(80+8*blk+4*t,4)}, v10, s[16:19], s{34+blk} offen offset:{1024*t}")

    gemm_compute(k, R, STG, 2, [12, 13, 14, 15, 16, 17], [0], [(4, 16384, 128), (5, 16384, 128)], 80, mf, 12, 20,
                 name + "_loop")
    q_epi()
    k(f"s_endpgm\n{name}_extra:")
    gemm_compute(k, R, STG, 2, [12, 13, 14, 15, 16, 17, 18], [0],
                 [(4, 16384, 128), (5, 16384, 128), (6, 24576, 64)], 80, mf3, 16, 20, name + "_loop2")
    q_epi()
    E = ACC + 32
    k(M32(E, CS + 8, BOP))
    k(f"""s_lshl_b32 s34, s4, 14
    s_lshl_b32 s35, s3, 12
    s_add_u32 s34, s34, s35
    s_add_u32 s34, s34, {hex(WS_KV)}
    """)
    for i in range(16):
        k(f"v_mul_f32 v{E+i}, v{RSTD}, v{E+i}")
    for i in range(8):
        k(f"v_cvt_pk_bf16_f32 v{96+i}, v{E+2*i}, v{E+2*i+1}")
    k(f"s_bitcmp1_b32 s5, 0\ns_cbranch_scc1 {name}_v")
    for t in range(2):
        k(f"buffer_store_dwordx4 {vr(96+4*t,4)}, v10, s[16:19], s34 offen offset:{1024*t}")
    k(f"s_endpgm\n{name}_v:")
    LB = STG
    k(f"""v_mul_u32_u24 v4, 72, v2
    v_lshl_add_u32 v4, v3, 3, v4""")
    for i in range(4):
        k(f"ds_write_b64 v4, {vr(96+2*i,2)} offset:{LB+16*i}")
    k(f"""
    v_and_b32 v4, 15, v1
    v_lshrrev_b32 v5, 2, v4
    v_lshl_add_u32 v5, v3, 2, v5
    v_mul_u32_u24 v5, 72, v5
    v_and_b32 v6, 3, v4
    v_lshl_add_u32 v5, v6, 3, v5
    v_bfe_u32 v7, v1, 4, 1
    v_lshl_add_u32 v5, v7, 5, v5
    s_waitcnt lgkmcnt(0)
    """)
    for t in range(2):
        for e in range(2):
            k(f"ds_read_b64_tr_b16 {vr(104+4*t+2*e,2)}, v5 offset:{LB+(16*t+8*e)*72}")
    k("s_waitcnt lgkmcnt(0)")
    for t in range(2):
        k(f"buffer_store_dwordx4 {vr(104+4*t,4)}, v10, s[16:19], s34 offen offset:{2048+1024*t}")
    k(f"s_endpgm\n{name}_loader:")
    gemm_loader(k, 1, 2048, R, STG, True)
    k(f"{name}_exit:\ns_endpgm")
    return k, (256, 512, R * STG)


def feat_map(k, src, cvec, tmp, outp):
    t = tmp
    a, b, c, d = t + 32, t + 33, t + 34, t + 35
    k(f"v_max3_f32 v{a}, v{src}, v{src+1}, v{src+2}\nv_min3_f32 v{b}, v{src}, v{src+1}, v{src+2}")
    for i in range(3, 15, 2):
        k(f"v_max3_f32 v{a}, v{a}, v{src+i}, v{src+i+1}\nv_min3_f32 v{b}, v{b}, v{src+i}, v{src+i+1}")
    k(f"""v_max_f32 v{a}, v{a}, v{src+15}
    v_min_f32 v{b}, v{b}, v{src+15}
    v_mov_b32 v{c}, v{a}
    v_mov_b32 v{d}, v{b}
    v_permlane32_swap_b32 v{a}, v{c}
    v_permlane32_swap_b32 v{b}, v{d}
    v_max_f32 v{a}, v{a}, v{c}
    v_min_f32 v{b}, v{b}, v{d}
    v_mul_f32 v{a}, v{a}, v{cvec}
    v_mul_f32 v{b}, v{b}, v{cvec}
    """)
    for i in range(16):
        k(f"v_fma_f32 v{t+i}, v{src+i}, v{cvec}, -v{a}")
        k(f"v_fma_f32 v{t+16+i}, -v{src+i}, v{cvec}, v{b}")
    for i in range(32):
        k(f"v_exp_f32 v{t+i}, v{t+i}")
    k(f"v_add_f32 v{a}, v{t}, v{t+1}\nv_add_f32 v{b}, v{t+16}, v{t+17}")
    for i in range(2, 16):
        k(f"v_add_f32 v{a}, v{a}, v{t+i}\nv_add_f32 v{b}, v{b}, v{t+16+i}")
    k(f"""v_mov_b32 v{c}, v{a}
    v_mov_b32 v{d}, v{b}
    v_permlane32_swap_b32 v{a}, v{c}
    v_permlane32_swap_b32 v{b}, v{d}
    v_add_f32 v{a}, v{a}, v{c}
    v_add_f32 v{b}, v{b}, v{d}
    v_rcp_f32 v{a}, v{a}
    v_rcp_f32 v{b}, v{b}
    """)
    for i in range(16):
        k(f"v_mul_f32 v{t+i}, v{t+i}, v{a}\nv_mul_f32 v{t+16+i}, v{t+16+i}, v{b}")
    for i in range(16):
        k(f"v_cvt_pk_bf16_f32 v{outp+i}, v{t+2*i}, v{t+2*i+1}")


def ones_pattern(k, dst, t0, t1):
    k(f"""v_bfe_u32 v{t0}, v1, 2, 1
    v_bfe_u32 v{t1}, v1, 4, 1
    v_cmp_eq_u32 vcc, v{t0}, v{t1}
    v_mov_b32 v{t0}, {ONES2}
    v_cndmask_b32 v{dst}, 0, v{t0}, vcc
    v_mov_b32 v{dst+1}, v{dst}
    v_mov_b32 v{dst+2}, v{dst}
    v_mov_b32 v{dst+3}, v{dst}""")


def gen_qkva(name, lin):
    k = Kern(name)
    R, STG = 4, 40960
    common_head(k, name, "8x4")
    k(f"""
    s_load_dwordx4 s[44:47], s[0:1], {KA_X}
    s_load_dwordx2 s[48:49], s[0:1], {KA_WPHI}
    s_load_dwordx2 s[42:43], s[0:1], {KA_WS}
    s_waitcnt lgkmcnt(0)
    """)
    if lin == 0:
        srd(k, 8, 44, S * D * 2)
    else:
        srd_off(k, 8, 42, WS_X[lin], S * D * 2)
    srd(k, 12, 46, D * 3 * D * 2)
    srd(k, 16, 42, WS_END)
    srd(k, 20, 48, H * DH * DH * 2)
    k(f"s_cmp_ge_u32 s3, 4\ns_cbranch_scc1 {name}_loader")
    lane_consts(k)
    k(f"""
    s_lshr_b32 s36, s3, 1
    s_and_b32 s37, s3, 1
    s_lshl_b32 s38, s5, 1
    s_add_u32 s38, s38, s37
    s_lshl_b32 s30, s36, 6
    s_lshl_b32 s31, s4, 7
    s_add_u32 s31, s31, s30
    v_add_u32 v9, s31, v2
    v_add_u32 v11, 32, v9
    """)
    STT = 176
    stats_loads(k, STT, 9, 10, WS_ST[lin])
    stats_loads(k, STT + 16, 11, 10, WS_ST[lin])
    CS = 208
    k(f"""
    v_lshlrev_b32 v10, 4, v2
    s_lshl_b32 s34, s38, 9
    s_add_u32 s34, s34, {hex(WS_CSA)}
    buffer_load_dwordx4 {vr(CS,4)}, v10, s[16:19], s34 offen
    s_add_u32 s34, s34, 16384
    buffer_load_dwordx4 {vr(CS+4,4)}, v10, s[16:19], s34 offen
    s_add_u32 s34, s34, 16384
    buffer_load_dwordx4 {vr(CS+8,4)}, v10, s[16:19], s34 offen
    """)
    WP = 220
    k(f"""v_lshlrev_b32 v10, 1, v2
    v_lshl_add_u32 v10, v3, 8, v10
    s_lshl_b32 s34, s38, 11""")
    for t in range(2):
        for e in range(2):
            for j in range(4):
                k(f"buffer_load_ushort v{WP+8*t+4*e+j}, v10, s[20:23], s34 offen offset:{(16*t+8*e+j)*64}")
    x_addr(k, 12, "s30")
    k("s_lshl_b32 s35, s37, 6")
    w_tr_base(k, 16, "s35", 128, True)
    ACC = 32
    for i in range(96):
        k(f"v_mov_b32 v{ACC+i}, 0")

    def acc(p, b):
        return ACC + 32 * p + 16 * b

    def mf(fr):
        for p in range(3):
            for b in range(2):
                k(M32(acc(p, b), fr + 8 + 4 * p, fr + 4 * b))

    gemm_compute(k, R, STG, 1, [12, 13, 14, 15, 16], [0, 4096],
                 [(4, 16384, 128), (4, 16384 + 8192, 128), (4, 16384 + 16384, 128)], 128, mf, 20, 20, name + "_loop")
    k("s_waitcnt vmcnt(0)")
    RSTD = [20, 21]
    BOP = [24, 28]
    ln_stats(k, None, 9, STT, RSTD[0], BOP[0], 0)
    ln_stats(k, None, 11, STT + 16, RSTD[1], BOP[1], 0)
    for p in range(3):
        for b in range(2):
            k(M32(acc(p, b), CS + 4 * p, BOP[b]))
    for i in range(8):
        k(f"v_lshl_or_b32 v{WP+i}, v{WP+2*i+1}, 16, v{WP+2*i}")
    for p in range(2):
        for b in range(2):
            for i in range(8):
                k(f"v_cvt_pk_bf16_f32 v{128+16*p+8*b+i}, v{acc(p,b)+2*i}, v{acc(p,b)+2*i+1}")
    for p in range(2):
        for b in range(2):
            k(M32(acc(p, b), WP, 128 + 16 * p + 8 * b, "0"))
            k(M32(acc(p, b), WP + 4, 128 + 16 * p + 8 * b + 4))
    k(f"""
    v_add_u32 v4, s30, v2
    v_mul_u32_u24 v4, 200, v4
    v_lshl_add_u32 v4, v3, 3, v4
    s_mul_i32 s35, s37, 25600
    v_add_u32 v4, s35, v4
    """)
    for b in range(2):
        for i in range(16):
            k(f"v_mul_f32 v{acc(2,b)+i}, v{RSTD[b]}, v{acc(2,b)+i}")
        for i in range(8):
            k(f"v_cvt_pk_bf16_f32 v{160+8*b+i}, v{acc(2,b)+2*i}, v{acc(2,b)+2*i+1}")
        for i in range(4):
            k(f"ds_write_b64 v4, {vr(160+8*b+2*i,2)} offset:{6400*b+128+16*i}")
    k(f"""v_lshlrev_b32 v10, 4, v1
    s_lshl_b32 s34, s38, 17
    s_lshl_b32 s35, s4, 13
    s_add_u32 s34, s34, s35
    s_lshl_b32 s35, s36, 12
    s_add_u32 s34, s34, s35
    s_add_u32 s34, s34, {hex(WS_PQ)}
    """)
    for b in range(2):
        for i in range(16):
            k(f"v_mul_f32 v{acc(0,b)+i}, v{RSTD[b]}, v{acc(0,b)+i}")
        for i in range(8):
            k(f"v_cvt_pk_bf16_f32 v{128+8*b+i}, v{acc(0,b)+2*i}, v{acc(0,b)+2*i+1}")
        for t in range(2):
            k(f"buffer_store_dwordx4 {vr(128+8*b+4*t,4)}, v10, s[16:19], s34 offen offset:{2048*b+1024*t}")
    for b in range(2):
        k(f"v_mul_f32 v22, {f32(LOG2E)}, v{RSTD[b]}")
        feat_map(k, acc(1, b), 22, 176, 144)
        for s_ in range(2):
            for i in range(4):
                k(f"ds_write_b64 v4, {vr(144+8*s_+2*i,2)} offset:{6400*b+64*s_+16*i}")
    k("s_waitcnt lgkmcnt(0)\ns_barrier")
    k(f"""
    v_and_b32 v4, 15, v1
    v_lshrrev_b32 v5, 2, v4
    v_lshl_add_u32 v5, v5, 3, v3
    v_mul_u32_u24 v5, 200, v5
    v_and_b32 v6, 3, v4
    v_lshl_add_u32 v5, v6, 3, v5
    v_bfe_u32 v7, v1, 4, 1
    v_lshl_add_u32 v5, v7, 5, v5
    s_mul_i32 s35, s37, 25600
    v_add_u32 v5, s35, v5
    s_lshl_b32 s35, s36, 6
    v_add_u32 v6, s35, v5
    """)
    ones_pattern(k, 24, 28, 29)
    KVA, ZA = 32, 48
    for s_ in range(8):
        blk, t = s_ >> 1, s_ & 1
        for rd in range(2):
            off = (32 * blk + 4 * t + 2 * rd) * 200
            k(f"ds_read_b64_tr_b16 {vr(64+8*s_+2*rd,2)}, v6 offset:{off}")
            k(f"ds_read_b64_tr_b16 {vr(68+8*s_+2*rd,2)}, v5 offset:{off+128}")
        if s_ % 2 == 1:
            k("s_waitcnt lgkmcnt(0)")
            for s2_ in (s_ - 1, s_):
                k(M32(KVA, 64 + 8 * s2_, 68 + 8 * s2_, "0" if s2_ == 0 else None))
                k(M16(ZA, 24, 64 + 8 * s2_, "0" if s2_ == 0 else None))
    k(f"""
    s_lshl_b32 s34, s38, 17
    s_lshl_b32 s35, s4, 13
    s_add_u32 s34, s34, s35
    s_lshl_b32 s35, s36, 12
    s_add_u32 s34, s34, s35
    s_add_u32 s34, s34, {hex(WS_KVP)}
    s_lshl_b32 s39, s38, 12
    s_lshl_b32 s35, s4, 8
    s_add_u32 s39, s39, s35
    s_lshl_b32 s35, s36, 7
    s_add_u32 s39, s39, s35
    s_add_u32 s39, s39, {hex(WS_ZP)}
    v_lshlrev_b32 v11, 2, v2
    """)
    for q in range(4):
        k(f"buffer_store_dwordx4 {vr(KVA+4*q,4)}, v10, s[16:19], s34 offen offset:{1024*q}")
    k(f"buffer_store_dword v{ZA}, v11, s[16:19], s39 offen")
    k(f"s_endpgm\n{name}_loader:")
    gemm_loader(k, 3, 6144, R, STG, False)
    k(f"{name}_exit:\ns_endpgm")
    return k, (256, 512, R * STG)


def store_rows(k, pk, vaddr, srdn, soff):
    for q in range(2):
        a = pk + 4 * q
        k(f"v_permlane32_swap_b32 v{a}, v{a+2}\nv_permlane32_swap_b32 v{a+1}, v{a+3}")
        k(f"buffer_store_dwordx4 {vr(a,4)}, v{vaddr}, s[{srdn}:{srdn+3}], {soff} offen offset:{32*q}")


def gen_lin_o(name):
    k = Kern(name)
    k(f"""
    s_cmp_ge_u32 s2, 256
    s_cbranch_scc1 {name}_exit
    s_load_dwordx2 s[42:43], s[0:1], {KA_WS}
    v_lshrrev_b32 v1, 6, v0
    s_nop 0
    v_readfirstlane_b32 s3, v1
    v_and_b32 v1, 63, v0
    s_lshr_b32 s4, s2, 3
    s_and_b32 s5, s2, 7
    s_waitcnt lgkmcnt(0)
    """)
    srd(k, 16, 42, WS_END)
    lane_consts(k)
    k(f"""
    v_lshlrev_b32 v10, 4, v1
    s_lshl_b32 s34, s4, 17
    s_lshl_b32 s35, s3, 11
    s_add_u32 s34, s34, s35
    s_add_u32 s34, s34, {hex(WS_KVP)}
    """)
    for rt in range(16):
        for q in range(2):
            k(f"buffer_load_dwordx4 {vr(32+8*rt+4*q,4)}, v10, s[16:19], s34 offen offset:{1024*q}")
        k("s_add_u32 s34, s34, 8192")
    k(f"""
    v_lshlrev_b32 v11, 2, v1
    s_lshl_b32 s34, s4, 12
    s_lshl_b32 s35, s3, 10
    s_add_u32 s34, s34, s35
    s_add_u32 s34, s34, {hex(WS_ZP)}
    """)
    for q in range(4):
        k(f"buffer_load_dword v{160+q}, v11, s[16:19], s34 offen offset:{256*q}")
    k(f"""
    s_lshl_b32 s34, s4, 17
    s_lshl_b32 s35, s5, 14
    s_add_u32 s34, s34, s35
    s_lshl_b32 s35, s3, 12
    s_add_u32 s34, s34, s35
    s_add_u32 s34, s34, {hex(WS_PQ)}
    """)
    for q in range(4):
        k(f"buffer_load_dwordx4 {vr(168+4*q,4)}, v10, s[16:19], s34 offen offset:{1024*q}")
    k("s_waitcnt vmcnt(4)")
    for st in (8, 4, 2, 1):
        for g in range(st):
            for i in range(0, 8, 2):
                a, b = 32 + 8 * g + i, 32 + 8 * (g + st) + i
                k(f"v_pk_add_f32 {vr(a,2)}, {vr(a,2)}, {vr(b,2)}")
    for i in range(4):
        k(f"v_cvt_pk_bf16_f32 v{40+i}, v{32+2*i}, v{33+2*i}")
    k(f"""
    v_add_f32 v160, v160, v161
    v_add_f32 v162, v162, v163
    v_add_f32 v160, v160, v162
    s_lshl_b32 s35, s3, 10
    v_add_u32 v12, s35, v10
    ds_write_b128 v12, v[40:43]
    s_lshl_b32 s35, s3, 8
    v_add_u32 v12, s35, v11
    ds_write_b32 v12, v160 offset:4096
    s_waitcnt lgkmcnt(0)
    s_barrier
    """)
    KV = 32
    for s_ in range(4):
        k(f"ds_read_b128 {vr(KV+4*s_,4)}, v10 offset:{1024*s_}")
    k("v_lshlrev_b32 v12, 4, v3")
    ZT = 64
    ZF = 48
    for half in range(2):
        for w in range(4):
            for q in range(4):
                se = 4 * half + q
                k(f"ds_read_b128 {vr(ZT+16*w+4*q,4)}, v12 offset:{4096+256*w+32*se}")
        k("s_waitcnt lgkmcnt(0)")
        for i in range(0, 16, 2):
            k(f"v_pk_add_f32 {vr(ZT+i,2)}, {vr(ZT+i,2)}, {vr(ZT+16+i,2)}")
            k(f"v_pk_add_f32 {vr(ZT+32+i,2)}, {vr(ZT+32+i,2)}, {vr(ZT+48+i,2)}")
            k(f"v_pk_add_f32 {vr(ZT+i,2)}, {vr(ZT+i,2)}, {vr(ZT+32+i,2)}")
        for i in range(8):
            k(f"v_cvt_pk_bf16_f32 v{ZF+8*half+i}, v{ZT+2*i}, v{ZT+2*i+1}")
    k(f"""s_waitcnt vmcnt(0)
    v_mov_b32 v22, {f32(LOG2E)}
    s_lshl_b32 s34, s5, 8
    s_lshl_b32 s35, s3, 6
    s_add_u32 s34, s34, s35
    v_add_u32 v12, s34, v2
    v_lshlrev_b32 v12, 11, v12
    v_lshl_add_u32 v12, v3, 4, v12
    s_lshl_b32 s34, s4, 6
    s_add_u32 s34, s34, {hex(WS_O)}
    s_add_u32 s35, s34, 65536
    """)
    for b in range(2):
        for i in range(8):
            k(f"v_lshlrev_b32 v{64+2*i}, 16, v{168+8*b+i}\nv_and_b32 v{65+2*i}, 0xffff0000, v{168+8*b+i}")
        feat_map(k, 64, 22, 96, 80)
        NUM, DEN = 184, 200
        for s_ in range(4):
            k(M32(NUM, KV + 4 * s_, 80 + 4 * s_, "0" if s_ == 0 else None))
        for s_ in range(4):
            k(M32(DEN, ZF + 4 * s_, 80 + 4 * s_, "0" if s_ == 0 else None))
        k(f"v_add_f32 v{DEN}, {f32(1e-6)}, v{DEN}\nv_rcp_f32 v{DEN}, v{DEN}")
        for i in range(16):
            k(f"v_mul_f32 v{NUM+i}, v{NUM+i}, v{DEN}")
        for i in range(8):
            k(f"v_cvt_pk_bf16_f32 v{216+8*b+i}, v{NUM+2*i}, v{NUM+2*i+1}")
        store_rows(k, 216 + 8 * b, 12, 16, f"s{34+b}")
    k(f"{name}_exit:\ns_endpgm")
    return k, (256, 256, 8192)


def gen_attn(name):
    k = Kern(name)
    common_head(k, name, "2x16")
    k(f"""
    s_load_dwordx2 s[42:43], s[0:1], {KA_WS}
    s_lshr_b32 s36, s3, 2
    s_and_b32 s37, s3, 3
    s_lshl_b32 s38, s5, 1
    s_add_u32 s38, s38, s36
    s_lshl_b32 s39, s4, 2
    s_add_u32 s39, s39, s37
    s_waitcnt lgkmcnt(0)
    """)
    srd(k, 16, 42, WS_END)
    lane_consts(k)
    Q, NEG, SA, SB, P, O, L, ONE, KF, VF = 8, 16, 32, 48, 64, 80, 96, 100, 104, 120
    k(f"""
    v_lshlrev_b32 v4, 4, v1
    s_lshl_b32 s34, s38, 17
    s_lshl_b32 s35, s39, 11
    s_add_u32 s34, s34, s35
    s_add_u32 s34, s34, {hex(WS_QB)}
    buffer_load_dwordx4 {vr(Q,4)}, v4, s[16:19], s34 offen
    buffer_load_dwordx4 {vr(Q+4,4)}, v4, s[16:19], s34 offen offset:1024
    s_lshl_b32 s30, s3, 12
    s_add_u32 s31, s30, {hex(WS_KV)}
    """)

    def dma(slot_expr_const=None):
        for q in range(4):
            k(f"buffer_load_dwordx4 v4, s[16:19], s31 offen offset:{1024*q} lds")
        k("s_add_u32 s31, s31, 32768")

    for c in range(3):
        k(f"s_add_u32 m0, s30, {32768*c}")
        dma()
    ones_pattern(k, ONE, 5, 6)
    for i in range(16):
        k(f"v_mov_b32 v{O+i}, 0")
    for i in range(4):
        k(f"v_mov_b32 v{L+i}, 0")
    k("s_waitcnt vmcnt(8)\ns_barrier")
    k(f"""ds_read_b128 {vr(KF,4)}, v4
    ds_read_b128 {vr(KF+4,4)}, v4 offset:1024
    ds_read_b128 {vr(KF+8,4)}, v4 offset:4096
    ds_read_b128 {vr(KF+12,4)}, v4 offset:5120
    ds_read_b128 {vr(VF,4)}, v4 offset:2048
    ds_read_b128 {vr(VF+4,4)}, v4 offset:3072
    s_waitcnt lgkmcnt(4)
    """)
    k(M32(SA, KF, Q, "0"))
    k(M32(SA, KF + 4, Q + 4))
    k(f"v_max3_f32 v5, v{SA}, v{SA+1}, v{SA+2}")
    for i in range(3, 15, 2):
        k(f"v_max3_f32 v5, v5, v{SA+i}, v{SA+i+1}")
    k(f"""v_max_f32 v5, v5, v{SA+15}
    v_mov_b32 v6, v5
    v_permlane32_swap_b32 v5, v6
    v_max_f32 v5, v5, v6
    """)
    for i in range(16):
        k(f"v_sub_f32 v{NEG+i}, 0, v5")
    k(M32(SA, KF, Q, vr(NEG, 16)))
    k(M32(SA, KF + 4, Q + 4))
    k(f"""s_mov_b32 s32, 0
    v_mov_b32 v5, v4
    v_add_u32 v6, 32768, v4
    s_mov_b32 s33, 0x18000
    {name}_loop:""")
    for j in range(8):
        cur, nxt = (SA, SB) if j % 2 == 0 else (SB, SA)
        kn = KF + 8 * ((j + 1) % 2)
        kl = KF + 8 * (j % 2)
        vc = VF + 8 * (j % 2)
        vl = VF + 8 * ((j + 1) % 2)
        k("s_waitcnt lgkmcnt(0)")
        if j == 6:
            k(f"""s_waitcnt vmcnt(4)
            s_barrier
            s_cmp_ge_u32 s32, 5
            s_cbranch_scc1 {name}_nodma
            s_add_u32 m0, s30, s33""")
            dma()
            k(f"""s_branch {name}_dmadone
            {name}_nodma:
            s_waitcnt vmcnt(0)
            s_barrier
            {name}_dmadone:""")
        k(M32(nxt, kn, Q, vr(NEG, 16)))
        jj = j + 2
        kb, ko = (5, jj * 4096) if jj < 8 else (6, (jj - 8) * 4096)
        jj = j + 1
        vb, vo = (5, jj * 4096) if jj < 8 else (6, (jj - 8) * 4096)
        k(f"ds_read_b128 {vr(kl,4)}, v{kb} offset:{ko}\nds_read_b128 {vr(kl+4,4)}, v{kb} offset:{ko+1024}")
        for i in range(0, 4):
            k(f"v_exp_f32 v{cur+i}, v{cur+i}")
        k(M32(nxt, kn + 4, Q + 4))
        k(f"ds_read_b128 {vr(vl,4)}, v{vb} offset:{vo+2048}\nds_read_b128 {vr(vl+4,4)}, v{vb} offset:{vo+3072}")
        for i in range(4, 8):
            k(f"v_exp_f32 v{cur+i}, v{cur+i}")
        for i in range(4):
            k(f"v_cvt_pk_bf16_f32 v{P+i}, v{cur+2*i}, v{cur+2*i+1}")
        for i in range(8, 10):
            k(f"v_exp_f32 v{cur+i}, v{cur+i}")
        k(M32(O, vc, P))
        for i in range(10, 13):
            k(f"v_exp_f32 v{cur+i}, v{cur+i}")
        k(M16(L, ONE, P))
        for i in range(13, 16):
            k(f"v_exp_f32 v{cur+i}, v{cur+i}")
        for i in range(4, 8):
            k(f"v_cvt_pk_bf16_f32 v{P+i}, v{cur+2*i}, v{cur+2*i+1}")
        k(M32(O, vc + 4, P + 4))
        k(M16(L, ONE, P + 4))
    k(f"""
    v_mov_b32 v5, v6
    s_add_u32 s33, s33, 0x8000
    s_and_b32 s33, s33, 0x1ffff
    s_add_u32 s34, s33, 0x10000
    s_and_b32 s34, s34, 0x1ffff
    v_add_u32 v6, s34, v4
    s_add_u32 s32, s32, 1
    s_cmp_lt_u32 s32, 8
    s_cbranch_scc1 {name}_loop
    s_waitcnt lgkmcnt(0)
    """)
    k(f"v_max3_f32 v5, abs(v{O}), abs(v{O+1}), abs(v{O+2})")
    for i in range(3, 15, 2):
        k(f"v_max3_f32 v5, v5, abs(v{O+i}), abs(v{O+i+1})")
    k(f"""v_max3_f32 v5, v5, abs(v{O+15}), v{L}
    v_mov_b32 v6, 0
    """)
    for i in range(16):
        k(f"v_fma_f32 v6, v{O+i}, 0, v6")
    k(f"""v_fma_f32 v6, v{L}, 0, v6
    v_add_f32 v5, v5, v6
    s_mov_b32 s34, {f32(2.0**100)}
    v_cmp_nlt_f32 vcc, v5, s34
    s_cbranch_vccnz {name}_slow
    {name}_fin:
    v_rcp_f32 v5, v{L}
    s_lshl_b32 s34, s39, 5
    v_add_u32 v6, s34, v2
    v_lshlrev_b32 v6, 11, v6
    v_lshl_add_u32 v6, v3, 4, v6
    s_lshl_b32 s34, s38, 6
    s_add_u32 s34, s34, {hex(WS_O)}
    """)
    for i in range(16):
        k(f"v_mul_f32 v{O+i}, v{O+i}, v5")
    for i in range(8):
        k(f"v_cvt_pk_bf16_f32 v{P+i}, v{O+2*i}, v{O+2*i+1}")
    store_rows(k, P, 6, 16, "s34")
    k(f"{name}_exit:\ns_endpgm")
    k(f"{name}_slow:")
    for i in range(16):
        k(f"v_mov_b32 v{O+i}, 0")
    for i in range(4):
        k(f"v_mov_b32 v{L+i}, 0")
    k(f"""v_mov_b32 v7, 0xff800000
    s_mov_b32 s31, {hex(WS_KV)}
    s_mov_b32 s32, 0
    {name}_sloop:
    buffer_load_dwordx4 {vr(KF,4)}, v4, s[16:19], s31 offen
    buffer_load_dwordx4 {vr(KF+4,4)}, v4, s[16:19], s31 offen offset:1024
    buffer_load_dwordx4 {vr(VF,4)}, v4, s[16:19], s31 offen offset:2048
    buffer_load_dwordx4 {vr(VF+4,4)}, v4, s[16:19], s31 offen offset:3072
    s_waitcnt vmcnt(0)
    """)
    k(M32(SA, KF, Q, "0"))
    k(M32(SA, KF + 4, Q + 4))
    k(f"v_max3_f32 v5, v{SA}, v{SA+1}, v{SA+2}")
    for i in range(3, 15, 2):
        k(f"v_max3_f32 v5, v5, v{SA+i}, v{SA+i+1}")
    k(f"""v_max_f32 v5, v5, v{SA+15}
    v_mov_b32 v6, v5
    v_permlane32_swap_b32 v5, v6
    v_max3_f32 v5, v5, v6, v7
    v_sub_f32 v6, v7, v5
    v_exp_f32 v6, v6
    v_mov_b32 v7, v5
    """)
    for i in range(16):
        k(f"v_sub_f32 v{SA+i}, v{SA+i}, v5")
    for i in range(16):
        k(f"v_exp_f32 v{SA+i}, v{SA+i}")
    for i in range(16):
        k(f"v_mul_f32 v{O+i}, v{O+i}, v6")
    for i in range(4):
        k(f"v_mul_f32 v{L+i}, v{L+i}, v6")
    for i in range(8):
        k(f"v_cvt_pk_bf16_f32 v{P+i}, v{SA+2*i}, v{SA+2*i+1}")
    k(M32(O, VF, P))
    k(M16(L, ONE, P))
    k(M32(O, VF + 4, P + 4))
    k(M16(L, ONE, P + 4))
    k(f"""s_add_u32 s31, s31, 4096
    s_add_u32 s32, s32, 1
    s_cmp_lt_u32 s32, 64
    s_cbranch_scc1 {name}_sloop
    s_nop 15
    s_branch {name}_fin""")
    return k, (256, 512, 131072)


def main():
    ks = {}
    order = []

    def add(kk, reuse=None):
        kern, geo = kk
        ks[kern.name] = (kern, geo)
        order.append(kern.name)

    add(gen_prep())
    add(gen_qkva("qkva0_kernel", 0))
    add(gen_lin_o("lino_kernel"))
    add(gen_wo("woa0_kernel", KA_WOA, 0, False))
    add(gen_qkvb("qkvb0_kernel", 1))
    add(gen_attn("attn_kernel"))
    add(gen_wo("wob0_kernel", KA_WOB, 1, False))
    add(gen_qkva("qkva1_kernel", 2))
    order.append("lino_kernel")
    add(gen_wo("woa1_kernel", KA_WOA, 2, False))
    add(gen_qkvb("qkvb1_kernel", 3))
    order.append("attn_kernel")
    add(gen_wo("wob1_kernel", KA_WOB, 3, True))
    hdr = open("interleave_layers__linear_kernel_hedgehog__grouped_kv_mqa__prompt.s.ref").read()
    hdr = "".join(l + "\n" for l in hdr.split("\n") if l.startswith(";") and "@launch" not in l and "Override" not in l and "grid=ceil" not in l)
    out = hdr
    for n in order:
        g, b, l = ks[n][1]
        out += f"; @launch kernel={n} grid=({g},1,1) block=({b},1,1) lds={l}\n"
    out += '.amdgcn_target "amdgcn-amd-amdhsa--gfx950"\n.text\n'
    for n, (kern, geo) in ks.items():
        out += kern.text()
    out += '.section .rodata,"a"\n'
    for n, (kern, geo) in ks.items():
        out += kern.desc()
    sys.stdout.write(out)


if __name__ == "__main__":
    main()
```

```python
import sys, struct, math
from asmlib import Kern, vr, sr

S, D, H, DH = 2048, 1024, 32, 32
KA_X, KA_WQKV, KA_WPHI, KA_WOA, KA_BX, KA_WQ, KA_WK, KA_WV, KA_WOB, KA_OUT, KA_DBG, KA_WS = [8 * i for i in range(12)]
P_X, P_WQKV, P_WPHI, P_WOA, P_BX, P_WQ, P_WK, P_WV, P_WOB, P_OUT, P_DBG, P_WS = [64 + 2 * i for i in range(12)]
MB = 1 << 20
WS_X = [44 * MB, 0 * MB, 4 * MB, 8 * MB]
WS_O = [12 * MB, 16 * MB, 20 * MB, 24 * MB]
WS_KVP = [28 * MB, 32 * MB]
WS_KV = [36 * MB, 36 * MB + 0x40000]
WS_ZP = [37 * MB, 37 * MB + 0x20000]
WS_ST = [38 * MB + i * 0x40000 for i in range(4)]
WS_CSA = 39 * MB
WS_CSB = 39 * MB + 0x10000
WS_FL = 40 * MB
WS_END = 48 * MB
WS_PROF = 64 * MB
LOG2E = 1.4426950408889634
ONES2 = "0x3f803f80"
PROF = "prof" in sys.argv
NST = 16
F_COL, F_OA, F_XA, F_KVB, F_OB, F_XB = range(6)


def flag_off(rep, grp):
    return WS_FL + (rep * 6 + grp) * 4096


def f32(x):
    return "0x%08x" % struct.unpack("<I", struct.pack("<f", x))[0]


def srd(k, d, ptr, nbytes):
    k(f"""s_mov_b32 s{d}, s{ptr}
    s_and_b32 s{d+1}, s{ptr+1}, 0xffff
    s_mov_b32 s{d+2}, {hex(nbytes)}
    s_mov_b32 s{d+3}, 0x20000""")


def srd_off(k, d, ptr, off, nbytes):
    k(f"""s_add_u32 s{d}, s{ptr}, {hex(off)}
    s_addc_u32 s{d+1}, s{ptr+1}, 0
    s_and_b32 s{d+1}, s{d+1}, 0xffff
    s_mov_b32 s{d+2}, {hex(nbytes)}
    s_mov_b32 s{d+3}, 0x20000""")


STAMPS = {}


def stamp(k, name):
    if not PROF:
        return
    idx = STAMPS.setdefault(name, len(STAMPS) + 2)
    assert idx < 128
    k(f"s_memtime s[88:89]\ns_waitcnt lgkmcnt(0)\nv_writelane_b32 v{255 - idx // 64}, s88, {idx % 64}")


def M32(d, a, b, c=None):
    c = vr(d, 16) if c is None else c
    return f"v_mfma_f32_32x32x16_bf16 {vr(d,16)}, {vr(a,4)}, {vr(b,4)}, {c}"


def M16(d, a, b, c=None):
    c = vr(d, 4) if c is None else c
    return f"v_mfma_f32_16x16x32_bf16 {vr(d,4)}, {vr(a,4)}, {vr(b,4)}, {c}"


def gen_prep():
    k = Kern("prep_kernel")
    NWG = 258 + 64
    k(f"""
    s_cmp_ge_u32 s2, {NWG}
    s_cbranch_scc1 prep_end
    s_load_dwordx4 s[4:7], s[0:1], {KA_X}
    s_load_dwordx4 s[8:11], s[0:1], {KA_WQ}
    s_load_dwordx2 s[12:13], s[0:1], {KA_WV}
    s_load_dwordx2 s[14:15], s[0:1], {KA_WS}
    s_load_dwordx2 s[36:37], s[0:1], {KA_WOA}
    s_load_dwordx2 s[38:39], s[0:1], {KA_WOB}
    v_lshrrev_b32 v1, 6, v0
    v_and_b32 v2, 63, v0
    v_readfirstlane_b32 s3, v1
    s_waitcnt lgkmcnt(0)
    """)
    srd(k, 16, 14, WS_END)
    k("""s_cmp_ge_u32 s2, 258
    s_cbranch_scc1 prep_touch
    s_cmp_ge_u32 s2, 128
    s_cbranch_scc1 prep_cols""")
    srd(k, 20, 4, S * D * 2)
    k(f"""
    s_lshl_b32 s24, s2, 4
    s_lshl_b32 s25, s3, 2
    s_add_u32 s24, s24, s25
    s_lshl_b32 s25, s24, 11
    v_lshlrev_b32 v3, 4, v2
    s_mov_b32 s26, {ONES2}
    """)
    for i in range(4):
        k(f"buffer_load_dwordx4 {vr(8+8*i,4)}, v3, s[20:23], s25 offen offset:0")
        k(f"buffer_load_dwordx4 {vr(12+8*i,4)}, v3, s[20:23], s25 offen offset:1024")
        k(f"s_add_u32 s25, s25, 2048")
    k(f"""
    s_cmp_ge_u32 s2, 12
    s_cbranch_scc1 prep_nz
    v_mov_b32 v44, 0
    v_mov_b32 v45, 0
    v_mov_b32 v46, 0
    v_mov_b32 v47, 0
    v_lshlrev_b32 v4, 4, v0
    s_lshl_b32 s25, s2, 12
    s_add_u32 s25, s25, {hex(WS_FL)}
    buffer_store_dwordx4 v[44:47], v4, s[16:19], s25 offen
    prep_nz:
    v_and_b32 v4, 1, v2
    v_lshlrev_b32 v4, 7, v4
    v_lshrrev_b32 v5, 2, v2
    v_lshl_add_u32 v4, v5, 10, v4
    s_lshr_b32 s25, s24, 7
    s_lshl_b32 s25, s25, 14
    s_bfe_u32 s27, s24, 0x20005
    s_lshl_b32 s27, s27, 8
    s_add_u32 s25, s25, s27
    s_and_b32 s27, s24, 31
    s_lshl_b32 s28, s27, 2
    s_add_u32 s25, s25, s28
    s_add_u32 s25, s25, {hex(WS_ST[0])}
    v_lshrrev_b32 v6, 1, v2
    v_lshlrev_b32 v6, 10, v6
    v_and_b32 v5, 1, v2
    v_lshl_add_u32 v6, v5, 9, v6
    s_lshr_b32 s29, s24, 5
    s_lshl_b32 s29, s29, 16
    s_lshl_b32 s28, s27, 4
    s_add_u32 s29, s29, s28
    s_add_u32 s29, s29, {hex(WS_X[0])}
    s_add_u32 s30, s29, 32768
    v_cmp_eq_u32 vcc, 1, v5
    s_waitcnt vmcnt(0)
    """)
    for i in range(4):
        k("v_mov_b32 v40, 0\nv_mov_b32 v41, 0")
        for j in range(8):
            k(f"v_dot2_f32_bf16 v40, v{8+8*i+j}, s26, v40")
            k(f"v_dot2_f32_bf16 v41, v{8+8*i+j}, v{8+8*i+j}, v41")
        k("""v_cndmask_b32 v42, v40, v41, vcc
        v_cndmask_b32 v43, v41, v40, vcc
        v_add_f32_dpp v42, v43, v42 quad_perm:[1,0,3,2] row_mask:0xf bank_mask:0xf
        v_add_f32_dpp v48, v42, v42 quad_perm:[2,3,0,1] row_mask:0xf bank_mask:0xf
        """)
        k(f"buffer_store_dword v48, v4, s[16:19], s25 offen offset:{4*i}")
        for hf in range(2):
            a_ = 8 + 8 * i + 4 * hf
            o_ = 52 + 8 * i + 4 * hf
            k(f"""v_cndmask_b32 v50, v{a_+2}, v{a_}, vcc
            v_cndmask_b32 v51, v{a_+3}, v{a_+1}, vcc
            v_mov_b32_dpp v50, v50 quad_perm:[1,0,3,2] row_mask:0xf bank_mask:0xf
            v_mov_b32_dpp v51, v51 quad_perm:[1,0,3,2] row_mask:0xf bank_mask:0xf
            v_cndmask_b32 v{o_}, v{a_}, v50, vcc
            v_cndmask_b32 v{o_+1}, v{a_+1}, v51, vcc
            v_cndmask_b32 v{o_+2}, v50, v{a_+2}, vcc
            v_cndmask_b32 v{o_+3}, v51, v{a_+3}, vcc
            buffer_store_dwordx4 {vr(o_,4)}, v6, s[16:19], s{29+hf} offen offset:{16*i}""")
    k("s_endpgm")
    k(f"""prep_touch:
    s_sub_u32 s24, s2, 258
    s_cmp_ge_u32 s24, 32
    s_cselect_b32 s32, s38, s36
    s_cselect_b32 s33, s39, s37
    s_and_b32 s24, s24, 31
    s_lshl_b32 s24, s24, 16
    v_lshlrev_b32 v3, 4, v0
    """)
    srd(k, 20, 32, D * D * 2)
    for i in range(16):
        k(f"buffer_load_dwordx4 {vr(16+4*i,4)}, v3, s[20:23], s24 offen")
        k("s_add_u32 s24, s24, 4096")
    k("s_waitcnt vmcnt(0)\ns_endpgm")
    k("prep_cols:")
    k(f"""
    s_sub_u32 s24, s2, 128
    s_and_b32 s25, s24, 3
    s_lshr_b32 s26, s24, 2
    s_cmp_ge_u32 s2, 256
    s_cbranch_scc1 prep_small
    s_cmp_ge_u32 s2, 224
    s_cbranch_scc1 prep_wq
    """)
    srd(k, 20, 6, D * 3 * D * 2)
    k(f"""s_mov_b32 s27, 6144
    s_lshl_b32 s28, s26, 11
    s_add_u32 s28, s28, {hex(WS_CSA)}
    s_branch prep_big
    prep_wq:""")
    srd(k, 20, 8, D * D * 2)
    k(f"""s_mov_b32 s27, 2048
    s_sub_u32 s26, s26, 24
    s_lshl_b32 s28, s26, 11
    s_add_u32 s28, s28, {hex(WS_CSB)}
    prep_big:
    s_lshl_b32 s29, s25, 8
    s_lshl_b32 s30, s3, 6
    s_add_u32 s29, s29, s30
    s_mul_i32 s29, s29, s27
    s_lshl_b32 s30, s26, 8
    s_add_u32 s29, s29, s30
    s_lshl_b32 s30, s25, 2
    s_add_u32 s28, s28, s30
    v_lshlrev_b32 v6, 4, v0
    s_mov_b32 s31, 0
    s_branch prep_sum
    prep_small:
    s_cmp_eq_u32 s2, 257
    s_cselect_b32 s32, s12, s10
    s_cselect_b32 s33, s13, s11
    s_cselect_b32 s28, 512, 0
    s_add_u32 s28, s28, {hex(WS_CSB + 1024*16)}
    """)
    srd(k, 20, 32, D * 32 * 2)
    k(f"""s_mov_b32 s27, 256
    s_lshl_b32 s29, s3, 14
    v_and_b32 v6, 31, v0
    v_lshlrev_b32 v6, 4, v6
    v_lshrrev_b32 v7, 5, v0
    v_lshl_add_u32 v6, v7, 2, v6
    s_mov_b32 s31, 1
    prep_sum:
    v_lshrrev_b32 v3, 4, v2
    v_mul_lo_u32 v3, v3, s27
    v_and_b32 v4, 15, v2
    v_lshl_add_u32 v3, v4, 4, v3
    s_lshl_b32 s30, s27, 2
    """)
    for i in range(16):
        k(f"buffer_load_dwordx4 {vr(16+4*i,4)}, v3, s[20:23], s29 offen")
        k("s_add_u32 s29, s29, s30")
    k("s_mov_b32 s34, 0x3f80\ns_mov_b32 s35, 0x3f800000")
    for j in range(8):
        k(f"v_mov_b32 v{8+j}, 0")
    for i in range(16):
        k(f"s_waitcnt vmcnt({15-i})")
        for j in range(4):
            k(f"v_dot2_f32_bf16 v{8+2*j}, v{16+4*i+j}, s34, v{8+2*j}")
            k(f"v_dot2_f32_bf16 v{9+2*j}, v{16+4*i+j}, s35, v{9+2*j}")
    k(f"""
    v_lshlrev_b32 v3, 5, v0
    ds_write_b128 v3, v[8:11]
    ds_write_b128 v3, v[12:15] offset:16
    s_waitcnt lgkmcnt(0)
    s_barrier
    s_cmp_ge_u32 s3, 2
    s_cbranch_scc1 prep_end
    s_cmp_eq_u32 s31, 1
    s_cbranch_scc1 prep_red_small
    v_lshlrev_b32 v3, 2, v0
    """)
    for g in range(16):
        k(f"ds_read_b32 v{16+g}, v3 offset:{g*512}")
    k(f"""s_branch prep_red
    prep_red_small:
    v_and_b32 v3, 31, v0
    v_lshlrev_b32 v3, 2, v3
    v_lshrrev_b32 v4, 5, v0
    v_lshl_add_u32 v3, v4, 11, v3
    """)
    for g in range(16):
        k(f"ds_read_b32 v{16+g}, v3 offset:{(g>>2)*512 + (g&3)*128}")
    k("prep_red:\ns_waitcnt lgkmcnt(0)")
    for st in (8, 4, 2, 1):
        for g in range(st):
            k(f"v_add_f32 v{16+g}, v{16+g}, v{16+g+st}")
    k("""
    v_cvt_pk_bf16_f32 v17, v16, v16
    v_lshlrev_b32 v18, 16, v17
    v_sub_f32 v18, v16, v18
    v_cvt_pk_bf16_f32 v17, v16, v18
    buffer_store_dword v17, v6, s[16:19], s28 offen
    prep_end:
    s_endpgm
    """)
    return k, (NWG, 256, 8192)


def tile_map(k, mode):
    if mode == "4x8":
        k("""s_and_b32 s6, s2, 7
        s_lshr_b32 s7, s2, 3
        s_lshr_b32 s4, s6, 1
        s_lshl_b32 s4, s4, 2
        s_lshr_b32 s5, s7, 3
        s_add_u32 s4, s4, s5
        s_and_b32 s5, s6, 1
        s_lshl_b32 s5, s5, 3
        s_and_b32 s7, s7, 7
        s_add_u32 s5, s5, s7""")
    elif mode == "8x4":
        k("""s_and_b32 s6, s2, 7
        s_lshr_b32 s7, s2, 3
        s_lshr_b32 s4, s6, 2
        s_lshl_b32 s4, s4, 3
        s_lshr_b32 s5, s7, 2
        s_add_u32 s4, s4, s5
        s_and_b32 s5, s6, 3
        s_lshl_b32 s5, s5, 2
        s_and_b32 s7, s7, 3
        s_add_u32 s5, s5, s7""")


def lines(txt):
    return [l.strip() for l in txt.split("\n") if l.strip()]


def ln_stats(tmp, out_rstd, out_bop):
    t = tmp
    o = []
    for g in range(0, 8, 2):
        o.append(f"v_pk_add_f32 {vr(t+g,2)}, {vr(t+g,2)}, {vr(t+g+8,2)}")
    for g in range(0, 4, 2):
        o.append(f"v_pk_add_f32 {vr(t+g,2)}, {vr(t+g,2)}, {vr(t+g+4,2)}")
    o.append(f"v_pk_add_f32 {vr(t,2)}, {vr(t,2)}, {vr(t+2,2)}")
    o += lines(f"""
    v_add_f32 v{t}, v{t}, v{t+1}
    v_mul_f32 v{t}, {f32(1.0/D)}, v{t}
    v_mov_b32 v{t+1}, v{t}
    v_permlane32_swap_b32 v{t}, v{t+1}
    v_fma_f32 v{t+1}, -v{t}, v{t}, v{t+1}
    v_max_f32 v{t+1}, 0, v{t+1}
    v_add_f32 v{t+1}, {f32(1e-5)}, v{t+1}
    v_rsq_f32 v{out_rstd}, v{t+1}
    """)
    if out_bop is not None:
        o += lines(f"""
        v_sub_f32 v{t}, 0, v{t}
        v_cvt_pk_bf16_f32 v{t+2}, v{t}, v{t}
        v_lshlrev_b32 v{t+3}, 16, v{t+2}
        v_sub_f32 v{t+3}, v{t}, v{t+3}
        v_cvt_pk_bf16_f32 v{t+3}, v{t+3}, v{t+3}
        v_cndmask_b32 v{out_bop}, v{t+2}, v{t+3}, s[40:41]
        v_mov_b32 v{out_bop+1}, v{out_bop}
        v_mov_b32 v{out_bop+2}, v{out_bop}
        v_mov_b32 v{out_bop+3}, v{out_bop}
        """)
    return o


def pk_mul(k, dst, src, sc, n):
    for i in range(0, n, 2):
        k(f"v_pk_mul_f32 {vr(dst+i,2)}, {vr(src+i,2)}, {vr(sc,2)}")


def feat_map(k, src, cvec, tmp, outp):
    t = tmp
    a, b, c, d = t + 32, t + 34, t + 36, t + 38
    k(f"v_max3_f32 v{a}, v{src}, v{src+1}, v{src+2}\nv_min3_f32 v{b}, v{src}, v{src+1}, v{src+2}")
    for i in range(3, 15, 2):
        k(f"v_max3_f32 v{a}, v{a}, v{src+i}, v{src+i+1}\nv_min3_f32 v{b}, v{b}, v{src+i}, v{src+i+1}")
    k(f"""v_max_f32 v{a}, v{a}, v{src+15}
    v_min_f32 v{b}, v{b}, v{src+15}
    v_mov_b32 v{c}, v{a}
    v_mov_b32 v{d}, v{b}
    v_permlane32_swap_b32 v{a}, v{c}
    v_permlane32_swap_b32 v{b}, v{d}
    v_max_f32 v{a}, v{a}, v{c}
    v_min_f32 v{b}, v{b}, v{d}
    v_mul_f32 v{a}, v{a}, v{cvec}
    v_mul_f32 v{b}, v{b}, v{cvec}
    v_mov_b32 v{a+1}, v{a}
    v_mov_b32 v{b+1}, v{b}
    """)
    for i in range(0, 16, 2):
        k(f"v_pk_fma_f32 {vr(t+i,2)}, {vr(src+i,2)}, {vr(cvec,2)}, {vr(a,2)} neg_lo:[0,0,1] neg_hi:[0,0,1]")
        k(f"v_pk_fma_f32 {vr(t+16+i,2)}, {vr(src+i,2)}, {vr(cvec,2)}, {vr(b,2)} neg_lo:[1,0,0] neg_hi:[1,0,0]")
    for i in range(32):
        k(f"v_exp_f32 v{t+i}, v{t+i}")
    k(f"v_pk_add_f32 {vr(a,2)}, {vr(t,2)}, {vr(t+2,2)}\nv_pk_add_f32 {vr(b,2)}, {vr(t+16,2)}, {vr(t+18,2)}")
    for i in range(4, 16, 2):
        k(f"v_pk_add_f32 {vr(a,2)}, {vr(a,2)}, {vr(t+i,2)}\nv_pk_add_f32 {vr(b,2)}, {vr(b,2)}, {vr(t+16+i,2)}")
    k(f"""v_add_f32 v{a}, v{a}, v{a+1}
    v_add_f32 v{b}, v{b}, v{b+1}
    v_mov_b32 v{c}, v{a}
    v_mov_b32 v{d}, v{b}
    v_permlane32_swap_b32 v{a}, v{c}
    v_permlane32_swap_b32 v{b}, v{d}
    v_add_f32 v{a}, v{a}, v{c}
    v_add_f32 v{b}, v{b}, v{d}
    v_rcp_f32 v{a}, v{a}
    v_rcp_f32 v{b}, v{b}
    v_mov_b32 v{a+1}, v{a}
    v_mov_b32 v{b+1}, v{b}
    """)
    pk_mul(k, t, t, a, 16)
    pk_mul(k, t + 16, t + 16, b, 16)
    for i in range(16):
        k(f"v_cvt_pk_bf16_f32 v{outp+i}, v{t+2*i}, v{t+2*i+1}")


def ones_pattern(k, dst, t0, t1):
    k(f"""v_bfe_u32 v{t0}, v1, 2, 1
    v_bfe_u32 v{t1}, v1, 4, 1
    v_cmp_eq_u32 vcc, v{t0}, v{t1}
    v_mov_b32 v{t0}, {ONES2}
    v_cndmask_b32 v{dst}, 0, v{t0}, vcc
    v_mov_b32 v{dst+1}, v{dst}
    v_mov_b32 v{dst+2}, v{dst}
    v_mov_b32 v{dst+3}, v{dst}""")


def wphi_loads(k, WP, headsreg):
    k(f"""v_lshlrev_b32 v10, 1, v2
    v_lshl_add_u32 v10, v3, 8, v10
    s_lshl_b32 s34, {headsreg}, 11""")
    for t in range(2):
        for e in range(2):
            for j in range(4):
                k(f"buffer_load_ushort v{WP+8*t+4*e+j}, v10, s[20:23], s34 offen offset:{(16*t+8*e+j)*64}")


CNT = 163840 - 64
_cnt = [0]


def new_cnt():
    _cnt[0] = (_cnt[0] + 1) % 16
    return CNT + 4 * _cnt[0]


def zero_cnt(k, addr):
    k(f"v_mov_b32 v4, {addr}\nv_mov_b32 v5, 0\nds_write_b32 v4, v5")


def signal(k, base, idx_sreg, nw=1, cnt=None):
    L = k.label("sig")
    k(f"""s_lshl_b32 s34, {idx_sreg}, 8
    s_add_u32 s34, s34, {hex(base)}
    v_mov_b32 v4, 1
    v_mov_b32 v5, 0
    s_mov_b64 exec, 1""")
    if nw > 1:
        k(f"""v_mov_b32 v6, {cnt}
        ds_add_rtn_u32 v7, v6, v4
        s_waitcnt lgkmcnt(0)
        v_readfirstlane_b32 s35, v7
        s_cmp_eq_u32 s35, {nw-1}
        s_cbranch_scc0 {L}""")
    k(f"""buffer_atomic_add v4, v5, s[16:19], s34 offen sc1
    {L}:
    s_mov_b64 exec, -1""")


def wait_flag(k, base, idx_sreg, target, all16=False, sa=52, sb=53):
    L = k.label("poll")
    if all16:
        k(f"""v_and_b32 v4, 15, v1
        v_lshlrev_b32 v4, 8, v4
        s_mov_b32 s{sa}, {hex(base)}""")
    else:
        k(f"""v_mov_b32 v4, 0
        s_lshl_b32 s{sa}, {idx_sreg}, 8
        s_add_u32 s{sa}, s{sa}, {hex(base)}""")
    k(f"""s_mov_b32 s{sb}, 0
    {L}:
    buffer_load_dword v5, v4, s[16:19], s{sa} offen sc1
    s_waitcnt vmcnt(0)
    v_cmp_gt_u32 vcc, {target}, v5
    s_cbranch_vccz {L}_ok
    s_add_u32 s{sb}, s{sb}, 1
    s_cmp_lt_u32 s{sb}, 0x40000
    s_cbranch_scc1 {L}
    {L}_ok:""")


class VQ:
    def __init__(self):
        self.q = []

    def add(self, tag, n=1):
        self.q += [tag] * n

    def cnt(self, tag):
        last = max(i for i, t in enumerate(self.q) if t == tag)
        return len(self.q) - 1 - last


def gemm_loader(k, nseg, wstride, R, stage_bytes, extra, relaxed, tag, wt, pre=None, mid=None):
    if pre:
        pre()
    k(f"""
    s_sub_u32 s30, s3, 4
    v_lshrrev_b32 v6, 3, v1
    v_and_b32 v7, 7, v1
    s_lshl_b32 s31, s30, 4
    s_mov_b32 s33, {wstride}
    v_lshrrev_b32 v5, 1, v6
    v_and_b32 v5, 1, v5
    v_lshlrev_b32 v5, 2, v5
    v_xor_b32 v5, v5, v7
    v_lshlrev_b32 v5, 4, v5
    s_lshl_b32 s32, s5, 7
    v_add_u32 v5, s32, v5
    """)
    for jj in range(2):
        k(f"""
        v_add_u32 v4, {8*jj}, v6
        v_add_u32 v4, s31, v4
        v_mul_lo_u32 v4, v4, s33
        v_add_u32 v{12+jj}, v4, v5
        """)
        if jj:
            k(f"v_subrev_u32 v{12+jj}, {1024*jj}, v{12+jj}")
    for p in range(1, nseg):
        for jj in range(2):
            k(f"v_add_u32 v{12+2*p+jj}, {2048*p}, v{12+jj}")
    k("v_lshlrev_b32 v8, 4, v1")
    if extra:
        k(f"""s_lshl_b32 s31, s30, 10
        v_add_u32 v20, s31, v8""")
    k(f"""
    s_lshl_b32 s34, s30, 12
    s_lshl_b32 s35, s30, 11
    s_add_u32 s35, s35, 16384
    s_lshl_b32 s36, s30, 10
    s_add_u32 s36, s36, {16384 + nseg*8192}
    s_lshl_b32 s37, s4, 2
    s_add_u32 s37, s37, s30
    s_lshl_b32 s37, s37, 16
    s_mov_b32 s38, 0
    s_mov_b32 s39, 0
    """)
    q = VQ()

    def issueW(st):
        slot = (st % R) * stage_bytes
        for p in range(nseg):
            k(f"s_add_u32 m0, s35, {slot + p*8192}")
            for jj in range(2):
                k(f"buffer_load_dwordx4 v{12+2*p+jj}, s[12:15], s38 offen offset:{1024*jj} lds")
                q.add(("s", st))
        if extra:
            k(f"s_add_u32 m0, s36, {slot}")
            k(f"buffer_load_dwordx4 v20, s[20:23], s39 offen lds")
            q.add(("s", st))
            k("s_add_u32 s39, s39, 4096")
        k(f"s_add_u32 s38, s38, {64*wstride}")

    def issueX(st):
        slot = (st % R) * stage_bytes
        k(f"s_add_u32 m0, s34, {slot}")
        for jj in range(4):
            k(f"buffer_load_dwordx4 v8, s[8:11], s37 offen offset:{1024*jj} sc1 lds")
            q.add(("s", st))
        k("s_add_u32 s37, s37, 4096")

    if wt:
        P_ = R if R * stage_bytes <= CNT else R - 1
        for st in range(P_):
            issueW(st)
        wait_flag(k, *wt)
        stamp(k, tag + "_flag")
        xi, wi = 0, P_
    else:
        xi, wi = 0, 0
    D_ = R - 2 if relaxed else R - 1

    def upto(lim):
        nonlocal xi, wi
        while xi <= lim or wi <= lim:
            if xi <= lim:
                issueX(xi)
                xi += 1
            if wi <= lim and wi < xi:
                issueW(wi)
                wi += 1

    upto(1)
    for i in range(NST):
        k(f"s_waitcnt vmcnt({q.cnt(('s', i))})")
        k("s_barrier")
        upto(min(NST - 1, max(R - 1, i + D_)))
        if mid and i in mid:
            mid[i](q)


def gemm_compute(k, R, stage_bytes, A, bases, xoffs, waddr_list, frag_base, mfmas, nfragregs, ab, tag, nbuf=4,
                 per=None, filler=None, fper=3, after_b0=None):
    loopname = k.label(tag + "_loop")

    def upd():
        for i, b in enumerate(bases):
            k(f"v_add_u32 v{ab+i}, s32, v{b}")

    def reads(t):
        out = []
        fr = frag_base + (t % nbuf) * nfragregs
        for i, xo in enumerate(xoffs):
            out.append(f"ds_read_b128 {vr(fr+4*i,4)}, v{ab} offset:{xo + 1024*t}")
        fr += 4 * len(xoffs)
        for i, (wi, wo, rb) in enumerate(waddr_list):
            for rd in range(2):
                out.append(f"ds_read_b64_tr_b16 {vr(fr+4*i+2*rd,2)}, v{ab+wi} offset:{wo + (16*t+8*rd)*rb}")
        return out

    n = len(reads(0))

    def stage(last, fill):
        for t in range(4):
            nxt = t + A
            rd = []
            if nxt < 4:
                rd = reads(nxt)
            elif not last:
                rd = reads(nxt - 4)
            young = sum(1 for u in range(t + 1, t + A) if (u < 4 or not last)) * n
            k(f"s_waitcnt lgkmcnt({min(young,15)})")
            if nxt == 4 and not last:
                k(f"""s_add_u32 s32, s32, {stage_bytes}
                s_cmp_eq_u32 s32, {R*stage_bytes}
                s_cselect_b32 s32, 0, s32
                s_barrier""")
                upd()
            if nxt == 4 + A - 1 + 1 - A + (A - 1) and False:
                pass
            ms = mfmas(frag_base + (t % nbuf) * nfragregs)
            if last and t == 3:
                k("s_barrier")
            p = per or max(1, -(-len(rd) // max(1, len(ms) - 1)))
            for i, m in enumerate(ms):
                k(m)
                rr = rd[i * p:(i + 1) * p]
                for r_ in rr:
                    k(r_)
                for _ in range(max(0, fper + 2 - len(rr))):
                    if fill:
                        k(fill.pop(0))
            for r_ in rd[len(ms) * p:]:
                k(r_)
        while fill:
            k(fill.pop(0))

    k(f"s_mov_b32 s32, 0\ns_mov_b32 s33, 0")
    stamp(k, tag + "_b0pre")
    k("s_barrier")
    stamp(k, tag + "_b0")
    upd()
    for t in range(A):
        for r_ in reads(t):
            k(r_)
    if after_b0:
        after_b0()
    k(f"{loopname}:")
    stage(False, [])
    k(f"""s_add_u32 s33, s33, 1
    s_cmp_lt_u32 s33, {NST-1}
    s_cbranch_scc1 {loopname}""")
    stage(True, list(filler or []))
    stamp(k, tag + "_loopend")


def w_tr_base(k, dst, col0, rb, swz):
    k(f"""
    v_and_b32 v4, 15, v1
    v_lshrrev_b32 v5, 2, v4
    v_lshl_add_u32 v5, v3, 2, v5
    v_mul_u32_u24 v5, {rb}, v5
    v_and_b32 v6, 3, v4
    v_lshlrev_b32 v6, 3, v6
    v_bfe_u32 v7, v1, 4, 1
    v_lshl_add_u32 v6, v7, 5, v6
    v_add_u32 v6, {col0}, v6
    """)
    if swz:
        k(f"""v_bfe_u32 v7, v1, 3, 1
        v_lshlrev_b32 v7, 6, v7
        v_xor_b32 v6, v6, v7""")
    k(f"v_add_u32 v{dst}, v5, v6")


def stats_loads(k, dst, w32_sreg, tmpv, st_off, q=None):
    k(f"""v_lshlrev_b32 v{tmpv}, 2, v1
    s_lshl_b32 s54, s4, 14
    s_lshl_b32 s55, {w32_sreg}, 8
    s_add_u32 s54, s54, s55
    s_add_u32 s54, s54, {hex(st_off)}""")
    for c in range(16):
        k(f"buffer_load_dword v{dst+c}, v{tmpv}, s[16:19], s54 offen offset:{1024*(c&3)} sc1")
        if q is not None:
            q.add("stats")
        if c & 3 == 3 and c < 15:
            k("s_add_u32 s54, s54, 4096")


def phase_wo(k, tag, p_w, lin, oi, wt, sig_base, final):
    R, STG = 6, 24576
    LD, END = k.label(tag + "_ld"), k.label(tag + "_end")
    tile_map(k, "4x8")
    srd_off(k, 8, P_WS, WS_O[oi], S * D * 2)
    srd(k, 12, p_w, D * D * 2)
    if final:
        srd(k, 24, P_OUT, S * D * 2)
    k(f"s_cmp_ge_u32 s3, 4\ns_cbranch_scc1 {LD}")
    k(f"""
    s_lshl_b32 s30, s4, 2
    s_add_u32 s30, s30, s3
    s_lshl_b32 s36, s30, 16
    s_lshl_b32 s31, s5, 12
    s_add_u32 s36, s36, s31
    s_add_u32 s37, s36, {hex(WS_X[lin])}
    v_lshlrev_b32 v10, 4, v1
    s_lshl_b32 s31, s3, 12
    v_add_u32 v12, s31, v10
    """)
    w_tr_base(k, 13, "0", 128, True)
    k("v_xor_b32 v14, 64, v13")
    cnt = new_cnt()
    zero_cnt(k, cnt)
    k("s_waitcnt lgkmcnt(0)")
    ACC = 32
    for i in range(32):
        k(f"v_mov_b32 v{ACC+i}, 0")
    RES = 112

    def res_loads():
        for q in range(4):
            k(f"buffer_load_dwordx4 {vr(RES+4*q,4)}, v10, s[16:19], s37 offen offset:{1024*q} sc1")

    def mf(fr):
        return [M32(ACC, fr + 4, fr), M32(ACC + 16, fr + 8, fr)]

    fill = ["s_waitcnt vmcnt(0)"]
    UN = 128
    for i in range(16):
        fill += [f"v_lshlrev_b32 v{UN+2*i}, 16, v{RES+i}", f"v_and_b32 v{UN+2*i+1}, 0xffff0000, v{RES+i}"]
    if final:
        fill += lines(f"""s_lshl_b32 s31, s30, 5
        v_add_u32 v9, s31, v2
        v_lshlrev_b32 v9, 11, v9
        v_lshl_add_u32 v9, v3, 4, v9
        s_lshl_b32 s31, s5, 7
        v_add_u32 v9, s31, v9""")
    else:
        fill += lines(f"""s_add_u32 s37, s36, {hex(WS_X[lin+1])}
        s_mov_b32 s35, {ONES2}
        v_mov_b32 v24, 0
        v_mov_b32 v25, 0
        s_lshl_b32 s38, s4, 14
        s_lshl_b32 s31, s5, 10
        s_add_u32 s38, s38, s31
        s_lshl_b32 s31, s3, 8
        s_add_u32 s38, s38, s31
        s_add_u32 s38, s38, {hex(WS_ST[lin+1])}
        v_lshlrev_b32 v9, 2, v1""")
    gemm_compute(k, R, STG, 2, [12, 13, 14], [0], [(1, 16384, 128), (2, 16384, 128)], 64, mf, 12, 20,
                 tag, per=3, filler=fill, after_b0=res_loads)
    for q in range(4):
        a = RES + 4 * q
        for j in range(4):
            ac = ACC + 8 * q + 2 * j
            k(f"v_pk_add_f32 {vr(ac,2)}, {vr(ac,2)}, {vr(UN+8*q+2*j,2)}")
        for j in range(4):
            ac = ACC + 8 * q + 2 * j
            k(f"v_cvt_pk_bf16_f32 v{a+j}, v{ac}, v{ac+1}")
        if final:
            k(f"v_permlane32_swap_b32 v{a}, v{a+2}\nv_permlane32_swap_b32 v{a+1}, v{a+3}")
            k(f"buffer_store_dwordx4 {vr(a,4)}, v9, s[24:27], 0 offen offset:{32*q}")
        else:
            k(f"buffer_store_dwordx4 {vr(a,4)}, v10, s[16:19], s37 offen offset:{1024*q} sc1")
    if not final:
        for i in range(16):
            k(f"v_dot2_f32_bf16 v24, v{RES+i}, s35, v24\nv_dot2_f32_bf16 v25, v{RES+i}, v{RES+i}, v25")
        k(f"""
        v_permlane32_swap_b32 v24, v25
        v_add_f32 v24, v24, v25
        buffer_store_dword v24, v9, s[16:19], s38 offen sc1
        """)
        stamp(k, tag + "_st")
        k("s_waitcnt vmcnt(0)")
        stamp(k, tag + "_drain")
        signal(k, sig_base, "s4", 4, cnt)
    k(f"s_branch {END}\n{LD}:")
    gemm_loader(k, 1, 2048, R, STG, False, True, tag, wt)
    k(f"s_barrier\n{END}:")


QX_B = 147456
VT_B = 155648


def phase_qkvb(k, tag, rep, lin, wt):
    R, STG = 5, 28672
    LD, END, EX, VV, SG = [k.label(tag + x) for x in ("_ld", "_end", "_ex", "_v", "_sg")]
    tile_map(k, "4x8")
    srd_off(k, 8, P_WS, WS_X[lin], S * D * 2)
    srd(k, 12, P_WQ, D * D * 2)
    k(f"""s_bitcmp1_b32 s5, 0
    s_cselect_b32 s46, s{P_WV}, s{P_WK}
    s_cselect_b32 s47, s{P_WV+1}, s{P_WK+1}""")
    srd(k, 20, 46, D * 32 * 2)
    k(f"s_cmp_ge_u32 s3, 4\ns_cbranch_scc1 {LD}")
    STT, CS = 144, 160
    k(f"""
    v_lshlrev_b32 v10, 4, v2
    s_lshl_b32 s34, s5, 10
    s_add_u32 s34, s34, {hex(WS_CSB)}
    s_and_b32 s35, s5, 1
    s_lshl_b32 s35, s35, 9
    s_add_u32 s35, s35, {hex(WS_CSB + 1024*16)}
    buffer_load_dwordx4 {vr(CS,4)}, v10, s[16:19], s34 offen
    buffer_load_dwordx4 {vr(CS+4,4)}, v10, s[16:19], s34 offen offset:512
    buffer_load_dwordx4 {vr(CS+8,4)}, v10, s[16:19], s35 offen
    v_lshlrev_b32 v10, 4, v1
    s_lshl_b32 s31, s3, 12
    v_add_u32 v12, s31, v10
    """)
    w_tr_base(k, 13, "0", 128, True)
    k("v_xor_b32 v14, 64, v13")
    w_tr_base(k, 15, "0", 64, False)
    ACC = 32
    for i in range(48):
        k(f"v_mov_b32 v{ACC+i}, 0")
    k(f"""s_lshr_b32 s36, s5, 1
    s_and_b32 s36, s36, 3
    s_cmp_eq_u32 s36, s3
    s_cbranch_scc1 {EX}""")

    def mf(fr):
        return [M32(ACC, fr + 4, fr), M32(ACC + 16, fr + 8, fr)]

    def mf3(fr):
        return [M32(ACC + 32, fr + 12, fr)] + mf(fr)

    RSTD, BOP, SC = 172, 176, 174
    fill = ["s_waitcnt vmcnt(0)"] + ln_stats(STT, RSTD, BOP) + [
        f"v_mov_b32 v{RSTD+1}, v{RSTD}", f"v_mul_f32 v{SC}, {f32(LOG2E * DH**-0.5)}, v{RSTD}",
        f"v_mov_b32 v{SC+1}, v{SC}"] + lines(f"""s_lshl_b32 s34, s3, 11
        s_add_u32 s34, s34, {QX_B}
        v_add_u32 v11, s34, v10""")

    def st_l():
        stats_loads(k, STT, "s3", 9, WS_ST[lin])

    def q_epi():
        pk_mul(k, ACC + 16, ACC + 16, SC, 16)
        for i in range(8):
            k(f"v_cvt_pk_bf16_f32 v{88+i}, v{ACC+16+2*i}, v{ACC+16+2*i+1}")
        for t in range(2):
            k(f"ds_write_b128 v11, {vr(88+4*t,4)} offset:{1024*t}")
        pk_mul(k, ACC, ACC, SC, 16)
        for i in range(8):
            k(f"v_cvt_pk_bf16_f32 v{180+i}, v{ACC+2*i}, v{ACC+2*i+1}")

    gemm_compute(k, R, STG, 2, [12, 13, 14], [0], [(1, 16384, 128), (2, 16384, 128)], 80, mf, 12, 20,
                 tag, per=3, filler=list(fill), after_b0=st_l)
    k(M32(ACC + 16, CS + 4, BOP))
    k(M32(ACC, CS, BOP))
    q_epi()
    k(f"s_branch {END}\n{EX}:")
    fill2 = list(fill) + lines(f"""s_lshl_b32 s37, s4, 14
    s_lshl_b32 s35, s3, 12
    s_add_u32 s37, s37, s35
    s_add_u32 s37, s37, {hex(WS_KV[rep])}
    v_mul_u32_u24 v26, 72, v2
    v_lshl_add_u32 v26, v3, 3, v26
    v_add_u32 v26, {VT_B}, v26
    v_and_b32 v24, 15, v1
    v_lshrrev_b32 v25, 2, v24
    v_lshl_add_u32 v25, v3, 2, v25
    v_mul_u32_u24 v25, 72, v25
    v_and_b32 v24, 3, v24
    v_lshl_add_u32 v25, v24, 3, v25
    v_bfe_u32 v24, v1, 4, 1
    v_lshl_add_u32 v25, v24, 5, v25
    v_add_u32 v25, {VT_B}, v25""")
    gemm_compute(k, R, STG, 2, [12, 13, 14, 15], [0],
                 [(1, 16384, 128), (2, 16384, 128), (3, 24576, 64)], 80, mf3, 16, 20, tag, per=3, filler=fill2,
                 after_b0=st_l)
    E = ACC + 32
    k(M32(E, CS + 8, BOP))
    k(M32(ACC + 16, CS + 4, BOP))
    k(M32(ACC, CS, BOP))
    pk_mul(k, E, E, RSTD, 16)
    for i in range(8):
        k(f"v_cvt_pk_bf16_f32 v{96+i}, v{E+2*i}, v{E+2*i+1}")
    k(f"s_bitcmp1_b32 s5, 0\ns_cbranch_scc1 {VV}")
    for t in range(2):
        k(f"buffer_store_dwordx4 {vr(96+4*t,4)}, v10, s[16:19], s37 offen offset:{1024*t} sc1")
    k(f"s_branch {SG}\n{VV}:")
    for i in range(4):
        k(f"ds_write_b64 v26, {vr(96+2*i,2)} offset:{16*i}")
    k("s_waitcnt lgkmcnt(0)")
    for t in range(2):
        for e in range(2):
            k(f"ds_read_b64_tr_b16 {vr(104+4*t+2*e,2)}, v25 offset:{(16*t+8*e)*72}")
    k("s_waitcnt lgkmcnt(0)")
    for t in range(2):
        k(f"buffer_store_dwordx4 {vr(104+4*t,4)}, v10, s[16:19], s37 offen offset:{2048+1024*t} sc1")
    k(f"{SG}:")
    q_epi()
    k("s_waitcnt vmcnt(0)")
    stamp(k, tag + "_drain")
    signal(k, flag_off(rep, F_KVB), "s4")
    k(f"s_branch {END}\n{LD}:")
    gemm_loader(k, 1, 2048, R, STG, True, True, tag, wt)
    k(f"s_barrier\n{END}:")


def phase_attn(k, tag, rep, oi):
    name = k.label(tag)
    Q, NEG, SA, SB, P, O, L, ONE, KF, VF = 8, 16, 32, 48, 64, 80, 96, 100, 104, 120
    k(f"""
    s_lshr_b32 s36, s3, 2
    s_and_b32 s37, s3, 3
    s_lshl_b32 s38, s5, 1
    s_add_u32 s38, s38, s36
    s_lshl_b32 s39, s4, 2
    s_add_u32 s39, s39, s37
    v_lshlrev_b32 v128, 4, v1
    """)
    cnt = new_cnt()
    zero_cnt(k, cnt)
    k(f"""
    s_waitcnt lgkmcnt(0)
    s_cmp_lg_u32 s3, 7
    s_cbranch_scc1 {name}_np
    """)
    wait_flag(k, flag_off(rep, F_KVB), None, 16, True)
    k(f"""{name}_np:
    s_barrier
    s_cmp_ge_u32 s3, 4
    s_cbranch_scc1 {name}_qld
    """)
    for i in range(8):
        k(f"v_mov_b32 v{Q+i}, v{180+i}")
    k(f"""s_branch {name}_go
    {name}_qld:
    s_lshl_b32 s34, s37, 11
    s_add_u32 s34, s34, {QX_B}
    v_add_u32 v5, s34, v128
    ds_read_b128 {vr(Q,4)}, v5
    ds_read_b128 {vr(Q+4,4)}, v5 offset:1024
    {name}_go:
    v_mov_b32 v4, v128
    s_lshl_b32 s30, s3, 12
    s_add_u32 s31, s30, {hex(WS_KV[rep])}
    """)
    stamp(k, tag + "_e2")

    def dma():
        for q in range(4):
            k(f"buffer_load_dwordx4 v4, s[16:19], s31 offen offset:{1024*q} sc1 lds")
        k("s_add_u32 s31, s31, 32768")

    for c in range(3):
        k(f"s_add_u32 m0, s30, {32768*c}")
        dma()
    ones_pattern(k, ONE, 5, 6)
    for i in range(16):
        k(f"v_mov_b32 v{O+i}, 0")
    for i in range(4):
        k(f"v_mov_b32 v{L+i}, 0")
    for i in range(8):
        k(f"v_mov_b32 v{P+i}, 0")
    k("s_waitcnt vmcnt(8)\ns_barrier")
    stamp(k, tag + "_b0")
    K1, K2, V1, V2 = KF, KF + 4, VF, VF + 4
    k(f"""ds_read_b128 {vr(K1,4)}, v4
    ds_read_b128 {vr(K2,4)}, v4 offset:1024
    s_waitcnt lgkmcnt(0)
    """)
    k(M32(SA, K1, Q, "0"))
    k(M32(SA, K2, Q + 4))
    k(f"v_max3_f32 v5, v{SA}, v{SA+1}, v{SA+2}")
    for i in range(3, 15, 2):
        k(f"v_max3_f32 v5, v5, v{SA+i}, v{SA+i+1}")
    k(f"""v_max_f32 v5, v5, v{SA+15}
    v_mov_b32 v6, v5
    v_permlane32_swap_b32 v5, v6
    v_max_f32 v5, v5, v6
    """)
    for i in range(16):
        k(f"v_sub_f32 v{NEG+i}, 0, v5")
    for i in range(16):
        k(f"v_sub_f32 v{SA+i}, v{SA+i}, v5")
    k(f"""ds_read_b128 {vr(V2,4)}, v4 offset:3072
    ds_read_b128 {vr(K1,4)}, v4 offset:4096
    ds_read_b128 {vr(K2,4)}, v4 offset:5120
    ds_read_b128 {vr(V1,4)}, v4 offset:2048
    s_mov_b32 s32, 0
    v_mov_b32 v5, v4
    v_add_u32 v6, 32768, v4
    s_mov_b32 s33, 0x18000
    {name}_loop:""")

    def ex(cur, a, b):
        for i in range(a, b):
            k(f"v_exp_f32 v{cur+i}, v{cur+i}")

    def cv(cur, a, b):
        for i in range(a, b):
            k(f"v_cvt_pk_bf16_f32 v{P+i}, v{cur+2*i}, v{cur+2*i+1}")

    def rd(dst, tile, part):
        bb, oo = (5, tile * 4096) if tile < 8 else (6, (tile - 8) * 4096)
        k(f"ds_read_b128 {vr(dst,4)}, v{bb} offset:{oo+1024*part}")

    for j in range(8):
        cur, nxt = (SA, SB) if j % 2 == 0 else (SB, SA)
        k("s_waitcnt lgkmcnt(3)")
        k(M32(O, V2, P + 4))
        rd(V2, j, 3)
        ex(cur, 0, 4)
        k(M16(L, ONE, P + 4))
        ex(cur, 4, 6)
        if j == 6:
            k(f"""s_waitcnt vmcnt(4)
            s_barrier
            s_cmp_ge_u32 s32, 5
            s_cbranch_scc1 {name}_nodma
            s_add_u32 m0, s30, s33""")
            dma()
            k(f"""s_branch {name}_dmadone
            {name}_nodma:
            s_waitcnt vmcnt(0)
            s_barrier
            {name}_dmadone:""")
        k("s_waitcnt lgkmcnt(3)")
        k(M32(nxt, K1, Q, vr(NEG, 16)))
        rd(K1, j + 2, 0)
        ex(cur, 6, 8)
        cv(cur, 0, 4)
        k("s_waitcnt lgkmcnt(3)")
        k(M32(nxt, K2, Q + 4))
        rd(K2, j + 2, 1)
        ex(cur, 8, 12)
        k("s_waitcnt lgkmcnt(3)")
        k(M32(O, V1, P))
        rd(V1, j + 1, 2)
        ex(cur, 12, 16)
        k(M16(L, ONE, P))
        cv(cur, 4, 8)
        if j == 7:
            k(f"""
            v_mov_b32 v5, v6
            s_add_u32 s33, s33, 0x8000
            s_and_b32 s33, s33, 0x1ffff
            s_add_u32 s34, s33, 0x10000
            s_and_b32 s34, s34, 0x1ffff
            v_add_u32 v6, s34, v4
            s_add_u32 s32, s32, 1
            s_cmp_lt_u32 s32, 8
            s_cbranch_scc1 {name}_loop
            s_waitcnt lgkmcnt(0)
            s_barrier
            """)
    k(M32(O, V2, P + 4))
    k(M16(L, ONE, P + 4))
    stamp(k, tag + "_loopend")
    k(f"v_max3_f32 v5, abs(v{O}), abs(v{O+1}), abs(v{O+2})")
    for i in range(3, 15, 2):
        k(f"v_max3_f32 v5, v5, abs(v{O+i}), abs(v{O+i+1})")
    k(f"""v_max3_f32 v5, v5, abs(v{O+15}), v{L}
    v_mov_b32 v6, 0
    """)
    for i in range(16):
        k(f"v_fma_f32 v6, v{O+i}, 0, v6")
    k(f"""v_fma_f32 v6, v{L}, 0, v6
    v_add_f32 v5, v5, v6
    s_mov_b32 s34, {f32(2.0**100)}
    v_cmp_nlt_f32 vcc, v5, s34
    s_cbranch_vccz {name}_fin
    """)
    for i in range(16):
        k(f"v_mov_b32 v{O+i}, 0")
    for i in range(4):
        k(f"v_mov_b32 v{L+i}, 0")
    k(f"""v_mov_b32 v7, 0xff800000
    s_mov_b32 s31, {hex(WS_KV[rep])}
    s_mov_b32 s32, 0
    {name}_sloop:
    buffer_load_dwordx4 {vr(KF,4)}, v4, s[16:19], s31 offen sc1
    buffer_load_dwordx4 {vr(KF+4,4)}, v4, s[16:19], s31 offen offset:1024 sc1
    buffer_load_dwordx4 {vr(VF,4)}, v4, s[16:19], s31 offen offset:2048 sc1
    buffer_load_dwordx4 {vr(VF+4,4)}, v4, s[16:19], s31 offen offset:3072 sc1
    s_waitcnt vmcnt(0)
    """)
    k(M32(SA, KF, Q, "0"))
    k(M32(SA, KF + 4, Q + 4))
    k(f"v_max3_f32 v5, v{SA}, v{SA+1}, v{SA+2}")
    for i in range(3, 15, 2):
        k(f"v_max3_f32 v5, v5, v{SA+i}, v{SA+i+1}")
    k(f"""v_max_f32 v5, v5, v{SA+15}
    v_mov_b32 v6, v5
    v_permlane32_swap_b32 v5, v6
    v_max3_f32 v5, v5, v6, v7
    v_sub_f32 v6, v7, v5
    v_exp_f32 v6, v6
    v_mov_b32 v7, v5
    """)
    for i in range(16):
        k(f"v_sub_f32 v{SA+i}, v{SA+i}, v5")
    for i in range(16):
        k(f"v_exp_f32 v{SA+i}, v{SA+i}")
    for i in range(16):
        k(f"v_mul_f32 v{O+i}, v{O+i}, v6")
    for i in range(4):
        k(f"v_mul_f32 v{L+i}, v{L+i}, v6")
    for i in range(8):
        k(f"v_cvt_pk_bf16_f32 v{P+i}, v{SA+2*i}, v{SA+2*i+1}")
    k(M32(O, VF, P))
    k(M16(L, ONE, P))
    k(M32(O, VF + 4, P + 4))
    k(M16(L, ONE, P + 4))
    k(f"""s_add_u32 s31, s31, 4096
    s_add_u32 s32, s32, 1
    s_cmp_lt_u32 s32, 64
    s_cbranch_scc1 {name}_sloop
    {name}_fin:
    v_rcp_f32 v6, v{L}
    s_lshl_b32 s34, s39, 16
    s_lshl_b32 s35, s38, 11
    s_add_u32 s34, s34, s35
    s_add_u32 s34, s34, {hex(WS_O[oi])}
    v_mov_b32 v7, v6
    """)
    pk_mul(k, O, O, 6, 16)
    for i in range(8):
        k(f"v_cvt_pk_bf16_f32 v{P+i}, v{O+2*i}, v{O+2*i+1}")
    for t in range(2):
        k(f"buffer_store_dwordx4 {vr(P+4*t,4)}, v4, s[16:19], s34 offen offset:{1024*t} sc1")
    stamp(k, tag + "_st")
    k("s_waitcnt vmcnt(0)")
    stamp(k, tag + "_drain")
    signal(k, flag_off(rep, F_OB), "s4", 8, cnt)


def phase_qkva(k, tag, rep, lin, oi, wt):
    R, STG = 4, 40960
    LD, J0, J1, J2, NP = [k.label(tag + x) for x in ("_ld", "_j0", "_j1", "_j2", "_np")]
    tile_map(k, "8x4")
    srd_off(k, 8, P_WS, WS_X[lin], S * D * 2)
    srd(k, 12, P_WQKV, D * 3 * D * 2)
    srd(k, 20, P_WPHI, H * DH * DH * 2)
    k(f"""
    s_bfe_u32 s48, s3, 0x10001
    s_and_b32 s49, s3, 1
    s_lshl_b32 s50, s5, 1
    s_add_u32 s50, s50, s49
    s_lshl_b32 s51, s48, 1
    s_lshr_b32 s31, s3, 2
    s_add_u32 s51, s51, s31
    """)
    STT, CS, WP = 176, 208, 220
    QXL = 51200
    KVL = 69632
    cnt_col, cnt_o = new_cnt(), new_cnt()
    RSTD = [168, 170]
    LC = 172
    BOP = [240, 244]
    addr_setup = lines(f"""
    s_lshl_b32 s35, s51, 5
    v_add_u32 v238, s35, v2
    v_mul_u32_u24 v238, 200, v238
    v_lshl_add_u32 v238, v3, 3, v238
    s_mul_i32 s35, s49, 25600
    v_add_u32 v238, s35, v238
    s_and_b32 s35, s3, 3
    s_lshl_b32 s35, s35, 12
    s_add_u32 s35, s35, {QXL}
    v_lshlrev_b32 v239, 4, v1
    v_add_u32 v239, s35, v239
    """)
    wp_pack = [f"v_lshl_or_b32 v{WP+i}, v{WP+2*i+1}, 16, v{WP+2*i}" for i in range(8)]
    k(f"s_cmp_ge_u32 s3, 4\ns_cbranch_scc1 {LD}")
    k(f"""
    v_lshlrev_b32 v10, 4, v2
    s_lshl_b32 s34, s50, 9
    s_add_u32 s34, s34, {hex(WS_CSA)}
    buffer_load_dwordx4 {vr(CS,4)}, v10, s[16:19], s34 offen
    s_add_u32 s34, s34, 16384
    buffer_load_dwordx4 {vr(CS+4,4)}, v10, s[16:19], s34 offen
    s_add_u32 s34, s34, 16384
    buffer_load_dwordx4 {vr(CS+8,4)}, v10, s[16:19], s34 offen
    """)
    wphi_loads(k, WP, "s50")
    k(f"""v_lshlrev_b32 v12, 4, v1
    s_lshl_b32 s35, s48, 13
    v_add_u32 v12, s35, v12
    s_lshl_b32 s35, s49, 6""")
    w_tr_base(k, 13, "s35", 128, True)
    ACC = 32
    for i in range(96):
        k(f"v_mov_b32 v{ACC+i}, 0")

    def acc(p, b):
        return ACC + 32 * p + 16 * b

    def mf(fr):
        return [M32(acc(p, b), fr + 8 + 4 * p, fr + 4 * b) for p in range(3) for b in range(2)]

    def st_l():
        stats_loads(k, STT, "s51", 10, WS_ST[lin])
        k("s_add_u32 s31, s51, 1")
        stats_loads(k, STT + 16, "s31", 10, WS_ST[lin])

    fill = ["s_waitcnt vmcnt(0)"]
    for b in range(2):
        fill += ln_stats(STT + 16 * b, RSTD[b], BOP[b])
        fill += [f"v_mov_b32 v{RSTD[b]+1}, v{RSTD[b]}"]
    fill += [f"v_mul_f32 v{LC}, {f32(LOG2E)}, v{RSTD[0]}", f"v_mov_b32 v{LC+1}, v{LC}"]
    fill += wp_pack + addr_setup
    gemm_compute(k, R, STG, 1, [12, 13], [0, 4096],
                 [(1, 16384, 128), (1, 16384 + 8192, 128), (1, 16384 + 16384, 128)], 128, mf, 20, 20, tag,
                 nbuf=2, per=2, filler=fill, after_b0=st_l)
    for p, b in ((1, 1), (0, 1), (1, 0), (2, 0), (2, 1), (0, 0)):
        k(M32(acc(p, b), CS + 4 * p, BOP[b]))
    k(f"""v_lshlrev_b32 v4, 3, v1
    v_mov_b32 v6, 0
    v_mov_b32 v7, 0
    ds_write_b64 v4, v[6:7] offset:{KVL+8192-65536+65536 if KVL+8192 < 65536 else 0}""" if False else "")
    k(f"""v_lshlrev_b32 v4, 3, v1
    v_add_u32 v4, {KVL+8192}, v4
    v_mov_b32 v6, 0
    v_mov_b32 v7, 0
    ds_write_b64 v4, v[6:7]""")
    zero_cnt(k, cnt_col)
    zero_cnt(k, cnt_o)
    for p, d_ in ((1, 128), (0, 136)):
        for i in range(8):
            k(f"v_cvt_pk_bf16_f32 v{d_+i}, v{acc(p,1)+2*i}, v{acc(p,1)+2*i+1}")
        for t in range(2):
            k(f"ds_write_b128 v239, {vr(d_+4*t,4)} offset:{(d_-128)*256+1024*t}")
    for i in range(8):
        k(f"v_cvt_pk_bf16_f32 v{144+i}, v{acc(1,0)+2*i}, v{acc(1,0)+2*i+1}")
    k("s_waitcnt lgkmcnt(0)\ns_barrier")
    stamp(k, tag + "_ba")
    k(M32(acc(1, 0), WP, 144, "0"))
    k(M32(acc(1, 0), WP + 4, 148))
    for b in range(2):
        pk_mul(k, acc(2, b), acc(2, b), RSTD[b], 16)
        for i in range(8):
            k(f"v_cvt_pk_bf16_f32 v{128+8*b+i}, v{acc(2,b)+2*i}, v{acc(2,b)+2*i+1}")
        for i in range(4):
            k(f"ds_write_b64 v238, {vr(128+8*b+2*i,2)} offset:{6400*b+128+16*i}")
    for i in range(8):
        k(f"v_cvt_pk_bf16_f32 v{160+i}, v{acc(0,0)+2*i}, v{acc(0,0)+2*i+1}")
    KRAW = acc(1, 0)
    k(f"s_branch {J0}\n{LD}:")

    def mid_stats(q):
        stats_loads(k, STT, "s51", 10, WS_ST[lin], q)

    def mid_ln(q):
        k(f"s_waitcnt vmcnt({q.cnt('stats')})")
        for l_ in ln_stats(STT, RSTD[0], None) + wp_pack:
            k(l_)
        k(f"v_mul_f32 v{LC}, {f32(LOG2E)}, v{RSTD[0]}\nv_mov_b32 v{LC+1}, v{LC}")

    gemm_loader(k, 3, 6144, R, STG, False, False, tag, wt, pre=lambda: wphi_loads(k, WP, "s50"),
                mid={1: mid_stats, 6: mid_ln})
    for l_ in addr_setup:
        k(l_)
    k("s_barrier\ns_barrier")
    k(f"""ds_read_b128 {vr(144,4)}, v239
    ds_read_b128 {vr(148,4)}, v239 offset:1024
    ds_read_b128 {vr(160,4)}, v239 offset:2048
    ds_read_b128 {vr(164,4)}, v239 offset:3072
    s_waitcnt lgkmcnt(2)""")
    k(M32(KRAW, WP, 144, "0"))
    k(M32(KRAW, WP + 4, 148))
    k(f"{J0}:")
    feat_map(k, KRAW, LC, 176, 144)
    for s_ in range(2):
        for i in range(4):
            k(f"ds_write_b64 v238, {vr(144+8*s_+2*i,2)} offset:{64*s_+16*i}")
    QRAW = 96
    k("s_waitcnt lgkmcnt(8)")
    k(M32(QRAW, WP, 160, "0"))
    k(M32(QRAW, WP + 4, 164))
    k(f"""
    v_and_b32 v4, 15, v1
    v_lshrrev_b32 v5, 2, v4
    v_lshl_add_u32 v5, v5, 3, v3
    v_mul_u32_u24 v5, 200, v5
    v_and_b32 v6, 3, v4
    v_lshl_add_u32 v5, v6, 3, v5
    v_bfe_u32 v7, v1, 4, 1
    v_lshl_add_u32 v5, v7, 5, v5
    s_mul_i32 s35, s49, 25600
    v_add_u32 v14, s35, v5
    s_lshl_b32 s35, s48, 6
    v_add_u32 v15, s35, v14
    """)
    ones_pattern(k, 24, 28, 29)
    k(f"""
    s_lshl_b32 s36, s50, 16
    s_lshl_b32 s35, s4, 12
    s_add_u32 s36, s36, s35
    s_lshl_b32 s35, s48, 11
    s_add_u32 s36, s36, s35
    s_add_u32 s36, s36, {hex(WS_KVP[rep])}
    s_lshl_b32 s39, s50, 12
    s_lshl_b32 s35, s4, 8
    s_add_u32 s39, s39, s35
    s_lshl_b32 s35, s48, 7
    s_add_u32 s39, s39, s35
    s_add_u32 s39, s39, {hex(WS_ZP[rep])}
    v_lshlrev_b32 v11, 2, v2
    v_lshlrev_b32 v10, 4, v1
    s_waitcnt lgkmcnt(0)
    s_barrier
    """)
    stamp(k, tag + "_bb")
    PHQ = 144
    k(f"s_cmp_ge_u32 s3, 4\ns_cbranch_scc1 {J1}")
    KVA, ZA = 32, 48
    FR = [176 + 8 * i for i in range(4)]

    def trr(s_):
        blk, t = s_ >> 1, s_ & 1
        f = FR[s_ % 4]
        for rd in range(2):
            off = (32 * blk + 4 * t + 2 * rd) * 200
            k(f"ds_read_b64_tr_b16 {vr(f+2*rd,2)}, v15 offset:{off}")
            k(f"ds_read_b64_tr_b16 {vr(f+4+2*rd,2)}, v14 offset:{off+128}")

    for s_ in range(3):
        trr(s_)
    for s_ in range(8):
        rem = min(7, s_ + 2) - s_
        k(f"s_waitcnt lgkmcnt({4*rem})")
        f = FR[s_ % 4]
        k(M32(KVA, f, f + 4, "0" if s_ == 0 else None))
        k(M16(ZA, 24, f, "0" if s_ == 0 else None))
        if s_ + 3 < 8:
            trr(s_ + 3)
    k(f"buffer_store_dword v{ZA}, v11, s[16:19], s39 offen sc1")
    for i in range(8):
        k(f"v_cvt_pk_bf16_f32 v{56+i}, v{KVA+2*i}, v{KVA+2*i+1}")
    for q in range(2):
        k(f"buffer_store_dwordx4 {vr(56+4*q,4)}, v10, s[16:19], s36 offen offset:{1024*q} sc1")
    stamp(k, tag + "_kvst")
    feat_map(k, QRAW, LC, 176, PHQ)
    k("s_waitcnt vmcnt(0)")
    stamp(k, tag + "_kvdrain")
    signal(k, flag_off(rep, F_COL), "s5", 4, cnt_col)
    k(f"s_branch {NP}\n{J1}:")
    feat_map(k, QRAW, LC, 176, PHQ)
    k(f"s_cmp_lg_u32 s3, 7\ns_cbranch_scc1 {NP}")
    wait_flag(k, flag_off(rep, F_COL), "s5", 16)
    k(f"{NP}:")
    k(f"""
    s_lshr_b32 s36, s3, 2
    s_and_b32 s37, s3, 3
    s_lshl_b32 s38, s5, 1
    s_add_u32 s38, s38, s36
    v_lshlrev_b32 v11, 2, v1
    s_lshl_b32 s34, s38, 16
    s_lshl_b32 s35, s37, 10
    s_add_u32 s34, s34, s35
    s_add_u32 s34, s34, {hex(WS_KVP[rep])}
    s_lshl_b32 s39, s38, 12
    s_add_u32 s39, s39, s35
    s_add_u32 s39, s39, {hex(WS_ZP[rep])}
    s_mov_b32 s52, 0x3f80
    s_mov_b32 s53, 0x3f800000
    s_barrier
    """)
    stamp(k, tag + "_e2a")
    for q in range(4):
        k(f"buffer_load_dword v{24+q}, v11, s[16:19], s39 offen offset:{256*q} sc1")
    for rt in range(16):
        k(f"buffer_load_dwordx4 {vr(48+4*rt,4)}, v10, s[16:19], s34 offen sc1")
        k("s_add_u32 s34, s34, 4096")
    for i in range(8):
        k(f"v_mov_b32 v{32+i}, 0")
    k(f"""s_lshl_b32 s35, s36, 8
    s_add_u32 s35, s35, {KVL+8192}
    v_add_u32 v13, s35, v11
    s_lshl_b32 s35, s3, 10
    s_add_u32 s35, s35, {KVL}
    v_add_u32 v12, s35, v10
    s_waitcnt vmcnt(16)
    v_add_f32 v24, v24, v25
    v_add_f32 v26, v26, v27
    v_add_f32 v24, v24, v26
    ds_add_f32 v13, v24""")
    for rt in range(16):
        k(f"s_waitcnt vmcnt({15-rt})")
        for i in range(4):
            k(f"v_dot2_f32_bf16 v{32+2*i}, v{48+4*rt+i}, s52, v{32+2*i}")
            k(f"v_dot2_f32_bf16 v{33+2*i}, v{48+4*rt+i}, s53, v{33+2*i}")
    for i in range(4):
        k(f"v_cvt_pk_bf16_f32 v{40+i}, v{32+2*i}, v{33+2*i}")
    KV, ZF, ZT = 32, 48, 64
    k(f"""
    ds_write_b128 v12, v[40:43]
    s_lshl_b32 s35, s49, 12
    s_add_u32 s35, s35, {KVL}
    v_add_u32 v12, s35, v10
    s_lshl_b32 s35, s49, 8
    s_add_u32 s35, s35, {KVL+8192}
    v_lshlrev_b32 v13, 4, v3
    v_add_u32 v13, s35, v13
    s_lshl_b32 s36, s4, 2
    s_add_u32 s36, s36, s51
    s_lshl_b32 s36, s36, 16
    s_lshl_b32 s35, s50, 11
    s_add_u32 s36, s36, s35
    s_add_u32 s36, s36, {hex(WS_O[oi])}
    s_waitcnt lgkmcnt(0)
    s_barrier
    """)
    stamp(k, tag + "_bc")
    for s_ in range(4):
        k(f"ds_read_b128 {vr(KV+4*s_,4)}, v12 offset:{1024*s_}")
    for se in range(8):
        k(f"ds_read_b128 {vr(ZT+4*se,4)}, v13 offset:{32*se}")
    NUM, DEN = 176, 96
    k("s_waitcnt lgkmcnt(8)")
    for s_ in range(4):
        k(M32(NUM, KV + 4 * s_, PHQ + 4 * s_, "0" if s_ == 0 else None))
    k("s_waitcnt lgkmcnt(0)\ns_barrier")
    for i in range(16):
        k(f"v_cvt_pk_bf16_f32 v{ZF+i}, v{ZT+2*i}, v{ZT+2*i+1}")
    for s_ in range(4):
        k(M32(DEN, ZF + 4 * s_, PHQ + 4 * s_, "0" if s_ == 0 else None))
    k(f"v_add_f32 v{DEN}, {f32(1e-6)}, v{DEN}\nv_rcp_f32 v{DEN}, v{DEN}\nv_mov_b32 v{DEN+1}, v{DEN}")
    pk_mul(k, NUM, NUM, DEN, 16)
    for i in range(8):
        k(f"v_cvt_pk_bf16_f32 v{112+i}, v{NUM+2*i}, v{NUM+2*i+1}")
    for t in range(2):
        k(f"buffer_store_dwordx4 {vr(112+4*t,4)}, v10, s[16:19], s36 offen offset:{1024*t} sc1")
    stamp(k, tag + "_st")
    k("s_waitcnt vmcnt(0)")
    stamp(k, tag + "_drain")
    signal(k, flag_off(rep, F_OA), "s4", 8, cnt_o)


def gen_mega():
    k = Kern("mega_kernel")
    k(f"""
    s_cmp_ge_u32 s2, 256
    s_cbranch_scc1 mega_exit
    s_load_dwordx16 s[64:79], s[0:1], 0
    s_load_dwordx8 s[80:87], s[0:1], 64
    v_lshrrev_b32 v1, 6, v0
    s_nop 0
    v_readfirstlane_b32 s3, v1
    v_and_b32 v1, 63, v0
    v_and_b32 v2, 31, v1
    v_lshrrev_b32 v3, 5, v1
    v_cmp_eq_u32 s[40:41], 1, v3
    s_waitcnt lgkmcnt(0)
    """)
    if PROF:
        k("v_mov_b32 v255, 0\nv_mov_b32 v254, 0\ns_memrealtime s[88:89]\ns_waitcnt lgkmcnt(0)\nv_writelane_b32 v255, s88, 0")
        stamp(k, "start")
    srd(k, 16, P_WS, WS_END)
    for rep in range(2):
        lin = 2 * rep
        phase_qkva(k, f"qa{rep}", rep, lin, 2 * rep, (flag_off(0, F_XB), "s4", 16) if rep else None)
        phase_wo(k, f"wa{rep}", P_WOA, lin, 2 * rep, (flag_off(rep, F_OA), "s4", 16), flag_off(rep, F_XA), False)
        phase_qkvb(k, f"qb{rep}", rep, lin + 1, (flag_off(rep, F_XA), "s4", 16))
        phase_attn(k, f"at{rep}", rep, 2 * rep + 1)
        phase_wo(k, f"wb{rep}", P_WOB, lin + 1, 2 * rep + 1, (flag_off(rep, F_OB), "s4", 16), flag_off(rep, F_XB),
                 rep == 1)
    stamp(k, "end")
    if PROF:
        k(f"""s_memrealtime s[88:89]
        s_waitcnt lgkmcnt(0)
        v_writelane_b32 v255, s88, 1
        s_add_u32 s84, s{P_WS}, {hex(WS_PROF)}
        s_addc_u32 s85, s{P_WS+1}, 0
        s_and_b32 s85, s85, 0xffff
        s_mov_b32 s86, 0x100000
        s_mov_b32 s87, 0x20000
        s_lshl_b32 s88, s2, 3
        s_add_u32 s88, s88, s3
        s_lshl_b32 s88, s88, 9
        v_lshlrev_b32 v0, 2, v1
        buffer_store_dword v255, v0, s[84:87], s88 offen
        buffer_store_dword v254, v0, s[84:87], s88 offen offset:256""")
    k("mega_exit:\ns_endpgm")
    return k, (256, 512, 163840)


def main():
    ks = [gen_prep(), gen_mega()]
    hdr = open("interleave_layers__linear_kernel_hedgehog__grouped_kv_mqa__prompt.s.ref").read()
    hdr = "".join(l + "\n" for l in hdr.split("\n") if l.startswith(";") and "@launch" not in l and "Override" not in l and "grid=ceil" not in l)
    out = hdr
    for kern, (g, b, l) in ks:
        out += f"; @launch kernel={kern.name} grid=({g},1,1) block=({b},1,1) lds={l}\n"
    if PROF:
        out += "; STAMPS " + " ".join(f"{n}={i}" for n, i in STAMPS.items()) + "\n"
    out += '.amdgcn_target "amdgcn-amd-amdhsa--gfx950"\n.text\n'
    for kern, geo in ks:
        out += kern.text()
    out += '.section .rodata,"a"\n'
    for kern, geo in ks:
        out += kern.desc()
    sys.stdout.write(out)


if __name__ == "__main__":
    main()
```

```python
import sys, struct, math
from asmlib import Kern, vr, sr

S, D, H, DH = 2048, 1024, 32, 32
KA_X, KA_WQKV, KA_WPHI, KA_WOA, KA_BX, KA_WQ, KA_WK, KA_WV, KA_WOB, KA_OUT, KA_DBG, KA_WS = [8 * i for i in range(12)]
P_X, P_WQKV, P_WPHI, P_WOA, P_BX, P_WQ, P_WK, P_WV, P_WOB, P_OUT, P_DBG, P_WS = [64 + 2 * i for i in range(12)]
MB = 1 << 20
WS_X = [None, 0 * MB, 4 * MB, 8 * MB]
WS_O = [12 * MB, 16 * MB, 20 * MB, 24 * MB]
WS_KVP = [28 * MB, 32 * MB]
WS_KV = [36 * MB, 36 * MB + 0x40000]
WS_ZP = [37 * MB, 37 * MB + 0x20000]
WS_ST = [38 * MB + i * 0x40000 for i in range(4)]
WS_CSA = 39 * MB
WS_CSB = 39 * MB + 0x10000
WS_FL = 40 * MB
WS_END = 48 * MB
WS_PROF = 64 * MB
LOG2E = 1.4426950408889634
ONES2 = "0x3f803f80"
PROF = "prof" in sys.argv
X_NOLOAD = "noload" in sys.argv
X_NOMFMA = "nomfma" in sys.argv
NST = 16
F_COL, F_OA, F_XA, F_KVB, F_OB, F_XB = range(6)


def flag_off(rep, grp):
    return WS_FL + (rep * 6 + grp) * 4096


def f32(x):
    return "0x%08x" % struct.unpack("<I", struct.pack("<f", x))[0]


def srd(k, d, ptr, nbytes):
    k(f"""s_mov_b32 s{d}, s{ptr}
    s_and_b32 s{d+1}, s{ptr+1}, 0xffff
    s_mov_b32 s{d+2}, {hex(nbytes)}
    s_mov_b32 s{d+3}, 0x20000""")


def srd_off(k, d, ptr, off, nbytes):
    k(f"""s_add_u32 s{d}, s{ptr}, {hex(off)}
    s_addc_u32 s{d+1}, s{ptr+1}, 0
    s_and_b32 s{d+1}, s{d+1}, 0xffff
    s_mov_b32 s{d+2}, {hex(nbytes)}
    s_mov_b32 s{d+3}, 0x20000""")


STAMPS = {}


def stamp(k, name):
    if not PROF:
        return
    idx = STAMPS.setdefault(name, len(STAMPS) + 2)
    assert idx < 128
    ins = "s_memtime" if "cyc" in sys.argv else "s_memrealtime"
    k(f"{ins} s[88:89]\ns_waitcnt lgkmcnt(0)\nv_writelane_b32 v{255 - idx // 64}, s88, {idx % 64}")


def M32(d, a, b, c=None):
    c = vr(d, 16) if c is None else c
    return f"v_mfma_f32_32x32x16_bf16 {vr(d,16)}, {vr(a,4)}, {vr(b,4)}, {c}"


def M16(d, a, b, c=None):
    c = vr(d, 4) if c is None else c
    return f"v_mfma_f32_16x16x32_bf16 {vr(d,4)}, {vr(a,4)}, {vr(b,4)}, {c}"


def gen_prep():
    k = Kern("prep_kernel")
    NWG = 258 + 64
    k(f"""
    s_cmp_ge_u32 s2, {NWG}
    s_cbranch_scc1 prep_end
    s_load_dwordx4 s[4:7], s[0:1], {KA_X}
    s_load_dwordx4 s[8:11], s[0:1], {KA_WQ}
    s_load_dwordx2 s[12:13], s[0:1], {KA_WV}
    s_load_dwordx2 s[14:15], s[0:1], {KA_WS}
    s_load_dwordx2 s[36:37], s[0:1], {KA_WOA}
    s_load_dwordx2 s[38:39], s[0:1], {KA_WOB}
    v_lshrrev_b32 v1, 6, v0
    v_and_b32 v2, 63, v0
    v_readfirstlane_b32 s3, v1
    s_waitcnt lgkmcnt(0)
    """)
    srd(k, 16, 14, WS_END)
    k("""s_cmp_ge_u32 s2, 258
    s_cbranch_scc1 prep_touch
    s_cmp_ge_u32 s2, 128
    s_cbranch_scc1 prep_cols""")
    srd(k, 20, 4, S * D * 2)
    k(f"""
    s_lshl_b32 s24, s2, 4
    s_lshl_b32 s25, s3, 2
    s_add_u32 s24, s24, s25
    s_lshl_b32 s25, s24, 11
    v_lshlrev_b32 v3, 4, v2
    s_mov_b32 s26, {ONES2}
    """)
    for i in range(4):
        k(f"buffer_load_dwordx4 {vr(8+8*i,4)}, v3, s[20:23], s25 offen offset:0")
        k(f"buffer_load_dwordx4 {vr(12+8*i,4)}, v3, s[20:23], s25 offen offset:1024")
        k(f"s_add_u32 s25, s25, 2048")
    k(f"""
    s_cmp_ge_u32 s2, 12
    s_cbranch_scc1 prep_nz
    v_mov_b32 v44, 0
    v_mov_b32 v45, 0
    v_mov_b32 v46, 0
    v_mov_b32 v47, 0
    v_lshlrev_b32 v4, 4, v0
    s_lshl_b32 s25, s2, 12
    s_add_u32 s25, s25, {hex(WS_FL)}
    buffer_store_dwordx4 v[44:47], v4, s[16:19], s25 offen
    prep_nz:
    v_and_b32 v4, 1, v2
    v_lshlrev_b32 v4, 7, v4
    v_lshrrev_b32 v5, 2, v2
    v_lshl_add_u32 v4, v5, 10, v4
    s_lshr_b32 s25, s24, 7
    s_lshl_b32 s25, s25, 14
    s_bfe_u32 s27, s24, 0x20005
    s_lshl_b32 s27, s27, 8
    s_add_u32 s25, s25, s27
    s_and_b32 s27, s24, 31
    s_lshl_b32 s28, s27, 2
    s_add_u32 s25, s25, s28
    s_add_u32 s25, s25, {hex(WS_ST[0])}
    v_lshrrev_b32 v6, 1, v2
    v_lshlrev_b32 v6, 10, v6
    v_and_b32 v5, 1, v2
    v_lshl_add_u32 v6, v5, 9, v6
    s_lshr_b32 s29, s24, 5
    s_lshl_b32 s29, s29, 16
    s_lshl_b32 s28, s27, 4
    s_add_u32 s29, s29, s28
    s_add_u32 s29, s29, {hex(WS_X[0])}
    s_add_u32 s30, s29, 32768
    v_cmp_eq_u32 vcc, 1, v5
    s_waitcnt vmcnt(0)
    """)
    for i in range(4):
        k("v_mov_b32 v40, 0\nv_mov_b32 v41, 0")
        for j in range(8):
            k(f"v_dot2_f32_bf16 v40, v{8+8*i+j}, s26, v40")
            k(f"v_dot2_f32_bf16 v41, v{8+8*i+j}, v{8+8*i+j}, v41")
        k("""v_cndmask_b32 v42, v40, v41, vcc
        v_cndmask_b32 v43, v41, v40, vcc
        v_add_f32_dpp v42, v43, v42 quad_perm:[1,0,3,2] row_mask:0xf bank_mask:0xf
        v_add_f32_dpp v48, v42, v42 quad_perm:[2,3,0,1] row_mask:0xf bank_mask:0xf
        """)
        k(f"buffer_store_dword v48, v4, s[16:19], s25 offen offset:{4*i}")
        for hf in range(2):
            a_ = 8 + 8 * i + 4 * hf
            o_ = 52 + 8 * i + 4 * hf
            k(f"""v_cndmask_b32 v50, v{a_+2}, v{a_}, vcc
            v_cndmask_b32 v51, v{a_+3}, v{a_+1}, vcc
            v_mov_b32_dpp v50, v50 quad_perm:[1,0,3,2] row_mask:0xf bank_mask:0xf
            v_mov_b32_dpp v51, v51 quad_perm:[1,0,3,2] row_mask:0xf bank_mask:0xf
            v_cndmask_b32 v{o_}, v{a_}, v50, vcc
            v_cndmask_b32 v{o_+1}, v{a_+1}, v51, vcc
            v_cndmask_b32 v{o_+2}, v50, v{a_+2}, vcc
            v_cndmask_b32 v{o_+3}, v51, v{a_+3}, vcc
            buffer_store_dwordx4 {vr(o_,4)}, v6, s[16:19], s{29+hf} offen offset:{16*i}""")
    k("s_endpgm")
    k(f"""prep_touch:
    s_sub_u32 s24, s2, 258
    s_cmp_ge_u32 s24, 32
    s_cselect_b32 s32, s38, s36
    s_cselect_b32 s33, s39, s37
    s_and_b32 s24, s24, 31
    s_lshl_b32 s24, s24, 16
    v_lshlrev_b32 v3, 4, v0
    """)
    srd(k, 20, 32, D * D * 2)
    for i in range(16):
        k(f"buffer_load_dwordx4 {vr(16+4*i,4)}, v3, s[20:23], s24 offen")
        k("s_add_u32 s24, s24, 4096")
    k("s_waitcnt vmcnt(0)\ns_endpgm")
    k("prep_cols:")
    k(f"""
    s_sub_u32 s24, s2, 128
    s_and_b32 s25, s24, 3
    s_lshr_b32 s26, s24, 2
    s_cmp_ge_u32 s2, 256
    s_cbranch_scc1 prep_small
    s_cmp_ge_u32 s2, 224
    s_cbranch_scc1 prep_wq
    """)
    srd(k, 20, 6, D * 3 * D * 2)
    k(f"""s_mov_b32 s27, 6144
    s_lshl_b32 s28, s26, 11
    s_add_u32 s28, s28, {hex(WS_CSA)}
    s_branch prep_big
    prep_wq:""")
    srd(k, 20, 8, D * D * 2)
    k(f"""s_mov_b32 s27, 2048
    s_sub_u32 s26, s26, 24
    s_lshl_b32 s28, s26, 11
    s_add_u32 s28, s28, {hex(WS_CSB)}
    prep_big:
    s_lshl_b32 s29, s25, 8
    s_lshl_b32 s30, s3, 6
    s_add_u32 s29, s29, s30
    s_mul_i32 s29, s29, s27
    s_lshl_b32 s30, s26, 8
    s_add_u32 s29, s29, s30
    s_lshl_b32 s30, s25, 2
    s_add_u32 s28, s28, s30
    v_lshlrev_b32 v6, 4, v0
    s_mov_b32 s31, 0
    s_branch prep_sum
    prep_small:
    s_cmp_eq_u32 s2, 257
    s_cselect_b32 s32, s12, s10
    s_cselect_b32 s33, s13, s11
    s_cselect_b32 s28, 512, 0
    s_add_u32 s28, s28, {hex(WS_CSB + 1024*16)}
    """)
    srd(k, 20, 32, D * 32 * 2)
    k(f"""s_mov_b32 s27, 256
    s_lshl_b32 s29, s3, 14
    v_and_b32 v6, 31, v0
    v_lshlrev_b32 v6, 4, v6
    v_lshrrev_b32 v7, 5, v0
    v_lshl_add_u32 v6, v7, 2, v6
    s_mov_b32 s31, 1
    prep_sum:
    v_lshrrev_b32 v3, 4, v2
    v_mul_lo_u32 v3, v3, s27
    v_and_b32 v4, 15, v2
    v_lshl_add_u32 v3, v4, 4, v3
    s_lshl_b32 s30, s27, 2
    """)
    for i in range(16):
        k(f"buffer_load_dwordx4 {vr(16+4*i,4)}, v3, s[20:23], s29 offen")
        k("s_add_u32 s29, s29, s30")
    k("s_mov_b32 s34, 0x3f80\ns_mov_b32 s35, 0x3f800000")
    for j in range(8):
        k(f"v_mov_b32 v{8+j}, 0")
    for i in range(16):
        k(f"s_waitcnt vmcnt({15-i})")
        for j in range(4):
            k(f"v_dot2_f32_bf16 v{8+2*j}, v{16+4*i+j}, s34, v{8+2*j}")
            k(f"v_dot2_f32_bf16 v{9+2*j}, v{16+4*i+j}, s35, v{9+2*j}")
    k(f"""
    v_lshlrev_b32 v3, 5, v0
    ds_write_b128 v3, v[8:11]
    ds_write_b128 v3, v[12:15] offset:16
    s_waitcnt lgkmcnt(0)
    s_barrier
    s_cmp_ge_u32 s3, 2
    s_cbranch_scc1 prep_end
    s_cmp_eq_u32 s31, 1
    s_cbranch_scc1 prep_red_small
    v_lshlrev_b32 v3, 2, v0
    """)
    for g in range(16):
        k(f"ds_read_b32 v{16+g}, v3 offset:{g*512}")
    k(f"""s_branch prep_red
    prep_red_small:
    v_and_b32 v3, 31, v0
    v_lshlrev_b32 v3, 2, v3
    v_lshrrev_b32 v4, 5, v0
    v_lshl_add_u32 v3, v4, 11, v3
    """)
    for g in range(16):
        k(f"ds_read_b32 v{16+g}, v3 offset:{(g>>2)*512 + (g&3)*128}")
    k("prep_red:\ns_waitcnt lgkmcnt(0)")
    for st in (8, 4, 2, 1):
        for g in range(st):
            k(f"v_add_f32 v{16+g}, v{16+g}, v{16+g+st}")
    k("""
    v_cvt_pk_bf16_f32 v17, v16, v16
    v_lshlrev_b32 v18, 16, v17
    v_sub_f32 v18, v16, v18
    v_cvt_pk_bf16_f32 v17, v16, v18
    buffer_store_dword v17, v6, s[16:19], s28 offen
    prep_end:
    s_endpgm
    """)
    return k, (NWG, 256, 8192)


def tile_map(k, mode):
    if mode == "4x8":
        k("""s_and_b32 s6, s2, 7
        s_lshr_b32 s7, s2, 3
        s_lshr_b32 s4, s6, 1
        s_lshl_b32 s4, s4, 2
        s_lshr_b32 s5, s7, 3
        s_add_u32 s4, s4, s5
        s_and_b32 s5, s6, 1
        s_lshl_b32 s5, s5, 3
        s_and_b32 s7, s7, 7
        s_add_u32 s5, s5, s7""")
    elif mode == "8x4":
        k("""s_and_b32 s6, s2, 7
        s_lshr_b32 s7, s2, 3
        s_lshr_b32 s4, s6, 2
        s_lshl_b32 s4, s4, 3
        s_lshr_b32 s5, s7, 2
        s_add_u32 s4, s4, s5
        s_and_b32 s5, s6, 3
        s_lshl_b32 s5, s5, 2
        s_and_b32 s7, s7, 3
        s_add_u32 s5, s5, s7""")


def lines(txt):
    return [l.strip() for l in txt.split("\n") if l.strip()]


def ln_stats(tmp, out_rstd, out_bop, single=False):
    t = tmp
    o = []
    for g in range(0, 8, 2):
        o.append(f"v_pk_add_f32 {vr(t+g,2)}, {vr(t+g,2)}, {vr(t+g+8,2)}")
    for g in range(0, 4, 2):
        o.append(f"v_pk_add_f32 {vr(t+g,2)}, {vr(t+g,2)}, {vr(t+g+4,2)}")
    o.append(f"v_pk_add_f32 {vr(t,2)}, {vr(t,2)}, {vr(t+2,2)}")
    o.append(f"v_add_f32 v{t}, v{t}, v{t+1}")
    if single:
        o = []
    o += lines(f"""
    v_mul_f32 v{t}, {f32(1.0/D)}, v{t}
    v_mov_b32 v{t+1}, v{t}
    v_permlane32_swap_b32 v{t}, v{t+1}
    v_fma_f32 v{t+1}, -v{t}, v{t}, v{t+1}
    v_max_f32 v{t+1}, 0, v{t+1}
    v_add_f32 v{t+1}, {f32(1e-5)}, v{t+1}
    v_rsq_f32 v{out_rstd}, v{t+1}
    """)
    if out_bop is not None:
        o += lines(f"""
        v_sub_f32 v{t}, 0, v{t}
        v_cvt_pk_bf16_f32 v{t+2}, v{t}, v{t}
        v_lshlrev_b32 v{t+3}, 16, v{t+2}
        v_sub_f32 v{t+3}, v{t}, v{t+3}
        v_cvt_pk_bf16_f32 v{t+3}, v{t+3}, v{t+3}
        v_cndmask_b32 v{out_bop}, v{t+2}, v{t+3}, s[40:41]
        v_mov_b32 v{out_bop+1}, v{out_bop}
        v_mov_b32 v{out_bop+2}, v{out_bop}
        v_mov_b32 v{out_bop+3}, v{out_bop}
        """)
    return o


def pk_mul(k, dst, src, sc, n):
    for i in range(0, n, 2):
        k(f"v_pk_mul_f32 {vr(dst+i,2)}, {vr(src+i,2)}, {vr(sc,2)}")


def feat_map(k, src, cvec, tmp, outp):
    t = tmp
    a, b, c, d = t + 32, t + 34, t + 36, t + 38
    k(f"v_max3_f32 v{a}, v{src}, v{src+1}, v{src+2}\nv_min3_f32 v{b}, v{src}, v{src+1}, v{src+2}")
    for i in range(3, 15, 2):
        k(f"v_max3_f32 v{a}, v{a}, v{src+i}, v{src+i+1}\nv_min3_f32 v{b}, v{b}, v{src+i}, v{src+i+1}")
    k(f"""v_max_f32 v{a}, v{a}, v{src+15}
    v_min_f32 v{b}, v{b}, v{src+15}
    v_mov_b32 v{c}, v{a}
    v_mov_b32 v{d}, v{b}
    v_permlane32_swap_b32 v{a}, v{c}
    v_permlane32_swap_b32 v{b}, v{d}
    v_max_f32 v{a}, v{a}, v{c}
    v_min_f32 v{b}, v{b}, v{d}
    v_mul_f32 v{a}, v{a}, v{cvec}
    v_mul_f32 v{b}, v{b}, v{cvec}
    v_mov_b32 v{a+1}, v{a}
    v_mov_b32 v{b+1}, v{b}
    """)
    for i in range(0, 16, 2):
        k(f"v_pk_fma_f32 {vr(t+i,2)}, {vr(src+i,2)}, {vr(cvec,2)}, {vr(a,2)} neg_lo:[0,0,1] neg_hi:[0,0,1]")
        k(f"v_pk_fma_f32 {vr(t+16+i,2)}, {vr(src+i,2)}, {vr(cvec,2)}, {vr(b,2)} neg_lo:[1,0,0] neg_hi:[1,0,0]")
    for i in range(32):
        k(f"v_exp_f32 v{t+i}, v{t+i}")
    k(f"v_pk_add_f32 {vr(a,2)}, {vr(t,2)}, {vr(t+2,2)}\nv_pk_add_f32 {vr(b,2)}, {vr(t+16,2)}, {vr(t+18,2)}")
    for i in range(4, 16, 2):
        k(f"v_pk_add_f32 {vr(a,2)}, {vr(a,2)}, {vr(t+i,2)}\nv_pk_add_f32 {vr(b,2)}, {vr(b,2)}, {vr(t+16+i,2)}")
    k(f"""v_add_f32 v{a}, v{a}, v{a+1}
    v_add_f32 v{b}, v{b}, v{b+1}
    v_mov_b32 v{c}, v{a}
    v_mov_b32 v{d}, v{b}
    v_permlane32_swap_b32 v{a}, v{c}
    v_permlane32_swap_b32 v{b}, v{d}
    v_add_f32 v{a}, v{a}, v{c}
    v_add_f32 v{b}, v{b}, v{d}
    v_rcp_f32 v{a}, v{a}
    v_rcp_f32 v{b}, v{b}
    v_mov_b32 v{a+1}, v{a}
    v_mov_b32 v{b+1}, v{b}
    """)
    pk_mul(k, t, t, a, 16)
    pk_mul(k, t + 16, t + 16, b, 16)
    for i in range(16):
        k(f"v_cvt_pk_bf16_f32 v{outp+i}, v{t+2*i}, v{t+2*i+1}")


def ones_pattern(k, dst, t0, t1):
    k(f"""v_bfe_u32 v{t0}, v1, 2, 1
    v_bfe_u32 v{t1}, v1, 4, 1
    v_cmp_eq_u32 vcc, v{t0}, v{t1}
    v_mov_b32 v{t0}, {ONES2}
    v_cndmask_b32 v{dst}, 0, v{t0}, vcc
    v_mov_b32 v{dst+1}, v{dst}
    v_mov_b32 v{dst+2}, v{dst}
    v_mov_b32 v{dst+3}, v{dst}""")


def wphi_loads(k, WP, headsreg):
    k(f"""v_lshlrev_b32 v10, 1, v2
    v_lshl_add_u32 v10, v3, 8, v10
    s_lshl_b32 s34, {headsreg}, 11""")
    for t in range(2):
        for e in range(2):
            for j in range(4):
                k(f"buffer_load_ushort v{WP+8*t+4*e+j}, v10, s[20:23], s34 offen offset:{(16*t+8*e+j)*64}")


CNT = 163840 - 64
_cnt = [0]


def new_cnt():
    _cnt[0] = (_cnt[0] + 1) % 16
    return CNT + 4 * _cnt[0]


def zero_cnt(k, addr):
    k(f"v_mov_b32 v4, {addr}\nv_mov_b32 v5, 0\nds_write_b32 v4, v5")


def signal(k, base, idx_sreg, nw=1, cnt=None):
    L = k.label("sig")
    k(f"""s_lshl_b32 s34, {idx_sreg}, 8
    s_add_u32 s34, s34, {hex(base)}
    v_mov_b32 v4, 1
    v_mov_b32 v5, 0
    s_mov_b64 exec, 1""")
    if nw > 1:
        k(f"""v_mov_b32 v6, {cnt}
        ds_add_rtn_u32 v7, v6, v4
        s_waitcnt lgkmcnt(0)
        v_readfirstlane_b32 s35, v7
        s_cmp_eq_u32 s35, {nw-1}
        s_cbranch_scc0 {L}""")
    k(f"""buffer_atomic_add v4, v5, s[16:19], s34 offen sc1
    {L}:
    s_mov_b64 exec, -1""")


def wait_flag(k, base, idx_sreg, target, all16=False, sa=52, sb=53):
    L = k.label("poll")
    if all16:
        k(f"""v_and_b32 v4, 15, v1
        v_lshlrev_b32 v4, 8, v4
        s_mov_b32 s{sa}, {hex(base)}""")
    else:
        k(f"""v_mov_b32 v4, 0
        s_lshl_b32 s{sa}, {idx_sreg}, 8
        s_add_u32 s{sa}, s{sa}, {hex(base)}""")
    k(f"""s_mov_b32 s{sb}, 0
    {L}:
    buffer_load_dword v5, v4, s[16:19], s{sa} offen sc1
    s_waitcnt vmcnt(0)
    v_cmp_gt_u32 vcc, {target}, v5
    s_cbranch_vccz {L}_ok
    s_add_u32 s{sb}, s{sb}, 1
    s_cmp_lt_u32 s{sb}, 0x40000
    s_cbranch_scc1 {L}
    {L}_ok:""")


class VQ:
    def __init__(self):
        self.q = []

    def add(self, tag, n=1):
        self.q += [tag] * n

    def cnt(self, tag):
        last = max(i for i, t in enumerate(self.q) if t == tag)
        return len(self.q) - 1 - last


def gemm_loader(k, nseg, wstride, R, stage_bytes, extra, relaxed, tag, wt, pre=None, mid=None, npre=None,
                preflag=None, first=1, lims=None, rm=False):
    if pre:
        pre()
    k(f"""
    s_sub_u32 s30, s3, 4
    v_lshrrev_b32 v6, 3, v1
    v_and_b32 v7, 7, v1
    s_lshl_b32 s31, s30, 4
    s_mov_b32 s33, {wstride}
    v_lshrrev_b32 v5, 1, v6
    v_and_b32 v5, 1, v5
    v_lshlrev_b32 v5, 2, v5
    v_xor_b32 v5, v5, v7
    v_lshlrev_b32 v5, 4, v5
    s_lshl_b32 s32, s5, 7
    v_add_u32 v5, s32, v5
    """)
    for jj in range(2):
        k(f"""
        v_add_u32 v4, {8*jj}, v6
        v_add_u32 v4, s31, v4
        v_mul_lo_u32 v4, v4, s33
        v_add_u32 v{12+jj}, v4, v5
        """)
        if jj:
            k(f"v_subrev_u32 v{12+jj}, {1024*jj}, v{12+jj}")
    for p in range(1, nseg):
        for jj in range(2):
            k(f"v_add_u32 v{12+2*p+jj}, {2048*p}, v{12+jj}")
    k("v_lshlrev_b32 v8, 4, v1")
    if extra:
        k(f"""s_lshl_b32 s31, s30, 10
        v_add_u32 v20, s31, v8""")
    k(f"""
    s_lshl_b32 s34, s30, 12
    s_lshl_b32 s35, s30, 11
    s_add_u32 s35, s35, 16384
    s_lshl_b32 s36, s30, 10
    s_add_u32 s36, s36, {16384 + nseg*8192}
    s_lshl_b32 s37, s4, 2
    s_add_u32 s37, s37, s30
    s_lshl_b32 s37, s37, 16
    s_mov_b32 s38, 0
    s_mov_b32 s39, 0
    """)
    if rm:
        k(f"""s_lshl_b32 s31, s4, 7
        s_lshl_b32 s32, s30, 5
        s_add_u32 s31, s31, s32
        s_mov_b32 s37, 0""")
        for jj in range(4):
            k(f"""
            v_add_u32 v4, {8*jj}, v6
            v_lshrrev_b32 v5, 1, v4
            v_and_b32 v5, 7, v5
            v_xor_b32 v5, v5, v7
            v_add_u32 v4, s31, v4
            v_lshlrev_b32 v4, 11, v4
            v_lshl_add_u32 v{20+jj}, v5, 4, v4
            """)
            if jj:
                k(f"v_subrev_u32 v{20+jj}, {1024*jj}, v{20+jj}")
    q = VQ()

    def issueW(st):
        slot = (st % R) * stage_bytes
        for p in range(nseg):
            k(f"s_add_u32 m0, s35, {slot + p*8192}")
            for jj in range(2):
                if not (X_NOLOAD and st >= R):
                    k(f"buffer_load_dwordx4 v{12+2*p+jj}, s[12:15], s38 offen offset:{1024*jj} lds")
                q.add(("s", st))
        if extra:
            k(f"s_add_u32 m0, s36, {slot}")
            k(f"buffer_load_dwordx4 v20, s[20:23], s39 offen lds")
            q.add(("s", st))
            k("s_add_u32 s39, s39, 4096")
        k(f"s_add_u32 s38, s38, {64*wstride}")

    def issueX(st):
        slot = (st % R) * stage_bytes
        k(f"s_add_u32 m0, s34, {slot}")
        for jj in range(4):
            if X_NOLOAD and st >= R:
                pass
            elif rm:
                k(f"buffer_load_dwordx4 v{20+jj}, s[8:11], s37 offen offset:{1024*jj} lds")
            else:
                k(f"buffer_load_dwordx4 v8, s[8:11], s37 offen offset:{1024*jj} sc1 lds")
            q.add(("s", st))
        k(f"s_add_u32 s37, s37, {128 if rm else 4096}")

    if wt:
        P_ = R if R * stage_bytes <= CNT else R - 1
        if npre is not None:
            P_ = npre
        for st in range(P_):
            issueW(st)
        if preflag:
            preflag(q)
        NPL = k.label("np")
        k(f"s_cmp_lg_u32 s3, 4\ns_cbranch_scc1 {NPL}")
        wait_flag(k, *wt)
        k(f"{NPL}:\ns_waitcnt vmcnt(0)\ns_barrier")
        stamp(k, tag + "_flag")
        xi, wi = 0, P_
    else:
        xi, wi = 0, 0
    D_ = R - 2 if relaxed else R - 1

    def upto(lim):
        nonlocal xi, wi
        while xi <= lim or wi <= lim:
            if xi <= lim:
                issueX(xi)
                xi += 1
            if wi <= lim and wi < xi:
                issueW(wi)
                wi += 1

    upto(first)
    for i in range(NST):
        k(f"s_waitcnt vmcnt({q.cnt(('s', i))})")
        k("s_barrier")
        lim = min(NST - 1, max(R - 1, i + D_))
        if lims and i in lims:
            lim = lims[i]
        upto(lim)
        if mid and i in mid:
            mid[i](q)


def gemm_compute(k, R, stage_bytes, A, bases, xoffs, waddr_list, frag_base, mfmas, nfragregs, ab, tag, nbuf=4,
                 per=None, filler=None, fper=3, after_b0=None, e2=True, after_e2=None, rm=False, late=None, pre_m=0, at_iter=None):
    loopname = k.label(tag + "_loop")

    def upd():
        for i, b in enumerate(bases):
            k(f"v_add_u32 v{ab+i}, s32, v{b}")

    def reads(t):
        out = []
        fr = frag_base + (t % nbuf) * nfragregs
        for i, xo in enumerate(xoffs):
            if rm:
                out.append(f"ds_read_b128 {vr(fr+4*i,4)}, v{ab+t} offset:{xo}")
            else:
                out.append(f"ds_read_b128 {vr(fr+4*i,4)}, v{ab} offset:{xo + 1024*t}")
        fr += 4 * len(xoffs)
        for i, (wi, wo, rb) in enumerate(waddr_list):
            for rd in range(2):
                if rm:
                    out.append(f"ds_read_b64_tr_b16 {vr(fr+4*i+2*rd,2)}, v{ab+wi+3} offset:{wo + (16*t+4*rd)*rb}")
                else:
                    out.append(f"ds_read_b64_tr_b16 {vr(fr+4*i+2*rd,2)}, v{ab+wi} offset:{wo + (16*t+8*rd)*rb}")
        return out

    n = len(reads(0))

    def stage(last, fill):
        for t in range(4):
            nxt = t + A
            rd = []
            if nxt < 4:
                rd = reads(nxt)
            elif not last:
                rd = reads(nxt - 4)
            young = sum(1 for u in range(t + 1, t + A) if (u < 4 or not last)) * n
            k(f"s_waitcnt lgkmcnt({min(young,15)})")
            ms = mfmas(frag_base + (t % nbuf) * nfragregs, t)
            if X_NOMFMA:
                ms, rd = ms[:1], []
            p = per or max(1, -(-len(rd) // max(1, len(ms) - 1)))
            if nxt == 4 and not last:
                k(f"""s_add_u32 s32, s32, {stage_bytes}
                s_cmp_eq_u32 s32, {R*stage_bytes}
                s_cselect_b32 s32, 0, s32""")
                for m in ms[:pre_m]:
                    k(m)
                ms = ms[pre_m:]
                upd()
                k("s_barrier")
                if pre_m:
                    p = -(-len(rd) // max(1, len(ms) - 1 if len(ms) > 1 else 1))
                    for r_ in rd[:p]:
                        k(r_)
                    rd = rd[p:]
            if last and t == 3:
                k(ms[0])
                ms = ms[1:]
                k("s_barrier")
            for i, m in enumerate(ms):
                k(m)
                rr = rd[i * p:(i + 1) * p]
                for r_ in rr:
                    k(r_)
                for _ in range(max(0, fper + 2 - len(rr))):
                    if fill:
                        k(fill.pop(0))
            for r_ in rd[len(ms) * p:]:
                k(r_)
        while fill:
            k(fill.pop(0))

    k(f"s_mov_b32 s32, 0\ns_mov_b32 s33, 0")
    stamp(k, tag + "_b0pre")
    if e2:
        k("s_barrier")
    if after_e2:
        after_e2()
    k("s_barrier")
    stamp(k, tag + "_b0")
    upd()
    for t in range(A):
        for r_ in reads(t):
            k(r_)
    if after_b0:
        after_b0()
    nloop = min(late) if late else NST - 1
    k(f"{loopname}:")
    stage(False, [])
    if at_iter:
        SKP = k.label("skip")
        k(f"s_cmp_eq_u32 s33, {at_iter[0]}\ns_cbranch_scc0 {SKP}")
        at_iter[1]()
        k(f"{SKP}:")
    k(f"""s_add_u32 s33, s33, 1
    s_cmp_lt_u32 s33, {nloop}
    s_cbranch_scc1 {loopname}""")
    for st in range(nloop, NST - 1):
        stage(False, list(late.get(st, [])))
    stage(True, list(filler or []))
    stamp(k, tag + "_loopend")


def x_addr(k, dst, rowsreg):
    k(f"""
    v_add_u32 v4, {rowsreg}, v2
    v_bfe_u32 v5, v4, 1, 3
    v_lshlrev_b32 v4, 7, v4
    """)
    for t in range(4):
        k(f"""v_add_u32 v6, {2*t}, v3
        v_xor_b32 v6, v6, v5
        v_lshl_add_u32 v{dst+t}, v6, 4, v4""")


def hilo(src, dst, tmp):
    return lines(f"""v_cvt_pk_bf16_f32 v{tmp}, v{src}, v{src}
    v_lshlrev_b32 v{tmp}, 16, v{tmp}
    v_sub_f32 v{tmp}, v{src}, v{tmp}
    v_cvt_pk_bf16_f32 v{dst}, v{src}, v{tmp}""")


def cs_build(dst, src):
    return [f"v_mov_b32 v{dst}, v{src}"] + [f"v_mov_b32 v{dst+i}, 0" for i in (1, 2, 3)]


class Cap:
    def __init__(self):
        self.l = []

    def __call__(self, t):
        self.l += lines(t)


def w_tr_base(k, dst, col0, rb, swz, hs=2):
    k(f"""
    v_and_b32 v4, 15, v1
    v_lshrrev_b32 v5, 2, v4
    v_lshl_add_u32 v5, v3, {hs}, v5
    v_mul_u32_u24 v5, {rb}, v5
    v_and_b32 v6, 3, v4
    v_lshlrev_b32 v6, 3, v6
    v_bfe_u32 v7, v1, 4, 1
    v_lshl_add_u32 v6, v7, 5, v6
    v_add_u32 v6, {col0}, v6
    """)
    if swz:
        k(f"""v_bfe_u32 v7, v1, 3, 1
        v_lshlrev_b32 v7, 6, v7
        v_xor_b32 v6, v6, v7""")
    k(f"v_add_u32 v{dst}, v5, v6")


def stats_loads(k, dst, w32_sreg, tmpv, st_off, q=None):
    if st_off == WS_ST[0]:
        k(f"""v_lshlrev_b32 v{tmpv}, 2, v1
        s_lshl_b32 s54, s4, 10
        s_lshl_b32 s55, {w32_sreg}, 8
        s_add_u32 s54, s54, s55
        s_add_u32 s54, s54, {hex(st_off)}
        buffer_load_dword v{dst}, v{tmpv}, s[16:19], s54 offen sc1""")
        if q is not None:
            q.add("stats")
        return
    k(f"""v_lshlrev_b32 v{tmpv}, 2, v1
    s_lshl_b32 s54, s4, 14
    s_lshl_b32 s55, {w32_sreg}, 8
    s_add_u32 s54, s54, s55
    s_add_u32 s54, s54, {hex(st_off)}""")
    for c in range(16):
        k(f"buffer_load_dword v{dst+c}, v{tmpv}, s[16:19], s54 offen offset:{1024*(c&3)} sc1")
        if q is not None:
            q.add("stats")
        if c & 3 == 3 and c < 15:
            k("s_add_u32 s54, s54, 4096")


def phase_wo(k, tag, p_w, lin, oi, wt, sig_base, final):
    R, STG = 6, 24576
    LD, END = k.label(tag + "_ld"), k.label(tag + "_end")
    tile_map(k, "4x8")
    srd_off(k, 8, P_WS, WS_O[oi], S * D * 2)
    srd(k, 12, p_w, D * D * 2)
    if final:
        srd(k, 24, P_OUT, S * D * 2)
    if lin == 0:
        srd(k, 24, P_X, S * D * 2)
    k(f"s_cmp_ge_u32 s3, 4\ns_cbranch_scc1 {LD}")
    k(f"""
    s_lshl_b32 s30, s4, 2
    s_add_u32 s30, s30, s3
    s_lshl_b32 s36, s30, 16
    s_lshl_b32 s31, s5, 12
    s_add_u32 s36, s36, s31
    s_add_u32 s37, s36, {hex(WS_X[lin] or 0)}
    v_lshlrev_b32 v10, 4, v1
    s_lshl_b32 s31, s3, 12
    v_add_u32 v12, s31, v10
    """)
    w_tr_base(k, 13, "0", 128, True)
    k("v_xor_b32 v14, 64, v13")
    cnt = new_cnt()
    zero_cnt(k, cnt)
    k("s_waitcnt lgkmcnt(0)")
    ACC = 32
    for i in range(32):
        k(f"v_mov_b32 v{ACC+i}, 0")
    RES = 112

    rm_addr = lines(f"""s_lshl_b32 s31, s30, 5
        v_add_u32 v9, s31, v2
        v_lshlrev_b32 v9, 11, v9
        v_lshl_add_u32 v9, v3, 4, v9
        s_lshl_b32 s31, s5, 7
        v_add_u32 v9, s31, v9""")

    def res_loads():
        if lin == 0:
            for l_ in rm_addr:
                k(l_)
        for q in range(4):
            if lin == 0:
                k(f"buffer_load_dwordx4 {vr(RES+4*q,4)}, v9, s[24:27], 0 offen offset:{32*q}")
            else:
                k(f"buffer_load_dwordx4 {vr(RES+4*q,4)}, v10, s[16:19], s37 offen offset:{1024*q} sc1")

    def mf(fr, t):
        return [M32(ACC, fr + 4, fr), M32(ACC + 16, fr + 8, fr)]

    fill = ["s_waitcnt vmcnt(0)"]
    if lin == 0:
        for q in range(4):
            a = RES + 4 * q
            fill += [f"v_permlane32_swap_b32 v{a}, v{a+2}", f"v_permlane32_swap_b32 v{a+1}, v{a+3}"]
    UN = 128
    for i in range(16):
        fill += [f"v_lshlrev_b32 v{UN+2*i}, 16, v{RES+i}", f"v_and_b32 v{UN+2*i+1}, 0xffff0000, v{RES+i}"]
    if final:
        fill += rm_addr
    else:
        fill += lines(f"""s_add_u32 s37, s36, {hex(WS_X[lin+1])}
        s_mov_b32 s35, {ONES2}
        v_mov_b32 v24, 0
        v_mov_b32 v25, 0
        s_lshl_b32 s38, s4, 14
        s_lshl_b32 s31, s5, 10
        s_add_u32 s38, s38, s31
        s_lshl_b32 s31, s3, 8
        s_add_u32 s38, s38, s31
        s_add_u32 s38, s38, {hex(WS_ST[lin+1])}
        v_lshlrev_b32 v9, 2, v1""")
    gemm_compute(k, R, STG, 2, [12, 13, 14], [0], [(1, 16384, 128), (2, 16384, 128)], 64, mf, 12, 20,
                 tag, per=3, filler=fill, after_e2=res_loads, pre_m=1)
    for q in range(4):
        a = RES + 4 * q
        for j in range(4):
            ac = ACC + 8 * q + 2 * j
            k(f"v_pk_add_f32 {vr(ac,2)}, {vr(ac,2)}, {vr(UN+8*q+2*j,2)}")
        for j in range(4):
            ac = ACC + 8 * q + 2 * j
            k(f"v_cvt_pk_bf16_f32 v{a+j}, v{ac}, v{ac+1}")
        if final:
            k(f"v_permlane32_swap_b32 v{a}, v{a+2}\nv_permlane32_swap_b32 v{a+1}, v{a+3}")
            k(f"buffer_store_dwordx4 {vr(a,4)}, v9, s[24:27], 0 offen offset:{32*q}")
        else:
            k(f"buffer_store_dwordx4 {vr(a,4)}, v10, s[16:19], s37 offen offset:{1024*q} sc1")
    if not final:
        for i in range(16):
            k(f"v_dot2_f32_bf16 v24, v{RES+i}, s35, v24\nv_dot2_f32_bf16 v25, v{RES+i}, v{RES+i}, v25")
        k(f"""
        v_permlane32_swap_b32 v24, v25
        v_add_f32 v24, v24, v25
        buffer_store_dword v24, v9, s[16:19], s38 offen sc1
        """)
        stamp(k, tag + "_st")
        k("s_waitcnt vmcnt(0)")
        stamp(k, tag + "_drain")
        signal(k, sig_base, "s4", 4, cnt)
    k(f"s_branch {END}\n{LD}:")
    gemm_loader(k, 1, 2048, R, STG, False, True, tag, wt)
    k(f"s_barrier\n{END}:")


QX_B = 147456
WKV_L = 73728
PART_L = 143360
VT_B = 159744


def phase_qkvb(k, tag, rep, lin, wt):
    R, STG = 6, 24576
    LD, END, NOKV, VV, SG = [k.label(tag + x) for x in ("_ld", "_end", "_nokv", "_v", "_sg")]
    tile_map(k, "4x8")
    srd_off(k, 8, P_WS, WS_X[lin], S * D * 2)
    srd(k, 12, P_WQ, D * D * 2)
    k(f"""s_bitcmp1_b32 s5, 0
    s_cselect_b32 s46, s{P_WV}, s{P_WK}
    s_cselect_b32 s47, s{P_WV+1}, s{P_WK+1}
    s_lshr_b32 s48, s5, 1""")
    srd(k, 20, 46, D * 32 * 2)
    k(f"s_cmp_ge_u32 s3, 4\ns_cbranch_scc1 {LD}")
    STT, CS = 144, 160
    first = rep == 0
    CSP_L = VT_B + 2304
    k(f"""
    v_lshlrev_b32 v10, 4, v1
    s_lshl_b32 s31, s3, 12
    v_add_u32 v12, s31, v10
    """)
    w_tr_base(k, 13, "0", 128, True)
    k("v_xor_b32 v14, 64, v13")
    w_tr_base(k, 15, "0", 64, False)
    k(f"""s_lshl_b32 s31, s3, 14
    s_add_u32 s31, s31, {WKV_L}
    v_add_u32 v15, s31, v15
    s_lshl_b32 s31, s3, 12
    s_add_u32 s31, s31, {PART_L}
    v_add_u32 v16, s31, v10
    s_lshl_b32 s36, s4, 2
    s_add_u32 s36, s36, s48
    s_lshl_b32 s36, s36, 16
    s_lshl_b32 s31, s3, 14
    s_add_u32 s36, s36, s31""")
    ACC = 32
    for i in range(32):
        k(f"v_mov_b32 v{ACC+i}, 0")

    CA, ON = 224, 232
    if first:
        ones_pattern(k, ON, 4, 5)
        for i in range(8):
            k(f"v_mov_b32 v{CA+i}, 0")

    def mf(fr, t):
        o = [M32(ACC, fr + 4, fr), M32(ACC + 16, fr + 8, fr)]
        if first:
            L_ = k.label("cs")
            o[1] += f"""
            s_cmp_eq_u32 s3, {t}
            s_cbranch_scc0 {L_}
            {M16(CA, ON, fr + 4)}
            {M16(CA + 4, ON, fr + 8)}
            {L_}:"""
        return o

    RSTD, BOP, SC = 172, 176, 174
    fill = ["s_waitcnt vmcnt(0)"] + ln_stats(STT, RSTD, BOP) + [
        f"v_mul_f32 v{SC}, {f32(LOG2E * DH**-0.5)}, v{RSTD}",
        f"v_mov_b32 v{SC+1}, v{SC}"] + lines(f"""s_lshl_b32 s34, s3, 11
        s_add_u32 s34, s34, {QX_B}
        v_add_u32 v11, s34, v10""")
    if not first:
        fill += cs_build(CS, 251) + cs_build(CS + 4, 252)

    def prepass():
        k(f"s_cmp_ge_u32 s5, 8\ns_cbranch_scc1 {NOKV}")
        XF, WF, E = 64, 192, 128
        for t in range(16):
            k(f"buffer_load_dwordx4 {vr(XF+4*t,4)}, v10, s[8:11], s36 offen offset:{1024*(t&3)} sc1")
            if t & 3 == 3:
                k("s_add_u32 s36, s36, 4096")

        def wr(t):
            for rd in range(2):
                k(f"ds_read_b64_tr_b16 {vr(WF+4*(t%8)+2*rd,2)}, v15 offset:{(16*t+8*rd)*64}")
        for t in range(7):
            wr(t)
        for t in range(16):
            k(f"s_waitcnt vmcnt({15-t}) lgkmcnt({2*min(6, 15-t)})")
            k(M32(E, WF + 4 * (t % 8), XF + 4 * t, "0" if t == 0 else None))
            if first:
                k(M16(236, ON, WF + 4 * (t % 8), "0" if t == 0 else None))
            if t + 7 < 16:
                wr(t + 7)
        for q in range(4):
            k(f"ds_write_b128 v16, {vr(E+4*q,4)} offset:{1024*q}")
        if first:
            k(f"""s_lshl_b32 s31, s3, 8
            s_add_u32 s31, s31, {CSP_L}
            v_lshlrev_b32 v9, 2, v1
            v_add_u32 v9, s31, v9
            ds_write_b32 v9, v236""")
        k(f"s_waitcnt lgkmcnt(0)\n{NOKV}:")
        stats_loads(k, STT, "s3", 9, WS_ST[lin])

    gemm_compute(k, R, STG, 2, [12, 13, 14], [0], [(1, 16384, 128), (2, 16384, 128)], 80, mf, 12, 20,
                 tag, per=3, filler=list(fill), after_e2=prepass, pre_m=1)
    if first:
        k(f"""v_lshlrev_b32 v9, 2, v1
        s_lshl_b32 s31, s3, 9
        v_add_u32 v4, s31, v9
        ds_write_b32 v4, v{CA}
        ds_write_b32 v4, v{CA+4} offset:256
        s_waitcnt lgkmcnt(0)
        s_barrier""")
        for w in range(4):
            for bl in range(2):
                k(f"ds_read_b32 v{144+4*bl+w}, v9 offset:{512*w+256*bl}")
        k("s_waitcnt lgkmcnt(0)")
        for bl in range(2):
            t_ = 144 + 4 * bl
            k(f"v_add_f32 v{t_}, v{t_}, v{t_+1}\nv_add_f32 v{t_+2}, v{t_+2}, v{t_+3}\nv_add_f32 v{t_}, v{t_}, v{t_+2}")
            for l_ in hilo(t_, 251 + bl, 4) + cs_build(CS + 4 * bl, 251 + bl):
                k(l_)
    k(M32(ACC + 16, CS + 4, BOP))
    k(M32(ACC, CS, BOP))
    pk_mul(k, ACC + 16, ACC + 16, SC, 16)
    for i in range(8):
        k(f"v_cvt_pk_bf16_f32 v{88+i}, v{ACC+16+2*i}, v{ACC+16+2*i+1}")
    for t in range(2):
        k(f"ds_write_b128 v11, {vr(88+4*t,4)} offset:{1024*t}")
    pk_mul(k, ACC, ACC, SC, 16)
    for i in range(8):
        k(f"v_cvt_pk_bf16_f32 v{180+i}, v{ACC+2*i}, v{ACC+2*i+1}")
    k(f"""s_branch {END}
    {LD}:
    s_cmp_ge_u32 s5, 8
    s_cbranch_scc1 {LD}_2""")

    def pre_wkv(q):
        k(f"""s_lshl_b32 s39, s30, 14
        s_add_u32 s31, s39, {WKV_L}""")
        for g in range(4):
            k(f"s_add_u32 m0, s31, {4096*g}")
            for jj in range(4):
                k(f"buffer_load_dwordx4 v8, s[20:23], s39 offen offset:{1024*jj} lds")
                q.add("wkv")
            k("s_add_u32 s39, s39, 4096")

    E, T = 32, 48

    def kv_a(q):
        stats_loads(k, STT, "s48", 9, WS_ST[lin], q)
        if first:
            k(f"v_lshlrev_b32 v9, 2, v1\nv_add_u32 v9, {CSP_L}, v9")
            for w in range(4):
                k(f"ds_read_b32 v{100+w}, v9 offset:{256*w}")
        k(f"v_add_u32 v9, {PART_L}, v8")
        for w in range(4):
            for qq in range(4):
                k(f"ds_read_b128 {vr(E+16*w+4*qq,4)}, v9 offset:{4096*w+1024*qq}")
        k("s_waitcnt lgkmcnt(0)")
        for i in range(0, 16, 2):
            k(f"v_pk_add_f32 {vr(E+i,2)}, {vr(E+i,2)}, {vr(E+16+i,2)}")
            k(f"v_pk_add_f32 {vr(E+32+i,2)}, {vr(E+32+i,2)}, {vr(E+48+i,2)}")
            k(f"v_pk_add_f32 {vr(E+i,2)}, {vr(E+i,2)}, {vr(E+32+i,2)}")
        if first:
            k("v_add_f32 v100, v100, v101\nv_add_f32 v102, v102, v103\nv_add_f32 v100, v100, v102")
            for l_ in hilo(100, 248, 4):
                k(l_)
        for l_ in cs_build(CS, 248):
            k(l_)

    def kv_b(q):
        SK = k.label("kvskip")
        k(f"s_waitcnt vmcnt({q.cnt('stats')})")
        for l_ in ln_stats(STT, RSTD, BOP):
            k(l_)
        k(f"v_mov_b32 v{RSTD+1}, v{RSTD}")
        k(M32(E, CS, BOP))
        k(f"""s_lshl_b32 s54, s4, 2
        s_add_u32 s54, s54, s48
        s_lshl_b32 s54, s54, 12
        s_add_u32 s54, s54, {hex(WS_KV[rep])}
        v_mul_u32_u24 v26, 72, v2
        v_lshl_add_u32 v26, v3, 3, v26
        v_add_u32 v26, {VT_B}, v26
        v_and_b32 v24, 15, v1
        v_lshrrev_b32 v25, 2, v24
        v_lshl_add_u32 v25, v3, 2, v25
        v_mul_u32_u24 v25, 72, v25
        v_and_b32 v24, 3, v24
        v_lshl_add_u32 v25, v24, 3, v25
        v_bfe_u32 v24, v1, 4, 1
        v_lshl_add_u32 v25, v24, 5, v25
        v_add_u32 v25, {VT_B}, v25""")
        pk_mul(k, E, E, RSTD, 16)
        for i in range(8):
            k(f"v_cvt_pk_bf16_f32 v{96+i}, v{E+2*i}, v{E+2*i+1}")
        k(f"s_bitcmp1_b32 s5, 0\ns_cbranch_scc0 {SG}\ns_cmp_lg_u32 s3, 7\ns_cbranch_scc1 {SG}")
        for i in range(4):
            k(f"ds_write_b64 v26, {vr(96+2*i,2)} offset:{16*i}")
        k("s_waitcnt lgkmcnt(0)")
        for t in range(2):
            for e in range(2):
                k(f"ds_read_b64_tr_b16 {vr(96+4*t+2*e,2)}, v25 offset:{(16*t+8*e)*72}")
        k(f"s_waitcnt lgkmcnt(0)\ns_add_u32 s54, s54, 2048\n{SG}:")
        k(f"""s_cmp_eq_u32 s3, 7
        s_cselect_b32 s54, s54, 0x7ffff000""")
        for t in range(2):
            k(f"buffer_store_dwordx4 {vr(96+4*t,4)}, v8, s[16:19], s54 offen offset:{1024*t} sc1")
            q.add("kvst")

    def kv_c(q):
        SK = k.label("kvskip")
        k(f"""s_waitcnt vmcnt({q.cnt('kvst')})
        s_lshl_b32 s54, s4, 8
        s_add_u32 s54, s54, {hex(flag_off(rep, F_KVB))}
        s_cmp_eq_u32 s3, 7
        s_cselect_b32 s54, s54, 0x7ffff000
        v_mov_b32 v4, 1
        v_mov_b32 v5, 0
        s_mov_b64 exec, 1
        buffer_atomic_add v4, v5, s[16:19], s54 offen sc1
        s_mov_b64 exec, -1""")
        q.add("sig")
        stamp(k, tag + "_kvsig")

    gemm_loader(k, 1, 2048, R, STG, False, True, tag, wt, npre=3, preflag=pre_wkv, first=2, lims={0: 4},
                mid={0: kv_a, 2: kv_b, 5: kv_c})
    k("s_barrier\n" * (2 if first else 1) + f"s_branch {END}\n{LD}_2:")
    gemm_loader(k, 1, 2048, R, STG, False, True, tag, wt)
    k("s_barrier\n" * (2 if first else 1) + f"{END}:")


def phase_attn(k, tag, rep, oi):
    name = k.label(tag)
    Q, NEG, SA, SB, P, O, L, ONE, KF, VF = 8, 16, 32, 48, 64, 80, 96, 100, 104, 120
    k(f"""
    s_lshr_b32 s36, s3, 2
    s_and_b32 s37, s3, 3
    s_lshl_b32 s38, s5, 1
    s_add_u32 s38, s38, s36
    s_lshl_b32 s39, s4, 2
    s_add_u32 s39, s39, s37
    v_lshlrev_b32 v128, 4, v1
    """)
    cnt = new_cnt()
    zero_cnt(k, cnt)
    k(f"""
    s_waitcnt lgkmcnt(0)
    s_cmp_lg_u32 s3, 7
    s_cbranch_scc1 {name}_np
    """)
    wait_flag(k, flag_off(rep, F_KVB), None, 8, True)
    k(f"""{name}_np:
    s_barrier
    s_cmp_ge_u32 s3, 4
    s_cbranch_scc1 {name}_qld
    """)
    for i in range(8):
        k(f"v_mov_b32 v{Q+i}, v{180+i}")
    k(f"""s_branch {name}_go
    {name}_qld:
    s_lshl_b32 s34, s37, 11
    s_add_u32 s34, s34, {QX_B}
    v_add_u32 v5, s34, v128
    ds_read_b128 {vr(Q,4)}, v5
    ds_read_b128 {vr(Q+4,4)}, v5 offset:1024
    {name}_go:
    v_mov_b32 v4, v128
    s_lshl_b32 s30, s3, 12
    s_add_u32 s31, s30, {hex(WS_KV[rep])}
    """)
    stamp(k, tag + "_e2")

    def dma():
        for q in range(4):
            k(f"buffer_load_dwordx4 v4, s[16:19], s31 offen offset:{1024*q} sc1 lds")
        k("s_add_u32 s31, s31, 32768")

    for c in range(3):
        k(f"s_add_u32 m0, s30, {32768*c}")
        dma()
    ones_pattern(k, ONE, 5, 6)
    for i in range(16):
        k(f"v_mov_b32 v{O+i}, 0")
    for i in range(4):
        k(f"v_mov_b32 v{L+i}, 0")
    for i in range(8):
        k(f"v_mov_b32 v{P+i}, 0")
    k("s_waitcnt vmcnt(8)\ns_barrier")
    stamp(k, tag + "_b0")
    K1, K2, V1, V2 = KF, KF + 4, VF, VF + 4
    k(f"""ds_read_b128 {vr(K1,4)}, v4
    ds_read_b128 {vr(K2,4)}, v4 offset:1024
    s_waitcnt lgkmcnt(0)
    """)
    k(M32(SA, K1, Q, "0"))
    k(M32(SA, K2, Q + 4))
    k(f"v_max3_f32 v5, v{SA}, v{SA+1}, v{SA+2}")
    for i in range(3, 15, 2):
        k(f"v_max3_f32 v5, v5, v{SA+i}, v{SA+i+1}")
    k(f"""v_max_f32 v5, v5, v{SA+15}
    v_mov_b32 v6, v5
    v_permlane32_swap_b32 v5, v6
    v_max_f32 v5, v5, v6
    """)
    for i in range(16):
        k(f"v_sub_f32 v{NEG+i}, 0, v5")
    for i in range(16):
        k(f"v_sub_f32 v{SA+i}, v{SA+i}, v5")
    if "at_prio" in sys.argv:
        k(f"s_cmp_lt_u32 s3, 4\ns_cbranch_scc1 {name}_pr\ns_setprio 1\n{name}_pr:")
    k(f"""ds_read_b128 {vr(V2,4)}, v4 offset:3072
    ds_read_b128 {vr(K1,4)}, v4 offset:4096
    ds_read_b128 {vr(K2,4)}, v4 offset:5120
    ds_read_b128 {vr(V1,4)}, v4 offset:2048
    s_mov_b32 s32, 0
    v_mov_b32 v5, v4
    v_add_u32 v6, 32768, v4
    s_mov_b32 s33, 0x18000
    {name}_loop:""")

    def ex(cur, a, b):
        for i in range(a, b):
            k(f"v_exp_f32 v{cur+i}, v{cur+i}")

    def cv(cur, a, b):
        for i in range(a, b):
            k(f"v_cvt_pk_bf16_f32 v{P+i}, v{cur+2*i}, v{cur+2*i+1}")

    def rd(dst, tile, part):
        if "at_nord" in sys.argv:
            return
        bb, oo = (5, tile * 4096) if tile < 8 else (6, (tile - 8) * 4096)
        k(f"ds_read_b128 {vr(dst,4)}, v{bb} offset:{oo+1024*part}")

    for j in range(8):
        cur, nxt = (SA, SB) if j % 2 == 0 else (SB, SA)
        k("s_waitcnt lgkmcnt(3)")
        k(M32(O, V2, P + 4))
        rd(V2, j, 3)
        ex(cur, 0, 4)
        k(M16(L, ONE, P + 4))
        ex(cur, 4, 6)
        if j == 6 and "at_nobar" not in sys.argv:
            k(f"""s_waitcnt vmcnt(4)
            s_barrier
            s_cmp_ge_u32 s32, 5
            s_cbranch_scc1 {name}_nodma
            s_add_u32 m0, s30, s33""")
            dma()
            k(f"""s_branch {name}_dmadone
            {name}_nodma:
            s_waitcnt vmcnt(0)
            s_barrier
            {name}_dmadone:""")
        if j % 2 == 0:
            k(f"s_setprio {3 - ((j - 6) % 8) // 2}")
        k("s_waitcnt lgkmcnt(3)")
        k(M32(nxt, K1, Q, vr(NEG, 16)))
        rd(K1, j + 2, 0)
        ex(cur, 6, 8)
        cv(cur, 0, 4)
        k("s_waitcnt lgkmcnt(3)")
        k(M32(nxt, K2, Q + 4))
        rd(K2, j + 2, 1)
        ex(cur, 8, 12)
        k("s_waitcnt lgkmcnt(3)")
        k(M32(O, V1, P))
        rd(V1, j + 1, 2)
        ex(cur, 12, 16)
        k(M16(L, ONE, P))
        cv(cur, 4, 8)
        if j == 7:
            k(f"""
            v_mov_b32 v5, v6
            s_add_u32 s33, s33, 0x8000
            s_and_b32 s33, s33, 0x1ffff
            s_add_u32 s34, s33, 0x10000
            s_and_b32 s34, s34, 0x1ffff
            v_add_u32 v6, s34, v4
            s_add_u32 s32, s32, 1
            s_cmp_lt_u32 s32, 8
            s_cbranch_scc1 {name}_loop
            s_waitcnt lgkmcnt(0)
            s_barrier
            """)
    k(M32(O, V2, P + 4))
    k(M16(L, ONE, P + 4))
    stamp(k, tag + "_loopend")
    k("s_setprio 0")
    k(f"v_max3_f32 v5, abs(v{O}), abs(v{O+1}), abs(v{O+2})")
    for i in range(3, 15, 2):
        k(f"v_max3_f32 v5, v5, abs(v{O+i}), abs(v{O+i+1})")
    k(f"""v_max3_f32 v5, v5, abs(v{O+15}), v{L}
    v_mov_b32 v6, 0
    """)
    for i in range(16):
        k(f"v_fma_f32 v6, v{O+i}, 0, v6")
    k(f"""v_fma_f32 v6, v{L}, 0, v6
    v_add_f32 v5, v5, v6
    s_mov_b32 s34, {f32(2.0**100)}
    v_cmp_nlt_f32 vcc, v5, s34
    s_cbranch_vccz {name}_fin
    """)
    for i in range(16):
        k(f"v_mov_b32 v{O+i}, 0")
    for i in range(4):
        k(f"v_mov_b32 v{L+i}, 0")
    k(f"""v_mov_b32 v7, 0xff800000
    s_mov_b32 s31, {hex(WS_KV[rep])}
    s_mov_b32 s32, 0
    {name}_sloop:
    buffer_load_dwordx4 {vr(KF,4)}, v4, s[16:19], s31 offen sc1
    buffer_load_dwordx4 {vr(KF+4,4)}, v4, s[16:19], s31 offen offset:1024 sc1
    buffer_load_dwordx4 {vr(VF,4)}, v4, s[16:19], s31 offen offset:2048 sc1
    buffer_load_dwordx4 {vr(VF+4,4)}, v4, s[16:19], s31 offen offset:3072 sc1
    s_waitcnt vmcnt(0)
    """)
    k(M32(SA, KF, Q, "0"))
    k(M32(SA, KF + 4, Q + 4))
    k(f"v_max3_f32 v5, v{SA}, v{SA+1}, v{SA+2}")
    for i in range(3, 15, 2):
        k(f"v_max3_f32 v5, v5, v{SA+i}, v{SA+i+1}")
    k(f"""v_max_f32 v5, v5, v{SA+15}
    v_mov_b32 v6, v5
    v_permlane32_swap_b32 v5, v6
    v_max3_f32 v5, v5, v6, v7
    v_sub_f32 v6, v7, v5
    v_exp_f32 v6, v6
    v_mov_b32 v7, v5
    """)
    for i in range(16):
        k(f"v_sub_f32 v{SA+i}, v{SA+i}, v5")
    for i in range(16):
        k(f"v_exp_f32 v{SA+i}, v{SA+i}")
    for i in range(16):
        k(f"v_mul_f32 v{O+i}, v{O+i}, v6")
    for i in range(4):
        k(f"v_mul_f32 v{L+i}, v{L+i}, v6")
    for i in range(8):
        k(f"v_cvt_pk_bf16_f32 v{P+i}, v{SA+2*i}, v{SA+2*i+1}")
    k(M32(O, VF, P))
    k(M16(L, ONE, P))
    k(M32(O, VF + 4, P + 4))
    k(M16(L, ONE, P + 4))
    k(f"""s_add_u32 s31, s31, 4096
    s_add_u32 s32, s32, 1
    s_cmp_lt_u32 s32, 64
    s_cbranch_scc1 {name}_sloop
    {name}_fin:
    v_rcp_f32 v6, v{L}
    s_lshl_b32 s34, s39, 16
    s_lshl_b32 s35, s38, 11
    s_add_u32 s34, s34, s35
    s_add_u32 s34, s34, {hex(WS_O[oi])}
    v_mov_b32 v7, v6
    """)
    pk_mul(k, O, O, 6, 16)
    for i in range(8):
        k(f"v_cvt_pk_bf16_f32 v{P+i}, v{O+2*i}, v{O+2*i+1}")
    for t in range(2):
        k(f"buffer_store_dwordx4 {vr(P+4*t,4)}, v4, s[16:19], s34 offen offset:{1024*t} sc1")
    stamp(k, tag + "_st")
    k("s_waitcnt vmcnt(0)")
    stamp(k, tag + "_drain")
    signal(k, flag_off(rep, F_OB), "s4", 8, cnt)


def prep_jobs(k):
    def j_zero(q):
        k(f"""s_lshl_b32 s56, s2, 2
        s_add_u32 s56, s56, s30
        s_mul_i32 s56, s56, 48
        s_add_u32 s56, s56, {hex(WS_FL)}
        v_min_u32 v25, 11, v1
        v_lshlrev_b32 v25, 2, v25
        v_mov_b32 v26, 0
        buffer_store_dword v26, v25, s[16:19], s56 offen sc1""")
        q.add("jst")

    def j_wait(q):
        k(f"s_waitcnt vmcnt({q.cnt('jst')})")
        stamp(k, "job_drained")

    def j_sig(q):
        srd(k, 24, P_DBG, 256)
        k(f"""s_and_b32 s56, s2, 1
        s_lshl_b32 s56, s56, 7
        s_cmp_eq_u32 s3, 4
        s_cselect_b32 s56, s56, 0x7ffff000
        v_mov_b32 v4, 1
        v_mov_b32 v5, 0
        s_mov_b64 exec, 1
        buffer_atomic_add v4, v5, s[24:27], s56 offen sc1
        s_mov_b64 exec, -1""")
        q.add("jsig")

    def j_poll(q):
        L = k.label("ipoll")
        stamp(k, "job_prepoll")
        k(f"""s_cmp_lg_u32 s3, 4
        s_cbranch_scc1 {L}_ok
        v_and_b32 v4, 1, v1
        v_lshlrev_b32 v4, 7, v4
        s_mov_b32 s53, 0
        {L}:
        buffer_load_dword v5, v4, s[24:27], 0 offen sc1
        s_waitcnt vmcnt(0)
        v_cmp_gt_u32 vcc, 128, v5
        s_cbranch_vccz {L}_ok
        s_sleep 4
        s_add_u32 s53, s53, 1
        s_cmp_lt_u32 s53, 0x40000
        s_cbranch_scc1 {L}
        {L}_ok:""")
        stamp(k, "job_polled")

    return {0: j_zero, 3: j_wait, 4: j_sig, 14: j_poll}


def phase_qkva(k, tag, rep, lin, oi, wt):
    R, STG = 4, 40960
    LD, J0, J1, J2, NP = [k.label(tag + x) for x in ("_ld", "_j0", "_j1", "_j2", "_np")]
    tile_map(k, "8x4")
    first = lin == 0
    if first:
        srd(k, 8, P_X, S * D * 2)
    else:
        srd_off(k, 8, P_WS, WS_X[lin], S * D * 2)
    srd(k, 12, P_WQKV, D * 3 * D * 2)
    srd(k, 20, P_WPHI, H * DH * DH * 2)
    k(f"""
    s_bfe_u32 s48, s3, 0x10001
    s_and_b32 s49, s3, 1
    s_lshl_b32 s50, s5, 1
    s_add_u32 s50, s50, s49
    s_lshl_b32 s51, s48, 1
    s_lshr_b32 s31, s3, 2
    s_add_u32 s51, s51, s31
    """)
    STT, CS, WP = 176, 208, 220
    QXL = 51200
    KVL = 69632
    cnt_col, cnt_o = new_cnt(), new_cnt()
    RSTD = [168, 170]
    LC = 172
    BOP = [240, 244]
    addr_setup = lines(f"""
    s_lshl_b32 s35, s51, 5
    v_add_u32 v238, s35, v2
    v_mul_u32_u24 v238, 200, v238
    v_lshl_add_u32 v238, v3, 3, v238
    s_mul_i32 s35, s49, 25600
    v_add_u32 v238, s35, v238
    s_and_b32 s35, s3, 3
    s_lshl_b32 s35, s35, 12
    s_add_u32 s35, s35, {QXL}
    v_lshlrev_b32 v239, 4, v1
    v_add_u32 v239, s35, v239
    """)
    wp_pack = [f"v_lshl_or_b32 v{WP+i}, v{WP+2*i+1}, 16, v{WP+2*i}" for i in range(8)]
    k(f"s_cmp_ge_u32 s3, 4\ns_cbranch_scc1 {LD}")
    LCL = QXL + 16384
    STL, CSL = 81920, 83968
    if first and "notouch" not in sys.argv:
        k(f"""v_lshlrev_b32 v10, 4, v1
        s_lshl_b32 s34, s2, 2
        s_add_u32 s34, s34, s3
        s_mul_i32 s35, s34, 6144
        s_lshl_b32 s36, s34, 12
        s_add_u32 s38, s35, 4096""")
        for i in range(4):
            k(f"buffer_load_dwordx4 v[244:247], v10, s[12:15], s35 offen offset:{1024*i}")
        for i in range(4):
            k(f"buffer_load_dwordx4 v[244:247], v10, s[8:11], s36 offen offset:{1024*i}")
        for i in range(2):
            k(f"buffer_load_dwordx4 v[244:247], v10, s[12:15], s38 offen offset:{1024*i}")
    wphi_loads(k, WP, "s50")
    if first:
        k("s_lshl_b32 s35, s48, 6")
        x_addr(k, 12, "s35")
        k("s_lshl_b32 s35, s49, 6")
        w_tr_base(k, 16, "s35", 128, True, hs=3)
    else:
        k(f"""v_lshlrev_b32 v12, 4, v1
        s_lshl_b32 s35, s48, 13
        v_add_u32 v12, s35, v12
        s_lshl_b32 s35, s49, 6""")
        w_tr_base(k, 13, "s35", 128, True)
    ACC = 32
    for i in range(96):
        k(f"v_mov_b32 v{ACC+i}, 0")

    def acc(p, b):
        return ACC + 32 * p + 16 * b

    def mf(fr, t):
        return [M32(acc(p, b), fr + 8 + 4 * p, fr + 4 * b) for p in range(3) for b in range(2)]

    def st_l(kk=k):
        stats_loads(kk, STT, "s51", 10, WS_ST[lin])
        kk("s_add_u32 s31, s51, 1")
        stats_loads(kk, STT + 16, "s31", 10, WS_ST[lin])

    tail = []
    for b in range(2):
        tail += [f"v_mov_b32 v{RSTD[b]+1}, v{RSTD[b]}"]
    tail += [f"v_mul_f32 v{LC}, {f32(LOG2E)}, v{RSTD[0]}", f"v_mov_b32 v{LC+1}, v{LC}",
             f"v_mul_f32 v{LC+2}, {f32(LOG2E)}, v{RSTD[1]}"]
    for p in range(3):
        tail += cs_build(CS + 4 * p, 248 + p)
    lc_addr = lines(f"""s_and_b32 s35, s3, 3
    s_lshl_b32 s35, s35, 8
    s_add_u32 s35, s35, {LCL}
    v_lshlrev_b32 v237, 2, v1
    v_add_u32 v237, s35, v237""")
    wl = [(1, 16384, 128), (1, 16384 + 8192, 128), (1, 16384 + 16384, 128)]
    if first:
        def touch2():
            if "notouch2" in sys.argv:
                return
            k(f"""s_lshl_b32 s34, s2, 2
            s_add_u32 s34, s34, s3
            s_lshl_b32 s37, s34, 11
            v_lshlrev_b32 v10, 4, v1""")
            for pw in (P_WOA, P_WQ, P_WOB):
                srd(k, 24, pw, D * D * 2)
                for i in range(2):
                    k(f"buffer_load_dwordx4 v[244:247], v10, s[24:27], s37 offen offset:{1024*i}")
            for pw in (P_WK, P_WV):
                srd(k, 24, pw, D * 32 * 2)
                k(f"buffer_load_dwordx4 v[244:247], v10, s[24:27], s37 offen")
                k(f"buffer_load_dwordx4 v[244:247], v10, s[24:27], s37 offen offset:1024")

        gemm_compute(k, R, STG, 1, [12, 13, 14, 15, 16], [0, 4096], wl, 128, mf, 20, 20, tag, nbuf=2, per=2,
                     filler=["s_waitcnt vmcnt(0)"] + wp_pack + addr_setup + lc_addr, e2=False, rm=True, pre_m=2,
                     at_iter=(5, touch2))
        k(f"""s_barrier
        v_lshlrev_b32 v4, 2, v1
        s_lshl_b32 s35, s51, 8
        s_add_u32 s35, s35, {STL}
        v_add_u32 v4, s35, v4
        ds_read_b32 v{STT}, v4
        ds_read_b32 v{STT+16}, v4 offset:256
        v_lshlrev_b32 v4, 2, v2
        s_lshl_b32 s35, s49, 7
        s_add_u32 s35, s35, {CSL}
        v_add_u32 v4, s35, v4""")
        for p in range(3):
            for w in range(4):
                k(f"ds_read_b32 v{CS+4*p+w}, v4 offset:{768*w+256*p}")
        k("s_waitcnt lgkmcnt(12)")
        for b in range(2):
            for l_ in ln_stats(STT + 16 * b, RSTD[b], BOP[b], True):
                k(l_)
        k("s_waitcnt lgkmcnt(0)")
        for p in range(3):
            c_ = CS + 4 * p
            k(f"v_add_f32 v{c_}, v{c_}, v{c_+1}\nv_add_f32 v{c_+2}, v{c_+2}, v{c_+3}\nv_add_f32 v{c_}, v{c_}, v{c_+2}")
            for l_ in hilo(c_, 248 + p, 4):
                k(l_)
        for l_ in tail:
            k(l_)
    else:
        fill = ["s_waitcnt vmcnt(0)"]
        for b in range(2):
            fill += ln_stats(STT + 16 * b, RSTD[b], BOP[b])
        gemm_compute(k, R, STG, 1, [12, 13], [0, 4096], wl, 128, mf, 20, 20, tag,
                     nbuf=2, per=2, filler=fill + tail + wp_pack + addr_setup + lc_addr, after_e2=st_l, pre_m=2)
    k(f"ds_write_b32 v237, v{LC+2}")
    for p, b in ((1, 1), (0, 1), (1, 0), (2, 0), (2, 1), (0, 0)):
        k(M32(acc(p, b), CS + 4 * p, BOP[b]))
    k(f"""v_lshlrev_b32 v4, 3, v1
    v_mov_b32 v6, 0
    v_mov_b32 v7, 0
    ds_write_b64 v4, v[6:7] offset:{KVL+8192-65536+65536 if KVL+8192 < 65536 else 0}""" if False else "")
    k(f"""v_lshlrev_b32 v4, 3, v1
    v_add_u32 v4, {KVL+8192}, v4
    v_mov_b32 v6, 0
    v_mov_b32 v7, 0
    ds_write_b64 v4, v[6:7]""")
    zero_cnt(k, cnt_col)
    zero_cnt(k, cnt_o)
    for p, d_ in ((1, 128), (0, 136)):
        for i in range(8):
            k(f"v_cvt_pk_bf16_f32 v{d_+i}, v{acc(p,1)+2*i}, v{acc(p,1)+2*i+1}")
        for t in range(2):
            k(f"ds_write_b128 v239, {vr(d_+4*t,4)} offset:{(d_-128)*256+1024*t}")
    for i in range(8):
        k(f"v_cvt_pk_bf16_f32 v{144+i}, v{acc(1,0)+2*i}, v{acc(1,0)+2*i+1}")
    k("s_waitcnt lgkmcnt(0)\ns_barrier")
    stamp(k, tag + "_ba")
    k(M32(acc(1, 0), WP, 144, "0"))
    k(M32(acc(1, 0), WP + 4, 148))
    for b in range(2):
        pk_mul(k, acc(2, b), acc(2, b), RSTD[b], 16)
        for i in range(8):
            k(f"v_cvt_pk_bf16_f32 v{128+8*b+i}, v{acc(2,b)+2*i}, v{acc(2,b)+2*i+1}")
        for i in range(4):
            k(f"ds_write_b64 v238, {vr(128+8*b+2*i,2)} offset:{6400*b+128+16*i}")
    for i in range(8):
        k(f"v_cvt_pk_bf16_f32 v{160+i}, v{acc(0,0)+2*i}, v{acc(0,0)+2*i+1}")
    KRAW = acc(1, 0)
    k(f"s_branch {J0}\n{LD}:")

    if first:
        jobs = prep_jobs(k)
        XS, WS_, T0 = 32, 40, 64

        def ld_pre():
            wphi_loads(k, WP, "s50")
            k("s_sub_u32 s30, s3, 4\ns_lshl_b32 s35, s30, 5")
            x_addr(k, 112, "s35")
            k(f"""v_lshrrev_b32 v4, 3, v1
            v_bfe_u32 v5, v4, 1, 1
            v_lshlrev_b32 v5, 2, v5
            v_and_b32 v6, 7, v1
            v_xor_b32 v5, v5, v6
            v_lshlrev_b32 v5, 4, v5
            v_lshl_add_u32 v116, v4, 7, v5
            s_lshl_b32 s35, s30, 11
            s_add_u32 s35, s35, 16384
            v_add_u32 v116, s35, v116""")
            for i in range(XS, WS_ + 24):
                k(f"v_mov_b32 v{i}, 0")

        def mk(i):
            def f(q):
                slot = (i % R) * STG
                for t in range(5):
                    k(f"v_add_u32 v{120+t}, {slot}, v{112+t}")
                for t in range(4):
                    k(f"ds_read_b128 {vr(T0+4*t,4)}, v{120+t}")
                for p in range(3):
                    for jj in range(2):
                        k(f"ds_read_b128 {vr(T0+16+8*p+4*jj,4)}, v124 offset:{8192*p+1024*jj}")
                k("s_waitcnt lgkmcnt(6)")
                for r_ in range(16):
                    k(f"""v_lshlrev_b32 v104, 16, v{T0+r_}
                    v_and_b32 v105, 0xffff0000, v{T0+r_}
                    v_pk_add_f32 {vr(XS,2)}, {vr(XS,2)}, v[104:105]
                    v_pk_fma_f32 {vr(XS+2,2)}, v[104:105], v[104:105], {vr(XS+2,2)}""")
                k("s_waitcnt lgkmcnt(0)")
                for p in range(3):
                    for jj in range(2):
                        for r_ in range(4):
                            a_ = T0 + 16 + 8 * p + 4 * jj + r_
                            d_ = WS_ + 8 * p + 2 * r_
                            k(f"""v_lshlrev_b32 v104, 16, v{a_}
                            v_and_b32 v105, 0xffff0000, v{a_}
                            v_pk_add_f32 {vr(d_,2)}, {vr(d_,2)}, v[104:105]""")
                if i in jobs:
                    jobs[i](q)
            return f

        gemm_loader(k, 3, 6144, R, STG, False, False, tag, None, pre=ld_pre, mid={i: mk(i) for i in range(NST)},
                    rm=True)
        k(f"""v_add_f32 v{XS}, v{XS}, v{XS+1}
        v_add_f32 v{XS+2}, v{XS+2}, v{XS+3}
        v_permlane32_swap_b32 v{XS}, v{XS+2}
        v_add_f32 v{XS}, v{XS}, v{XS+2}""")
        for i in range(24):
            k(f"v_add_f32_dpp v{WS_+i}, v{WS_+i}, v{WS_+i} row_ror:8 row_mask:0xf bank_mask:0xf")
        for sw in ("v_permlane16_swap_b32", "v_permlane32_swap_b32"):
            for i in range(24):
                k(f"v_mov_b32 v{T0+i}, v{WS_+i}")
            for i in range(24):
                k(f"{sw} v{WS_+i}, v{T0+i}")
            for i in range(0, 24, 2):
                k(f"v_pk_add_f32 {vr(WS_+i,2)}, {vr(WS_+i,2)}, {vr(T0+i,2)}")
        k(f"""v_lshlrev_b32 v4, 2, v1
        s_lshl_b32 s35, s30, 8
        s_add_u32 s35, s35, {STL}
        v_add_u32 v4, s35, v4
        v_and_b32 v5, 7, v1
        v_lshlrev_b32 v5, 5, v5
        s_mul_i32 s35, s30, 768
        s_add_u32 s35, s35, {CSL}
        v_add_u32 v5, s35, v5
        s_barrier
        ds_write_b32 v4, v{XS}""")
        for p in range(3):
            for hf in range(2):
                k(f"ds_write_b128 v5, {vr(WS_+8*p+4*hf,4)} offset:{256*p+16*hf}")
        k("s_waitcnt lgkmcnt(0)")
    else:
        gemm_loader(k, 3, 6144, R, STG, False, False, tag, wt, pre=lambda: wphi_loads(k, WP, "s50"))
    for l_ in addr_setup + lc_addr + wp_pack:
        k(l_)
    k("s_barrier\ns_barrier")
    k(f"""ds_read_b128 {vr(144,4)}, v239
    ds_read_b128 {vr(148,4)}, v239 offset:1024
    ds_read_b32 v{LC}, v237
    ds_read_b32 v{LC+1}, v237
    ds_read_b128 {vr(160,4)}, v239 offset:2048
    ds_read_b128 {vr(164,4)}, v239 offset:3072
    s_waitcnt lgkmcnt(2)""")
    k(M32(KRAW, WP, 144, "0"))
    k(M32(KRAW, WP + 4, 148))
    k(f"{J0}:")
    feat_map(k, KRAW, LC, 176, 144)
    for s_ in range(2):
        for i in range(4):
            k(f"ds_write_b64 v238, {vr(144+8*s_+2*i,2)} offset:{64*s_+16*i}")
    QRAW = 96
    k("s_waitcnt lgkmcnt(8)")
    k(M32(QRAW, WP, 160, "0"))
    k(M32(QRAW, WP + 4, 164))
    k(f"""
    v_and_b32 v4, 15, v1
    v_lshrrev_b32 v5, 2, v4
    v_lshl_add_u32 v5, v5, 3, v3
    v_mul_u32_u24 v5, 200, v5
    v_and_b32 v6, 3, v4
    v_lshl_add_u32 v5, v6, 3, v5
    v_bfe_u32 v7, v1, 4, 1
    v_lshl_add_u32 v5, v7, 5, v5
    s_mul_i32 s35, s49, 25600
    v_add_u32 v14, s35, v5
    s_lshl_b32 s35, s48, 6
    v_add_u32 v15, s35, v14
    """)
    ones_pattern(k, 24, 28, 29)
    k(f"""
    s_lshl_b32 s36, s50, 16
    s_lshl_b32 s35, s4, 12
    s_add_u32 s36, s36, s35
    s_lshl_b32 s35, s48, 11
    s_add_u32 s36, s36, s35
    s_add_u32 s36, s36, {hex(WS_KVP[rep])}
    s_lshl_b32 s39, s50, 12
    s_lshl_b32 s35, s4, 8
    s_add_u32 s39, s39, s35
    s_lshl_b32 s35, s48, 7
    s_add_u32 s39, s39, s35
    s_add_u32 s39, s39, {hex(WS_ZP[rep])}
    v_lshlrev_b32 v11, 2, v2
    v_lshlrev_b32 v10, 4, v1
    s_waitcnt lgkmcnt(0)
    s_barrier
    """)
    stamp(k, tag + "_bb")
    PHQ = 144
    k(f"s_cmp_ge_u32 s3, 4\ns_cbranch_scc1 {J1}")
    KVA, ZA = 32, 48
    FR = [176 + 8 * i for i in range(4)]

    def trr(s_):
        blk, t = s_ >> 1, s_ & 1
        f = FR[s_ % 4]
        for rd in range(2):
            off = (32 * blk + 4 * t + 2 * rd) * 200
            k(f"ds_read_b64_tr_b16 {vr(f+2*rd,2)}, v15 offset:{off}")
            k(f"ds_read_b64_tr_b16 {vr(f+4+2*rd,2)}, v14 offset:{off+128}")

    for s_ in range(3):
        trr(s_)
    for s_ in range(8):
        rem = min(7, s_ + 2) - s_
        k(f"s_waitcnt lgkmcnt({4*rem})")
        f = FR[s_ % 4]
        k(M32(KVA, f, f + 4, "0" if s_ == 0 else None))
        k(M16(ZA, 24, f, "0" if s_ == 0 else None))
        if s_ + 3 < 8:
            trr(s_ + 3)
    k(f"buffer_store_dword v{ZA}, v11, s[16:19], s39 offen sc1")
    for i in range(8):
        k(f"v_cvt_pk_bf16_f32 v{56+i}, v{KVA+2*i}, v{KVA+2*i+1}")
    for q in range(2):
        k(f"buffer_store_dwordx4 {vr(56+4*q,4)}, v10, s[16:19], s36 offen offset:{1024*q} sc1")
    stamp(k, tag + "_kvst")
    feat_map(k, QRAW, LC, 176, PHQ)
    k("s_waitcnt vmcnt(0)")
    stamp(k, tag + "_kvdrain")
    signal(k, flag_off(rep, F_COL), "s5", 4, cnt_col)
    k(f"s_branch {NP}\n{J1}:")
    feat_map(k, QRAW, LC, 176, PHQ)
    k(f"s_cmp_lg_u32 s3, 7\ns_cbranch_scc1 {NP}")
    wait_flag(k, flag_off(rep, F_COL), "s5", 16)
    k(f"{NP}:")
    k(f"""
    s_lshr_b32 s36, s3, 2
    s_and_b32 s37, s3, 3
    s_lshl_b32 s38, s5, 1
    s_add_u32 s38, s38, s36
    v_lshlrev_b32 v11, 2, v1
    s_lshl_b32 s34, s38, 16
    s_lshl_b32 s35, s37, 10
    s_add_u32 s34, s34, s35
    s_add_u32 s34, s34, {hex(WS_KVP[rep])}
    s_lshl_b32 s39, s38, 12
    s_add_u32 s39, s39, s35
    s_add_u32 s39, s39, {hex(WS_ZP[rep])}
    s_mov_b32 s52, 0x3f80
    s_mov_b32 s53, 0x3f800000
    s_barrier
    """)
    stamp(k, tag + "_e2a")
    for q in range(4):
        k(f"buffer_load_dword v{24+q}, v11, s[16:19], s39 offen offset:{256*q} sc1")
    for rt in range(16):
        k(f"buffer_load_dwordx4 {vr(48+4*rt,4)}, v10, s[16:19], s34 offen sc1")
        k("s_add_u32 s34, s34, 4096")
    for i in range(8):
        k(f"v_mov_b32 v{32+i}, 0")
    k(f"""s_lshl_b32 s35, s36, 8
    s_add_u32 s35, s35, {KVL+8192}
    v_add_u32 v13, s35, v11
    s_lshl_b32 s35, s3, 10
    s_add_u32 s35, s35, {KVL}
    v_add_u32 v12, s35, v10
    s_waitcnt vmcnt(16)
    v_add_f32 v24, v24, v25
    v_add_f32 v26, v26, v27
    v_add_f32 v24, v24, v26
    ds_add_f32 v13, v24""")
    for rt in range(16):
        k(f"s_waitcnt vmcnt({15-rt})")
        for i in range(4):
            k(f"v_dot2_f32_bf16 v{32+2*i}, v{48+4*rt+i}, s52, v{32+2*i}")
            k(f"v_dot2_f32_bf16 v{33+2*i}, v{48+4*rt+i}, s53, v{33+2*i}")
    for i in range(4):
        k(f"v_cvt_pk_bf16_f32 v{40+i}, v{32+2*i}, v{33+2*i}")
    KV, ZF, ZT = 32, 48, 64
    k(f"""
    ds_write_b128 v12, v[40:43]
    s_lshl_b32 s35, s49, 12
    s_add_u32 s35, s35, {KVL}
    v_add_u32 v12, s35, v10
    s_lshl_b32 s35, s49, 8
    s_add_u32 s35, s35, {KVL+8192}
    v_lshlrev_b32 v13, 4, v3
    v_add_u32 v13, s35, v13
    s_lshl_b32 s36, s4, 2
    s_add_u32 s36, s36, s51
    s_lshl_b32 s36, s36, 16
    s_lshl_b32 s35, s50, 11
    s_add_u32 s36, s36, s35
    s_add_u32 s36, s36, {hex(WS_O[oi])}
    s_waitcnt lgkmcnt(0)
    s_barrier
    """)
    stamp(k, tag + "_bc")
    for s_ in range(4):
        k(f"ds_read_b128 {vr(KV+4*s_,4)}, v12 offset:{1024*s_}")
    for se in range(8):
        k(f"ds_read_b128 {vr(ZT+4*se,4)}, v13 offset:{32*se}")
    NUM, DEN = 176, 96
    k("s_waitcnt lgkmcnt(8)")
    for s_ in range(4):
        k(M32(NUM, KV + 4 * s_, PHQ + 4 * s_, "0" if s_ == 0 else None))
    k("s_waitcnt lgkmcnt(0)\ns_barrier")
    for i in range(16):
        k(f"v_cvt_pk_bf16_f32 v{ZF+i}, v{ZT+2*i}, v{ZT+2*i+1}")
    for s_ in range(4):
        k(M32(DEN, ZF + 4 * s_, PHQ + 4 * s_, "0" if s_ == 0 else None))
    k(f"v_add_f32 v{DEN}, {f32(1e-6)}, v{DEN}\nv_rcp_f32 v{DEN}, v{DEN}\nv_mov_b32 v{DEN+1}, v{DEN}")
    pk_mul(k, NUM, NUM, DEN, 16)
    for i in range(8):
        k(f"v_cvt_pk_bf16_f32 v{112+i}, v{NUM+2*i}, v{NUM+2*i+1}")
    for t in range(2):
        k(f"buffer_store_dwordx4 {vr(112+4*t,4)}, v10, s[16:19], s36 offen offset:{1024*t} sc1")
    stamp(k, tag + "_st")
    k("s_waitcnt vmcnt(0)")
    stamp(k, tag + "_drain")
    signal(k, flag_off(rep, F_OA), "s4", 8, cnt_o)


def gen_mega():
    k = Kern("interleave_layers__linear_kernel_hedgehog__grouped_kv_mqa__prompt_kernel")
    k(f"""
    s_cmp_ge_u32 s2, 256
    s_cbranch_scc1 mega_exit
    s_load_dwordx16 s[64:79], s[0:1], 0
    s_load_dwordx8 s[80:87], s[0:1], 64
    v_lshrrev_b32 v1, 6, v0
    s_nop 0
    v_readfirstlane_b32 s3, v1
    v_and_b32 v1, 63, v0
    v_and_b32 v2, 31, v1
    v_lshrrev_b32 v3, 5, v1
    v_cmp_eq_u32 s[40:41], 1, v3
    s_waitcnt lgkmcnt(0)
    """)
    if PROF:
        k("v_mov_b32 v255, 0\nv_mov_b32 v254, 0\ns_memrealtime s[88:89]\ns_waitcnt lgkmcnt(0)\nv_writelane_b32 v255, s88, 0")
        stamp(k, "start")
    srd(k, 16, P_WS, WS_END)
    for rep in range(2):
        lin = 2 * rep
        phase_qkva(k, f"qa{rep}", rep, lin, 2 * rep, (flag_off(0, F_XB), "s4", 16) if rep else None)
        phase_wo(k, f"wa{rep}", P_WOA, lin, 2 * rep, (flag_off(rep, F_OA), "s4", 16), flag_off(rep, F_XA), False)
        phase_qkvb(k, f"qb{rep}", rep, lin + 1, (flag_off(rep, F_XA), "s4", 16))
        phase_attn(k, f"at{rep}", rep, 2 * rep + 1)
        phase_wo(k, f"wb{rep}", P_WOB, lin + 1, 2 * rep + 1, (flag_off(rep, F_OB), "s4", 16), flag_off(rep, F_XB),
                 rep == 1)
    stamp(k, "end")
    if PROF:
        k(f"""s_memrealtime s[88:89]
        s_waitcnt lgkmcnt(0)
        v_writelane_b32 v255, s88, 1
        s_add_u32 s84, s{P_WS}, {hex(WS_PROF)}
        s_addc_u32 s85, s{P_WS+1}, 0
        s_and_b32 s85, s85, 0xffff
        s_mov_b32 s86, 0x100000
        s_mov_b32 s87, 0x20000
        s_lshl_b32 s88, s2, 3
        s_add_u32 s88, s88, s3
        s_lshl_b32 s88, s88, 9
        v_lshlrev_b32 v0, 2, v1
        buffer_store_dword v255, v0, s[84:87], s88 offen
        buffer_store_dword v254, v0, s[84:87], s88 offen offset:256""")
    k("mega_exit:\ns_endpgm")
    return k, (256, 512, 163840)


def main():
    ks = [gen_mega()]
    hdr = open("interleave_layers__linear_kernel_hedgehog__grouped_kv_mqa__prompt.s.ref").read()
    hdr = "".join(l + "\n" for l in hdr.split("\n") if l.startswith(";") and "@launch" not in l and "Override" not in l and "grid=ceil" not in l)
    out = hdr
    for kern, (g, b, l) in ks:
        if "list" in sys.argv:
            out += f"; @launch kernel={kern.name} grid=({g},1,1) block=({b},1,1) lds={l}\n"
        else:
            out += f"; @launch grid=({g},1,1) block=({b},1,1) lds={l}\n"
    if PROF:
        out += "; STAMPS " + " ".join(f"{n}={i}" for n, i in STAMPS.items()) + "\n"
    out += '.amdgcn_target "amdgcn-amd-amdhsa--gfx950"\n.text\n'
    for kern, geo in ks:
        out += kern.text()
    out += '.section .rodata,"a"\n'
    for kern, geo in ks:
        out += kern.desc()
    sys.stdout.write(out)


if __name__ == "__main__":
    main()
```

```python
import sys, struct, math
from asmlib import Kern, vr, sr

S, D, H, DH = 2048, 1024, 32, 32
KA_X, KA_WQKV, KA_WPHI, KA_WOA, KA_BX, KA_WQ, KA_WK, KA_WV, KA_WOB, KA_OUT, KA_DBG, KA_WS = [8 * i for i in range(12)]
P_X, P_WQKV, P_WPHI, P_WOA, P_BX, P_WQ, P_WK, P_WV, P_WOB, P_OUT, P_DBG, P_WS = [64 + 2 * i for i in range(12)]
MB = 1 << 20
WS_X = [None, 0 * MB, 4 * MB, 8 * MB]
WS_O = [12 * MB, 16 * MB, 20 * MB, 24 * MB]
WS_KVP = [28 * MB, 32 * MB]
WS_KV = [36 * MB, 36 * MB + 0x40000]
WS_ZP = [37 * MB, 37 * MB + 0x20000]
WS_ST = [38 * MB + i * 0x40000 for i in range(4)]
WS_CSA = 39 * MB
WS_CSB = 39 * MB + 0x40000
WS_FL = 40 * MB
WS_END = 48 * MB
WS_PROF = 64 * MB
LOG2E = 1.4426950408889634
ONES2 = "0x3f803f80"
PROF = "prof" in sys.argv
X_NOLOAD = "noload" in sys.argv
X_NOMFMA = "nomfma" in sys.argv
NST = 16
F_COL, F_OA, F_XA, F_KVB, F_OB, F_XB = range(6)


def flag_off(rep, grp):
    return WS_FL + (rep * 6 + grp) * 4096


def f32(x):
    return "0x%08x" % struct.unpack("<I", struct.pack("<f", x))[0]


def srd(k, d, ptr, nbytes):
    k(f"""s_mov_b32 s{d}, s{ptr}
    s_and_b32 s{d+1}, s{ptr+1}, 0xffff
    s_mov_b32 s{d+2}, {hex(nbytes)}
    s_mov_b32 s{d+3}, 0x20000""")


def srd_off(k, d, ptr, off, nbytes):
    k(f"""s_add_u32 s{d}, s{ptr}, {hex(off)}
    s_addc_u32 s{d+1}, s{ptr+1}, 0
    s_and_b32 s{d+1}, s{d+1}, 0xffff
    s_mov_b32 s{d+2}, {hex(nbytes)}
    s_mov_b32 s{d+3}, 0x20000""")


STAMPS = {}


def stamp(k, name):
    if not PROF:
        return
    idx = STAMPS.setdefault(name, len(STAMPS) + 2)
    assert idx < 128
    ins = "s_memtime" if "cyc" in sys.argv else "s_memrealtime"
    k(f"{ins} s[88:89]\ns_waitcnt lgkmcnt(0)\nv_writelane_b32 v{255 - idx // 64}, s88, {idx % 64}")


def M32(d, a, b, c=None):
    c = vr(d, 16) if c is None else c
    return f"v_mfma_f32_32x32x16_bf16 {vr(d,16)}, {vr(a,4)}, {vr(b,4)}, {c}"


def M16(d, a, b, c=None):
    c = vr(d, 4) if c is None else c
    return f"v_mfma_f32_16x16x32_bf16 {vr(d,4)}, {vr(a,4)}, {vr(b,4)}, {c}"


def gen_prep():
    k = Kern("prep_kernel")
    NWG = 258 + 64
    k(f"""
    s_cmp_ge_u32 s2, {NWG}
    s_cbranch_scc1 prep_end
    s_load_dwordx4 s[4:7], s[0:1], {KA_X}
    s_load_dwordx4 s[8:11], s[0:1], {KA_WQ}
    s_load_dwordx2 s[12:13], s[0:1], {KA_WV}
    s_load_dwordx2 s[14:15], s[0:1], {KA_WS}
    s_load_dwordx2 s[36:37], s[0:1], {KA_WOA}
    s_load_dwordx2 s[38:39], s[0:1], {KA_WOB}
    v_lshrrev_b32 v1, 6, v0
    v_and_b32 v2, 63, v0
    v_readfirstlane_b32 s3, v1
    s_waitcnt lgkmcnt(0)
    """)
    srd(k, 16, 14, WS_END)
    k("""s_cmp_ge_u32 s2, 258
    s_cbranch_scc1 prep_touch
    s_cmp_ge_u32 s2, 128
    s_cbranch_scc1 prep_cols""")
    srd(k, 20, 4, S * D * 2)
    k(f"""
    s_lshl_b32 s24, s2, 4
    s_lshl_b32 s25, s3, 2
    s_add_u32 s24, s24, s25
    s_lshl_b32 s25, s24, 11
    v_lshlrev_b32 v3, 4, v2
    s_mov_b32 s26, {ONES2}
    """)
    for i in range(4):
        k(f"buffer_load_dwordx4 {vr(8+8*i,4)}, v3, s[20:23], s25 offen offset:0")
        k(f"buffer_load_dwordx4 {vr(12+8*i,4)}, v3, s[20:23], s25 offen offset:1024")
        k(f"s_add_u32 s25, s25, 2048")
    k(f"""
    s_cmp_ge_u32 s2, 12
    s_cbranch_scc1 prep_nz
    v_mov_b32 v44, 0
    v_mov_b32 v45, 0
    v_mov_b32 v46, 0
    v_mov_b32 v47, 0
    v_lshlrev_b32 v4, 4, v0
    s_lshl_b32 s25, s2, 12
    s_add_u32 s25, s25, {hex(WS_FL)}
    buffer_store_dwordx4 v[44:47], v4, s[16:19], s25 offen
    prep_nz:
    v_and_b32 v4, 1, v2
    v_lshlrev_b32 v4, 7, v4
    v_lshrrev_b32 v5, 2, v2
    v_lshl_add_u32 v4, v5, 10, v4
    s_lshr_b32 s25, s24, 7
    s_lshl_b32 s25, s25, 14
    s_bfe_u32 s27, s24, 0x20005
    s_lshl_b32 s27, s27, 8
    s_add_u32 s25, s25, s27
    s_and_b32 s27, s24, 31
    s_lshl_b32 s28, s27, 2
    s_add_u32 s25, s25, s28
    s_add_u32 s25, s25, {hex(WS_ST[0])}
    v_lshrrev_b32 v6, 1, v2
    v_lshlrev_b32 v6, 10, v6
    v_and_b32 v5, 1, v2
    v_lshl_add_u32 v6, v5, 9, v6
    s_lshr_b32 s29, s24, 5
    s_lshl_b32 s29, s29, 16
    s_lshl_b32 s28, s27, 4
    s_add_u32 s29, s29, s28
    s_add_u32 s29, s29, {hex(WS_X[0])}
    s_add_u32 s30, s29, 32768
    v_cmp_eq_u32 vcc, 1, v5
    s_waitcnt vmcnt(0)
    """)
    for i in range(4):
        k("v_mov_b32 v40, 0\nv_mov_b32 v41, 0")
        for j in range(8):
            k(f"v_dot2_f32_bf16 v40, v{8+8*i+j}, s26, v40")
            k(f"v_dot2_f32_bf16 v41, v{8+8*i+j}, v{8+8*i+j}, v41")
        k("""v_cndmask_b32 v42, v40, v41, vcc
        v_cndmask_b32 v43, v41, v40, vcc
        v_add_f32_dpp v42, v43, v42 quad_perm:[1,0,3,2] row_mask:0xf bank_mask:0xf
        v_add_f32_dpp v48, v42, v42 quad_perm:[2,3,0,1] row_mask:0xf bank_mask:0xf
        """)
        k(f"buffer_store_dword v48, v4, s[16:19], s25 offen offset:{4*i}")
        for hf in range(2):
            a_ = 8 + 8 * i + 4 * hf
            o_ = 52 + 8 * i + 4 * hf
            k(f"""v_cndmask_b32 v50, v{a_+2}, v{a_}, vcc
            v_cndmask_b32 v51, v{a_+3}, v{a_+1}, vcc
            v_mov_b32_dpp v50, v50 quad_perm:[1,0,3,2] row_mask:0xf bank_mask:0xf
            v_mov_b32_dpp v51, v51 quad_perm:[1,0,3,2] row_mask:0xf bank_mask:0xf
            v_cndmask_b32 v{o_}, v{a_}, v50, vcc
            v_cndmask_b32 v{o_+1}, v{a_+1}, v51, vcc
            v_cndmask_b32 v{o_+2}, v50, v{a_+2}, vcc
            v_cndmask_b32 v{o_+3}, v51, v{a_+3}, vcc
            buffer_store_dwordx4 {vr(o_,4)}, v6, s[16:19], s{29+hf} offen offset:{16*i}""")
    k("s_endpgm")
    k(f"""prep_touch:
    s_sub_u32 s24, s2, 258
    s_cmp_ge_u32 s24, 32
    s_cselect_b32 s32, s38, s36
    s_cselect_b32 s33, s39, s37
    s_and_b32 s24, s24, 31
    s_lshl_b32 s24, s24, 16
    v_lshlrev_b32 v3, 4, v0
    """)
    srd(k, 20, 32, D * D * 2)
    for i in range(16):
        k(f"buffer_load_dwordx4 {vr(16+4*i,4)}, v3, s[20:23], s24 offen")
        k("s_add_u32 s24, s24, 4096")
    k("s_waitcnt vmcnt(0)\ns_endpgm")
    k("prep_cols:")
    k(f"""
    s_sub_u32 s24, s2, 128
    s_and_b32 s25, s24, 3
    s_lshr_b32 s26, s24, 2
    s_cmp_ge_u32 s2, 256
    s_cbranch_scc1 prep_small
    s_cmp_ge_u32 s2, 224
    s_cbranch_scc1 prep_wq
    """)
    srd(k, 20, 6, D * 3 * D * 2)
    k(f"""s_mov_b32 s27, 6144
    s_lshl_b32 s28, s26, 11
    s_add_u32 s28, s28, {hex(WS_CSA)}
    s_branch prep_big
    prep_wq:""")
    srd(k, 20, 8, D * D * 2)
    k(f"""s_mov_b32 s27, 2048
    s_sub_u32 s26, s26, 24
    s_lshl_b32 s28, s26, 11
    s_add_u32 s28, s28, {hex(WS_CSB)}
    prep_big:
    s_lshl_b32 s29, s25, 8
    s_lshl_b32 s30, s3, 6
    s_add_u32 s29, s29, s30
    s_mul_i32 s29, s29, s27
    s_lshl_b32 s30, s26, 8
    s_add_u32 s29, s29, s30
    s_lshl_b32 s30, s25, 2
    s_add_u32 s28, s28, s30
    v_lshlrev_b32 v6, 4, v0
    s_mov_b32 s31, 0
    s_branch prep_sum
    prep_small:
    s_cmp_eq_u32 s2, 257
    s_cselect_b32 s32, s12, s10
    s_cselect_b32 s33, s13, s11
    s_cselect_b32 s28, 512, 0
    s_add_u32 s28, s28, {hex(WS_CSB + 1024*16)}
    """)
    srd(k, 20, 32, D * 32 * 2)
    k(f"""s_mov_b32 s27, 256
    s_lshl_b32 s29, s3, 14
    v_and_b32 v6, 31, v0
    v_lshlrev_b32 v6, 4, v6
    v_lshrrev_b32 v7, 5, v0
    v_lshl_add_u32 v6, v7, 2, v6
    s_mov_b32 s31, 1
    prep_sum:
    v_lshrrev_b32 v3, 4, v2
    v_mul_lo_u32 v3, v3, s27
    v_and_b32 v4, 15, v2
    v_lshl_add_u32 v3, v4, 4, v3
    s_lshl_b32 s30, s27, 2
    """)
    for i in range(16):
        k(f"buffer_load_dwordx4 {vr(16+4*i,4)}, v3, s[20:23], s29 offen")
        k("s_add_u32 s29, s29, s30")
    k("s_mov_b32 s34, 0x3f80\ns_mov_b32 s35, 0x3f800000")
    for j in range(8):
        k(f"v_mov_b32 v{8+j}, 0")
    for i in range(16):
        k(f"s_waitcnt vmcnt({15-i})")
        for j in range(4):
            k(f"v_dot2_f32_bf16 v{8+2*j}, v{16+4*i+j}, s34, v{8+2*j}")
            k(f"v_dot2_f32_bf16 v{9+2*j}, v{16+4*i+j}, s35, v{9+2*j}")
    k(f"""
    v_lshlrev_b32 v3, 5, v0
    ds_write_b128 v3, v[8:11]
    ds_write_b128 v3, v[12:15] offset:16
    s_waitcnt lgkmcnt(0)
    s_barrier
    s_cmp_ge_u32 s3, 2
    s_cbranch_scc1 prep_end
    s_cmp_eq_u32 s31, 1
    s_cbranch_scc1 prep_red_small
    v_lshlrev_b32 v3, 2, v0
    """)
    for g in range(16):
        k(f"ds_read_b32 v{16+g}, v3 offset:{g*512}")
    k(f"""s_branch prep_red
    prep_red_small:
    v_and_b32 v3, 31, v0
    v_lshlrev_b32 v3, 2, v3
    v_lshrrev_b32 v4, 5, v0
    v_lshl_add_u32 v3, v4, 11, v3
    """)
    for g in range(16):
        k(f"ds_read_b32 v{16+g}, v3 offset:{(g>>2)*512 + (g&3)*128}")
    k("prep_red:\ns_waitcnt lgkmcnt(0)")
    for st in (8, 4, 2, 1):
        for g in range(st):
            k(f"v_add_f32 v{16+g}, v{16+g}, v{16+g+st}")
    k("""
    v_cvt_pk_bf16_f32 v17, v16, v16
    v_lshlrev_b32 v18, 16, v17
    v_sub_f32 v18, v16, v18
    v_cvt_pk_bf16_f32 v17, v16, v18
    buffer_store_dword v17, v6, s[16:19], s28 offen
    prep_end:
    s_endpgm
    """)
    return k, (NWG, 256, 8192)


def tile_map(k, mode):
    if mode == "4x8":
        k("""s_and_b32 s6, s2, 7
        s_lshr_b32 s7, s2, 3
        s_lshr_b32 s4, s6, 1
        s_lshl_b32 s4, s4, 2
        s_lshr_b32 s5, s7, 3
        s_add_u32 s4, s4, s5
        s_and_b32 s5, s6, 1
        s_lshl_b32 s5, s5, 3
        s_and_b32 s7, s7, 7
        s_add_u32 s5, s5, s7""")
    elif mode == "8x4":
        k("""s_and_b32 s6, s2, 7
        s_lshr_b32 s7, s2, 3
        s_lshr_b32 s4, s6, 2
        s_lshl_b32 s4, s4, 3
        s_lshr_b32 s5, s7, 2
        s_add_u32 s4, s4, s5
        s_and_b32 s5, s6, 3
        s_lshl_b32 s5, s5, 2
        s_and_b32 s7, s7, 3
        s_add_u32 s5, s5, s7""")


def lines(txt):
    return [l.strip() for l in txt.split("\n") if l.strip()]


def ln_stats(tmp, out_rstd, out_bop, single=False):
    t = tmp
    o = []
    for g in range(0, 8, 2):
        o.append(f"v_pk_add_f32 {vr(t+g,2)}, {vr(t+g,2)}, {vr(t+g+8,2)}")
    for g in range(0, 4, 2):
        o.append(f"v_pk_add_f32 {vr(t+g,2)}, {vr(t+g,2)}, {vr(t+g+4,2)}")
    o.append(f"v_pk_add_f32 {vr(t,2)}, {vr(t,2)}, {vr(t+2,2)}")
    o.append(f"v_add_f32 v{t}, v{t}, v{t+1}")
    if single:
        o = []
    o += lines(f"""
    v_mul_f32 v{t}, {f32(1.0/D)}, v{t}
    v_mov_b32 v{t+1}, v{t}
    v_permlane32_swap_b32 v{t}, v{t+1}
    v_fma_f32 v{t+1}, -v{t}, v{t}, v{t+1}
    v_max_f32 v{t+1}, 0, v{t+1}
    v_add_f32 v{t+1}, {f32(1e-5)}, v{t+1}
    v_rsq_f32 v{out_rstd}, v{t+1}
    """)
    if out_bop is not None:
        o += lines(f"""
        v_sub_f32 v{t}, 0, v{t}
        v_cvt_pk_bf16_f32 v{t+2}, v{t}, v{t}
        v_lshlrev_b32 v{t+3}, 16, v{t+2}
        v_sub_f32 v{t+3}, v{t}, v{t+3}
        v_cvt_pk_bf16_f32 v{t+3}, v{t+3}, v{t+3}
        v_cndmask_b32 v{out_bop}, v{t+2}, v{t+3}, s[40:41]
        v_mov_b32 v{out_bop+1}, v{out_bop}
        v_mov_b32 v{out_bop+2}, v{out_bop}
        v_mov_b32 v{out_bop+3}, v{out_bop}
        """)
    return o


def pk_mul(k, dst, src, sc, n):
    for i in range(0, n, 2):
        k(f"v_pk_mul_f32 {vr(dst+i,2)}, {vr(src+i,2)}, {vr(sc,2)}")


def feat_map(k, src, cvec, tmp, outp):
    t = tmp
    a, b, c, d = t + 32, t + 34, t + 36, t + 38
    k(f"v_max3_f32 v{a}, v{src}, v{src+1}, v{src+2}\nv_min3_f32 v{b}, v{src}, v{src+1}, v{src+2}")
    for i in range(3, 15, 2):
        k(f"v_max3_f32 v{a}, v{a}, v{src+i}, v{src+i+1}\nv_min3_f32 v{b}, v{b}, v{src+i}, v{src+i+1}")
    k(f"""v_max_f32 v{a}, v{a}, v{src+15}
    v_min_f32 v{b}, v{b}, v{src+15}
    v_mov_b32 v{c}, v{a}
    v_mov_b32 v{d}, v{b}
    v_permlane32_swap_b32 v{a}, v{c}
    v_permlane32_swap_b32 v{b}, v{d}
    v_max_f32 v{a}, v{a}, v{c}
    v_min_f32 v{b}, v{b}, v{d}
    v_mul_f32 v{a}, v{a}, v{cvec}
    v_mul_f32 v{b}, v{b}, v{cvec}
    v_mov_b32 v{a+1}, v{a}
    v_mov_b32 v{b+1}, v{b}
    """)
    for i in range(0, 16, 2):
        k(f"v_pk_fma_f32 {vr(t+i,2)}, {vr(src+i,2)}, {vr(cvec,2)}, {vr(a,2)} neg_lo:[0,0,1] neg_hi:[0,0,1]")
        k(f"v_pk_fma_f32 {vr(t+16+i,2)}, {vr(src+i,2)}, {vr(cvec,2)}, {vr(b,2)} neg_lo:[1,0,0] neg_hi:[1,0,0]")
    for i in range(32):
        k(f"v_exp_f32 v{t+i}, v{t+i}")
    k(f"v_pk_add_f32 {vr(a,2)}, {vr(t,2)}, {vr(t+2,2)}\nv_pk_add_f32 {vr(b,2)}, {vr(t+16,2)}, {vr(t+18,2)}")
    for i in range(4, 16, 2):
        k(f"v_pk_add_f32 {vr(a,2)}, {vr(a,2)}, {vr(t+i,2)}\nv_pk_add_f32 {vr(b,2)}, {vr(b,2)}, {vr(t+16+i,2)}")
    k(f"""v_add_f32 v{a}, v{a}, v{a+1}
    v_add_f32 v{b}, v{b}, v{b+1}
    v_mov_b32 v{c}, v{a}
    v_mov_b32 v{d}, v{b}
    v_permlane32_swap_b32 v{a}, v{c}
    v_permlane32_swap_b32 v{b}, v{d}
    v_add_f32 v{a}, v{a}, v{c}
    v_add_f32 v{b}, v{b}, v{d}
    v_rcp_f32 v{a}, v{a}
    v_rcp_f32 v{b}, v{b}
    v_mov_b32 v{a+1}, v{a}
    v_mov_b32 v{b+1}, v{b}
    """)
    pk_mul(k, t, t, a, 16)
    pk_mul(k, t + 16, t + 16, b, 16)
    for i in range(16):
        k(f"v_cvt_pk_bf16_f32 v{outp+i}, v{t+2*i}, v{t+2*i+1}")


def ones_pattern(k, dst, t0, t1):
    k(f"""v_bfe_u32 v{t0}, v1, 2, 1
    v_bfe_u32 v{t1}, v1, 4, 1
    v_cmp_eq_u32 vcc, v{t0}, v{t1}
    v_mov_b32 v{t0}, {ONES2}
    v_cndmask_b32 v{dst}, 0, v{t0}, vcc
    v_mov_b32 v{dst+1}, v{dst}
    v_mov_b32 v{dst+2}, v{dst}
    v_mov_b32 v{dst+3}, v{dst}""")


def wphi_loads(k, WP, headsreg):
    k(f"""v_lshlrev_b32 v10, 1, v2
    v_lshl_add_u32 v10, v3, 8, v10
    s_lshl_b32 s34, {headsreg}, 11""")
    for t in range(2):
        for e in range(2):
            for j in range(4):
                k(f"buffer_load_ushort v{WP+8*t+4*e+j}, v10, s[20:23], s34 offen offset:{(16*t+8*e+j)*64}")


CNT = 163840 - 64
_cnt = [0]


def new_cnt():
    _cnt[0] = (_cnt[0] + 1) % 16
    return CNT + 4 * _cnt[0]


def zero_cnt(k, addr):
    k(f"v_mov_b32 v4, {addr}\nv_mov_b32 v5, 0\nds_write_b32 v4, v5")


def signal(k, base, idx_sreg, nw=1, cnt=None):
    L = k.label("sig")
    k(f"""s_lshl_b32 s34, {idx_sreg}, 8
    s_add_u32 s34, s34, {hex(base)}
    v_mov_b32 v4, 1
    v_mov_b32 v5, 0
    s_mov_b64 exec, 1""")
    if nw > 1:
        k(f"""v_mov_b32 v6, {cnt}
        ds_add_rtn_u32 v7, v6, v4
        s_waitcnt lgkmcnt(0)
        v_readfirstlane_b32 s35, v7
        s_cmp_eq_u32 s35, {nw-1}
        s_cbranch_scc0 {L}""")
    k(f"""buffer_atomic_add v4, v5, s[16:19], s34 offen sc1
    {L}:
    s_mov_b64 exec, -1""")


def wait_flag(k, base, idx_sreg, target, all16=False, sa=52, sb=53):
    L = k.label("poll")
    if all16:
        k(f"""v_and_b32 v4, 15, v1
        v_lshlrev_b32 v4, 8, v4
        s_mov_b32 s{sa}, {hex(base)}""")
    else:
        k(f"""v_mov_b32 v4, 0
        s_lshl_b32 s{sa}, {idx_sreg}, 8
        s_add_u32 s{sa}, s{sa}, {hex(base)}""")
    k(f"""s_mov_b32 s{sb}, 0
    {L}:
    buffer_load_dword v5, v4, s[16:19], s{sa} offen sc1
    s_waitcnt vmcnt(0)
    v_cmp_gt_u32 vcc, {target}, v5
    s_cbranch_vccz {L}_ok
    s_add_u32 s{sb}, s{sb}, 1
    s_cmp_lt_u32 s{sb}, 0x40000
    s_cbranch_scc1 {L}
    {L}_ok:""")


class VQ:
    def __init__(self):
        self.q = []

    def add(self, tag, n=1):
        self.q += [tag] * n

    def cnt(self, tag):
        last = max(i for i, t in enumerate(self.q) if t == tag)
        return len(self.q) - 1 - last


def gemm_loader(k, nseg, wstride, R, stage_bytes, extra, relaxed, tag, wt, pre=None, mid=None, npre=None,
                preflag=None, first=1, lims=None, rm=False):
    if pre:
        pre()
    k(f"""
    s_sub_u32 s30, s3, 4
    v_lshrrev_b32 v6, 3, v1
    v_and_b32 v7, 7, v1
    s_lshl_b32 s31, s30, 4
    s_mov_b32 s33, {wstride}
    v_lshrrev_b32 v5, 1, v6
    v_and_b32 v5, 1, v5
    v_lshlrev_b32 v5, 2, v5
    v_xor_b32 v5, v5, v7
    v_lshlrev_b32 v5, 4, v5
    s_lshl_b32 s32, s5, 7
    v_add_u32 v5, s32, v5
    """)
    for jj in range(2):
        k(f"""
        v_add_u32 v4, {8*jj}, v6
        v_add_u32 v4, s31, v4
        v_mul_lo_u32 v4, v4, s33
        v_add_u32 v{12+jj}, v4, v5
        """)
        if jj:
            k(f"v_subrev_u32 v{12+jj}, {1024*jj}, v{12+jj}")
    for p in range(1, nseg):
        for jj in range(2):
            k(f"v_add_u32 v{12+2*p+jj}, {2048*p}, v{12+jj}")
    k("v_lshlrev_b32 v8, 4, v1")
    if extra:
        k(f"""s_lshl_b32 s31, s30, 10
        v_add_u32 v20, s31, v8""")
    k(f"""
    s_lshl_b32 s34, s30, 12
    s_lshl_b32 s35, s30, 11
    s_add_u32 s35, s35, 16384
    s_lshl_b32 s36, s30, 10
    s_add_u32 s36, s36, {16384 + nseg*8192}
    s_lshl_b32 s37, s4, 2
    s_add_u32 s37, s37, s30
    s_lshl_b32 s37, s37, 16
    s_mov_b32 s38, 0
    s_mov_b32 s39, 0
    """)
    if rm:
        k(f"""s_lshl_b32 s31, s4, 7
        s_lshl_b32 s32, s30, 5
        s_add_u32 s31, s31, s32
        s_add_u32 s61, s4, s5
        s_and_b32 s61, s61, 15
        s_mov_b32 s62, s61
        s_lshl_b32 s37, s61, 7
        s_mul_i32 s38, s61, {64*wstride}""")
        for jj in range(4):
            k(f"""
            v_add_u32 v4, {8*jj}, v6
            v_lshrrev_b32 v5, 1, v4
            v_and_b32 v5, 7, v5
            v_xor_b32 v5, v5, v7
            v_add_u32 v4, s31, v4
            v_lshlrev_b32 v4, 11, v4
            v_lshl_add_u32 v{20+jj}, v5, 4, v4
            """)
            if jj:
                k(f"v_subrev_u32 v{20+jj}, {1024*jj}, v{20+jj}")
    q = VQ()

    def issueW(st):
        slot = (st % R) * stage_bytes
        for p in range(nseg):
            k(f"s_add_u32 m0, s35, {slot + p*8192}")
            for jj in range(2):
                if not (X_NOLOAD and st >= R):
                    k(f"buffer_load_dwordx4 v{12+2*p+jj}, s[12:15], s38 offen offset:{1024*jj} lds")
                q.add(("s", st))
        if extra:
            k(f"s_add_u32 m0, s36, {slot}")
            k(f"buffer_load_dwordx4 v20, s[20:23], s39 offen lds")
            q.add(("s", st))
            k("s_add_u32 s39, s39, 4096")
        if rm:
            k(f"s_cmp_le_u32 s61, {st}\ns_cselect_b32 s62, {st+1}, {st}\ns_mul_i32 s38, s62, {64*wstride}")
        else:
            k(f"s_add_u32 s38, s38, {64*wstride}")

    def issueX(st):
        slot = (st % R) * stage_bytes
        k(f"s_add_u32 m0, s34, {slot}")
        for jj in range(4):
            if X_NOLOAD and st >= R:
                pass
            elif rm:
                k(f"buffer_load_dwordx4 v{20+jj}, s[8:11], s37 offen offset:{1024*jj} lds")
            else:
                k(f"buffer_load_dwordx4 v8, s[8:11], s37 offen offset:{1024*jj} sc1 lds")
            q.add(("s", st))
        if rm:
            k(f"s_cmp_le_u32 s61, {st}\ns_cselect_b32 s62, {st+1}, {st}\ns_lshl_b32 s37, s62, 7")
        else:
            k("s_add_u32 s37, s37, 4096")

    if wt:
        P_ = R if R * stage_bytes <= CNT else R - 1
        if npre is not None:
            P_ = npre
        for st in range(P_):
            issueW(st)
        if preflag:
            preflag(q)
        NPL = k.label("np")
        k(f"s_cmp_lg_u32 s3, 4\ns_cbranch_scc1 {NPL}")
        wait_flag(k, *wt)
        k(f"{NPL}:\ns_waitcnt vmcnt(0)\ns_barrier")
        stamp(k, tag + "_flag")
        xi, wi = 0, P_
    else:
        xi, wi = 0, 0
    D_ = R - 2 if relaxed else R - 1

    def upto(lim):
        nonlocal xi, wi
        while xi <= lim or wi <= lim:
            if xi <= lim:
                issueX(xi)
                xi += 1
            if wi <= lim and wi < xi:
                issueW(wi)
                wi += 1

    upto(first)
    for i in range(NST):
        k(f"s_waitcnt vmcnt({q.cnt(('s', i))})")
        k("s_barrier")
        lim = min(NST - 1, max(R - 1, i + D_))
        if lims and i in lims:
            lim = lims[i]
        upto(lim)
        if mid and i in mid:
            mid[i](q)


def gemm_compute(k, R, stage_bytes, A, bases, xoffs, waddr_list, frag_base, mfmas, nfragregs, ab, tag, nbuf=4,
                 per=None, filler=None, fper=3, after_b0=None, e2=True, after_e2=None, rm=False, late=None, pre_m=0, at_iter=None, mf_first=None, after_first=None):
    loopname = k.label(tag + "_loop")

    def upd():
        for i, b in enumerate(bases):
            k(f"v_add_u32 v{ab+i}, s32, v{b}")

    def reads(t):
        out = []
        fr = frag_base + (t % nbuf) * nfragregs
        for i, xo in enumerate(xoffs):
            if rm:
                out.append(f"ds_read_b128 {vr(fr+4*i,4)}, v{ab+t} offset:{xo}")
            else:
                out.append(f"ds_read_b128 {vr(fr+4*i,4)}, v{ab} offset:{xo + 1024*t}")
        fr += 4 * len(xoffs)
        for i, (wi, wo, rb) in enumerate(waddr_list):
            for rd in range(2):
                if rm:
                    out.append(f"ds_read_b64_tr_b16 {vr(fr+4*i+2*rd,2)}, v{ab+wi+3} offset:{wo + (16*t+4*rd)*rb}")
                else:
                    out.append(f"ds_read_b64_tr_b16 {vr(fr+4*i+2*rd,2)}, v{ab+wi} offset:{wo + (16*t+8*rd)*rb}")
        return out

    n = len(reads(0))

    def stage(last, fill, mfmas=mfmas):
        for t in range(4):
            nxt = t + A
            rd = []
            if nxt < 4:
                rd = reads(nxt)
            elif not last:
                rd = reads(nxt - 4)
            young = sum(1 for u in range(t + 1, t + A) if (u < 4 or not last)) * n
            k(f"s_waitcnt lgkmcnt({min(young,15)})")
            ms = mfmas(frag_base + (t % nbuf) * nfragregs, t)
            if X_NOMFMA:
                ms, rd = ms[:1], []
            p = per or max(1, -(-len(rd) // max(1, len(ms) - 1)))
            if nxt == 4 and not last:
                k(f"""s_add_u32 s32, s32, {stage_bytes}
                s_cmp_eq_u32 s32, {R*stage_bytes}
                s_cselect_b32 s32, 0, s32""")
                for m in ms[:pre_m]:
                    k(m)
                ms = ms[pre_m:]
                upd()
                k("s_barrier")
                if pre_m:
                    p = -(-len(rd) // max(1, len(ms) - 1 if len(ms) > 1 else 1))
                    for r_ in rd[:p]:
                        k(r_)
                    rd = rd[p:]
            if last and t == 3:
                k(ms[0])
                ms = ms[1:]
                k("s_barrier")
            for i, m in enumerate(ms):
                k(m)
                rr = rd[i * p:(i + 1) * p]
                for r_ in rr:
                    k(r_)
                for _ in range(max(0, fper + 2 - len(rr))):
                    if fill:
                        k(fill.pop(0))
            for r_ in rd[len(ms) * p:]:
                k(r_)
        while fill:
            k(fill.pop(0))

    k(f"s_mov_b32 s32, 0\ns_mov_b32 s33, 0")
    stamp(k, tag + "_b0pre")
    if e2:
        k("s_barrier")
    if after_e2:
        after_e2()
    k("s_barrier")
    stamp(k, tag + "_b0")
    upd()
    for t in range(A):
        for r_ in reads(t):
            k(r_)
    if after_b0:
        after_b0()
    nloop = min(late) if late else NST - 1
    if mf_first:
        stage(False, [], mf_first)
        k("s_mov_b32 s33, 1")
        after_first()
    k(f"{loopname}:")
    stage(False, [])
    for it_, fn_ in (at_iter or []):
        SKP = k.label("skip")
        k(f"s_cmp_eq_u32 s33, {it_}\ns_cbranch_scc0 {SKP}")
        fn_()
        k(f"{SKP}:")
    k(f"""s_add_u32 s33, s33, 1
    s_cmp_lt_u32 s33, {nloop}
    s_cbranch_scc1 {loopname}""")
    for st in range(nloop, NST - 1):
        stage(False, list(late.get(st, [])))
    stage(True, list(filler or []))
    stamp(k, tag + "_loopend")


def x_addr(k, dst, rowsreg):
    k(f"""
    v_add_u32 v4, {rowsreg}, v2
    v_bfe_u32 v5, v4, 1, 3
    v_lshlrev_b32 v4, 7, v4
    """)
    for t in range(4):
        k(f"""v_add_u32 v6, {2*t}, v3
        v_xor_b32 v6, v6, v5
        v_lshl_add_u32 v{dst+t}, v6, 4, v4""")


def hilo(src, dst, tmp):
    return lines(f"""v_cvt_pk_bf16_f32 v{tmp}, v{src}, v{src}
    v_lshlrev_b32 v{tmp}, 16, v{tmp}
    v_sub_f32 v{tmp}, v{src}, v{tmp}
    v_cvt_pk_bf16_f32 v{dst}, v{src}, v{tmp}""")


def cs_build(dst, src):
    return [f"v_mov_b32 v{dst}, v{src}"] + [f"v_mov_b32 v{dst+i}, 0" for i in (1, 2, 3)]


class Cap:
    def __init__(self):
        self.l = []

    def __call__(self, t):
        self.l += lines(t)


def w_tr_base(k, dst, col0, rb, swz, hs=2):
    k(f"""
    v_and_b32 v4, 15, v1
    v_lshrrev_b32 v5, 2, v4
    v_lshl_add_u32 v5, v3, {hs}, v5
    v_mul_u32_u24 v5, {rb}, v5
    v_and_b32 v6, 3, v4
    v_lshlrev_b32 v6, 3, v6
    v_bfe_u32 v7, v1, 4, 1
    v_lshl_add_u32 v6, v7, 5, v6
    v_add_u32 v6, {col0}, v6
    """)
    if swz:
        k(f"""v_bfe_u32 v7, v1, 3, 1
        v_lshlrev_b32 v7, 6, v7
        v_xor_b32 v6, v6, v7""")
    k(f"v_add_u32 v{dst}, v5, v6")


def stats_loads(k, dst, w32_sreg, tmpv, st_off, q=None):
    k(f"""v_lshlrev_b32 v{tmpv}, 2, v1
    s_lshl_b32 s54, s4, 14
    s_lshl_b32 s55, {w32_sreg}, 8
    s_add_u32 s54, s54, s55
    s_add_u32 s54, s54, {hex(st_off)}""")
    for c in range(16):
        k(f"buffer_load_dword v{dst+c}, v{tmpv}, s[16:19], s54 offen offset:{1024*(c&3)} sc1")
        if q is not None:
            q.add("stats")
        if c & 3 == 3 and c < 15:
            k("s_add_u32 s54, s54, 4096")


def phase_wo(k, tag, p_w, lin, oi, wt, sig_base, final):
    R, STG = 6, 24576
    LD, END = k.label(tag + "_ld"), k.label(tag + "_end")
    tile_map(k, "4x8")
    srd_off(k, 8, P_WS, WS_O[oi], S * D * 2)
    srd(k, 12, p_w, D * D * 2)
    if final:
        srd(k, 24, P_OUT, S * D * 2)
    if lin == 0:
        srd(k, 24, P_X, S * D * 2)
    k(f"s_cmp_ge_u32 s3, 4\ns_cbranch_scc1 {LD}")
    k(f"""
    s_lshl_b32 s30, s4, 2
    s_add_u32 s30, s30, s3
    s_lshl_b32 s36, s30, 16
    s_lshl_b32 s31, s5, 12
    s_add_u32 s36, s36, s31
    s_add_u32 s37, s36, {hex(WS_X[lin] or 0)}
    v_lshlrev_b32 v10, 4, v1
    s_lshl_b32 s31, s3, 12
    v_add_u32 v12, s31, v10
    """)
    w_tr_base(k, 13, "0", 128, True)
    k("v_xor_b32 v14, 64, v13")
    cnt = new_cnt()
    zero_cnt(k, cnt)
    k("s_waitcnt lgkmcnt(0)")
    ACC = 32
    for i in range(32):
        k(f"v_mov_b32 v{ACC+i}, 0")
    RES = 112

    rm_addr = lines(f"""s_lshl_b32 s31, s30, 5
        v_add_u32 v9, s31, v2
        v_lshlrev_b32 v9, 11, v9
        v_lshl_add_u32 v9, v3, 4, v9
        s_lshl_b32 s31, s5, 7
        v_add_u32 v9, s31, v9""")

    def res_loads():
        if lin == 0:
            for l_ in rm_addr:
                k(l_)
        for q in range(4):
            if lin == 0:
                k(f"buffer_load_dwordx4 {vr(RES+4*q,4)}, v9, s[24:27], 0 offen offset:{32*q}")
            else:
                k(f"buffer_load_dwordx4 {vr(RES+4*q,4)}, v10, s[16:19], s37 offen offset:{1024*q} sc1")

    def mf(fr, t):
        return [M32(ACC, fr + 4, fr), M32(ACC + 16, fr + 8, fr)]

    fill = ["s_waitcnt vmcnt(0)"]
    if lin == 0:
        for q in range(4):
            a = RES + 4 * q
            fill += [f"v_permlane32_swap_b32 v{a}, v{a+2}", f"v_permlane32_swap_b32 v{a+1}, v{a+3}"]
    UN = 128
    for i in range(16):
        fill += [f"v_lshlrev_b32 v{UN+2*i}, 16, v{RES+i}", f"v_and_b32 v{UN+2*i+1}, 0xffff0000, v{RES+i}"]
    if final:
        fill += rm_addr
    else:
        fill += lines(f"""s_add_u32 s37, s36, {hex(WS_X[lin+1])}
        s_mov_b32 s35, {ONES2}
        v_mov_b32 v24, 0
        v_mov_b32 v25, 0
        s_lshl_b32 s38, s4, 14
        s_lshl_b32 s31, s5, 10
        s_add_u32 s38, s38, s31
        s_lshl_b32 s31, s3, 8
        s_add_u32 s38, s38, s31
        s_add_u32 s38, s38, {hex(WS_ST[lin+1])}
        v_lshlrev_b32 v9, 2, v1""")
    gemm_compute(k, R, STG, 2, [12, 13, 14], [0], [(1, 16384, 128), (2, 16384, 128)], 64, mf, 12, 20,
                 tag, per=3, filler=fill, after_e2=res_loads, pre_m=1)
    for q in range(4):
        a = RES + 4 * q
        for j in range(4):
            ac = ACC + 8 * q + 2 * j
            k(f"v_pk_add_f32 {vr(ac,2)}, {vr(ac,2)}, {vr(UN+8*q+2*j,2)}")
        for j in range(4):
            ac = ACC + 8 * q + 2 * j
            k(f"v_cvt_pk_bf16_f32 v{a+j}, v{ac}, v{ac+1}")
        if final:
            k(f"v_permlane32_swap_b32 v{a}, v{a+2}\nv_permlane32_swap_b32 v{a+1}, v{a+3}")
            k(f"buffer_store_dwordx4 {vr(a,4)}, v9, s[24:27], 0 offen offset:{32*q}")
        else:
            k(f"buffer_store_dwordx4 {vr(a,4)}, v10, s[16:19], s37 offen offset:{1024*q} sc1")
    if not final:
        for i in range(16):
            k(f"v_dot2_f32_bf16 v24, v{RES+i}, s35, v24\nv_dot2_f32_bf16 v25, v{RES+i}, v{RES+i}, v25")
        k(f"""
        v_permlane32_swap_b32 v24, v25
        v_add_f32 v24, v24, v25
        buffer_store_dword v24, v9, s[16:19], s38 offen sc1
        """)
        stamp(k, tag + "_st")
        k("s_waitcnt vmcnt(0)")
        stamp(k, tag + "_drain")
        signal(k, sig_base, "s4", 4, cnt)
    k(f"s_branch {END}\n{LD}:")
    gemm_loader(k, 1, 2048, R, STG, False, True, tag, wt)
    k(f"s_barrier\n{END}:")


QX_B = 147456
WKV_L = 73728
PART_L = 143360
VT_B = 159744


def phase_qkvb(k, tag, rep, lin, wt):
    R, STG = 6, 24576
    LD, END, NOKV, VV, SG = [k.label(tag + x) for x in ("_ld", "_end", "_nokv", "_v", "_sg")]
    tile_map(k, "4x8")
    srd_off(k, 8, P_WS, WS_X[lin], S * D * 2)
    srd(k, 12, P_WQ, D * D * 2)
    k(f"""s_bitcmp1_b32 s5, 0
    s_cselect_b32 s46, s{P_WV}, s{P_WK}
    s_cselect_b32 s47, s{P_WV+1}, s{P_WK+1}
    s_lshr_b32 s48, s5, 1""")
    srd(k, 20, 46, D * 32 * 2)
    k(f"s_cmp_ge_u32 s3, 4\ns_cbranch_scc1 {LD}")
    STT, CS = 144, 160
    first = rep == 0
    CSP_L = VT_B + 2304
    k(f"""
    v_lshlrev_b32 v10, 4, v1
    s_lshl_b32 s31, s3, 12
    v_add_u32 v12, s31, v10
    """)
    w_tr_base(k, 13, "0", 128, True)
    k("v_xor_b32 v14, 64, v13")
    w_tr_base(k, 15, "0", 64, False)
    k(f"""s_lshl_b32 s31, s3, 14
    s_add_u32 s31, s31, {WKV_L}
    v_add_u32 v15, s31, v15
    s_lshl_b32 s31, s3, 12
    s_add_u32 s31, s31, {PART_L}
    v_add_u32 v16, s31, v10
    s_lshl_b32 s36, s4, 2
    s_add_u32 s36, s36, s48
    s_lshl_b32 s36, s36, 16
    s_lshl_b32 s31, s3, 14
    s_add_u32 s36, s36, s31""")
    ACC = 32
    for i in range(32):
        k(f"v_mov_b32 v{ACC+i}, 0")

    CA, ON = 224, 232
    if first:
        ones_pattern(k, ON, 4, 5)
        for i in range(8):
            k(f"v_mov_b32 v{CA+i}, 0")

    def mf(fr, t):
        o = [M32(ACC, fr + 4, fr), M32(ACC + 16, fr + 8, fr)]
        if first:
            L_ = k.label("cs")
            o[1] += f"""
            s_cmp_eq_u32 s3, {t}
            s_cbranch_scc0 {L_}
            {M16(CA, ON, fr + 4)}
            {M16(CA + 4, ON, fr + 8)}
            {L_}:"""
        return o

    RSTD, BOP, SC = 172, 176, 174
    fill = ["s_waitcnt vmcnt(0)"] + ln_stats(STT, RSTD, BOP) + [
        f"v_mul_f32 v{SC}, {f32(LOG2E * DH**-0.5)}, v{RSTD}",
        f"v_mov_b32 v{SC+1}, v{SC}"] + lines(f"""s_lshl_b32 s34, s3, 11
        s_add_u32 s34, s34, {QX_B}
        v_add_u32 v11, s34, v10""")
    if not first:
        fill += cs_build(CS, 251) + cs_build(CS + 4, 252)

    def prepass():
        k(f"s_cmp_ge_u32 s5, 8\ns_cbranch_scc1 {NOKV}")
        XF, WF, E = 64, 192, 128
        for t in range(16):
            k(f"buffer_load_dwordx4 {vr(XF+4*t,4)}, v10, s[8:11], s36 offen offset:{1024*(t&3)} sc1")
            if t & 3 == 3:
                k("s_add_u32 s36, s36, 4096")

        def wr(t):
            for rd in range(2):
                k(f"ds_read_b64_tr_b16 {vr(WF+4*(t%8)+2*rd,2)}, v15 offset:{(16*t+8*rd)*64}")
        for t in range(7):
            wr(t)
        for t in range(16):
            k(f"s_waitcnt vmcnt({15-t}) lgkmcnt({2*min(6, 15-t)})")
            k(M32(E, WF + 4 * (t % 8), XF + 4 * t, "0" if t == 0 else None))
            if first:
                k(M16(236, ON, WF + 4 * (t % 8), "0" if t == 0 else None))
            if t + 7 < 16:
                wr(t + 7)
        for q in range(4):
            k(f"ds_write_b128 v16, {vr(E+4*q,4)} offset:{1024*q}")
        if first:
            k(f"""s_lshl_b32 s31, s3, 8
            s_add_u32 s31, s31, {CSP_L}
            v_lshlrev_b32 v9, 2, v1
            v_add_u32 v9, s31, v9
            ds_write_b32 v9, v236""")
        k(f"s_waitcnt lgkmcnt(0)\n{NOKV}:")
        stats_loads(k, STT, "s3", 9, WS_ST[lin])

    gemm_compute(k, R, STG, 2, [12, 13, 14], [0], [(1, 16384, 128), (2, 16384, 128)], 80, mf, 12, 20,
                 tag, per=3, filler=list(fill), after_e2=prepass, pre_m=1)
    if first:
        k(f"""v_lshlrev_b32 v9, 2, v1
        s_lshl_b32 s31, s3, 9
        v_add_u32 v4, s31, v9
        ds_write_b32 v4, v{CA}
        ds_write_b32 v4, v{CA+4} offset:256
        s_waitcnt lgkmcnt(0)
        s_barrier""")
        for w in range(4):
            for bl in range(2):
                k(f"ds_read_b32 v{144+4*bl+w}, v9 offset:{512*w+256*bl}")
        k("s_waitcnt lgkmcnt(0)")
        for bl in range(2):
            t_ = 144 + 4 * bl
            k(f"v_add_f32 v{t_}, v{t_}, v{t_+1}\nv_add_f32 v{t_+2}, v{t_+2}, v{t_+3}\nv_add_f32 v{t_}, v{t_}, v{t_+2}")
            for l_ in hilo(t_, 251 + bl, 4) + cs_build(CS + 4 * bl, 251 + bl):
                k(l_)
    k(M32(ACC + 16, CS + 4, BOP))
    k(M32(ACC, CS, BOP))
    pk_mul(k, ACC + 16, ACC + 16, SC, 16)
    for i in range(8):
        k(f"v_cvt_pk_bf16_f32 v{88+i}, v{ACC+16+2*i}, v{ACC+16+2*i+1}")
    for t in range(2):
        k(f"ds_write_b128 v11, {vr(88+4*t,4)} offset:{1024*t}")
    pk_mul(k, ACC, ACC, SC, 16)
    for i in range(8):
        k(f"v_cvt_pk_bf16_f32 v{180+i}, v{ACC+2*i}, v{ACC+2*i+1}")
    k(f"""s_branch {END}
    {LD}:
    s_cmp_ge_u32 s5, 8
    s_cbranch_scc1 {LD}_2""")

    def pre_wkv(q):
        k(f"""s_lshl_b32 s39, s30, 14
        s_add_u32 s31, s39, {WKV_L}""")
        for g in range(4):
            k(f"s_add_u32 m0, s31, {4096*g}")
            for jj in range(4):
                k(f"buffer_load_dwordx4 v8, s[20:23], s39 offen offset:{1024*jj} lds")
                q.add("wkv")
            k("s_add_u32 s39, s39, 4096")

    E, T = 32, 48

    def kv_a(q):
        stats_loads(k, STT, "s48", 9, WS_ST[lin], q)
        if first:
            k(f"v_lshlrev_b32 v9, 2, v1\nv_add_u32 v9, {CSP_L}, v9")
            for w in range(4):
                k(f"ds_read_b32 v{100+w}, v9 offset:{256*w}")
        k(f"v_add_u32 v9, {PART_L}, v8")
        for w in range(4):
            for qq in range(4):
                k(f"ds_read_b128 {vr(E+16*w+4*qq,4)}, v9 offset:{4096*w+1024*qq}")
        k("s_waitcnt lgkmcnt(0)")
        for i in range(0, 16, 2):
            k(f"v_pk_add_f32 {vr(E+i,2)}, {vr(E+i,2)}, {vr(E+16+i,2)}")
            k(f"v_pk_add_f32 {vr(E+32+i,2)}, {vr(E+32+i,2)}, {vr(E+48+i,2)}")
            k(f"v_pk_add_f32 {vr(E+i,2)}, {vr(E+i,2)}, {vr(E+32+i,2)}")
        if first:
            k("v_add_f32 v100, v100, v101\nv_add_f32 v102, v102, v103\nv_add_f32 v100, v100, v102")
            for l_ in hilo(100, 248, 4):
                k(l_)
        for l_ in cs_build(CS, 248):
            k(l_)

    def kv_b(q):
        SK = k.label("kvskip")
        k(f"s_waitcnt vmcnt({q.cnt('stats')})")
        for l_ in ln_stats(STT, RSTD, BOP):
            k(l_)
        k(f"v_mov_b32 v{RSTD+1}, v{RSTD}")
        k(M32(E, CS, BOP))
        k(f"""s_lshl_b32 s54, s4, 2
        s_add_u32 s54, s54, s48
        s_lshl_b32 s54, s54, 12
        s_add_u32 s54, s54, {hex(WS_KV[rep])}
        v_mul_u32_u24 v26, 72, v2
        v_lshl_add_u32 v26, v3, 3, v26
        v_add_u32 v26, {VT_B}, v26
        v_and_b32 v24, 15, v1
        v_lshrrev_b32 v25, 2, v24
        v_lshl_add_u32 v25, v3, 2, v25
        v_mul_u32_u24 v25, 72, v25
        v_and_b32 v24, 3, v24
        v_lshl_add_u32 v25, v24, 3, v25
        v_bfe_u32 v24, v1, 4, 1
        v_lshl_add_u32 v25, v24, 5, v25
        v_add_u32 v25, {VT_B}, v25""")
        pk_mul(k, E, E, RSTD, 16)
        for i in range(8):
            k(f"v_cvt_pk_bf16_f32 v{96+i}, v{E+2*i}, v{E+2*i+1}")
        k(f"s_bitcmp1_b32 s5, 0\ns_cbranch_scc0 {SG}\ns_cmp_lg_u32 s3, 7\ns_cbranch_scc1 {SG}")
        for i in range(4):
            k(f"ds_write_b64 v26, {vr(96+2*i,2)} offset:{16*i}")
        k("s_waitcnt lgkmcnt(0)")
        for t in range(2):
            for e in range(2):
                k(f"ds_read_b64_tr_b16 {vr(96+4*t+2*e,2)}, v25 offset:{(16*t+8*e)*72}")
        k(f"s_waitcnt lgkmcnt(0)\ns_add_u32 s54, s54, 2048\n{SG}:")
        k(f"""s_cmp_eq_u32 s3, 7
        s_cselect_b32 s54, s54, 0x7ffff000""")
        for t in range(2):
            k(f"buffer_store_dwordx4 {vr(96+4*t,4)}, v8, s[16:19], s54 offen offset:{1024*t} sc1")
            q.add("kvst")

    def kv_c(q):
        SK = k.label("kvskip")
        k(f"""s_waitcnt vmcnt({q.cnt('kvst')})
        s_lshl_b32 s54, s4, 8
        s_add_u32 s54, s54, {hex(flag_off(rep, F_KVB))}
        s_cmp_eq_u32 s3, 7
        s_cselect_b32 s54, s54, 0x7ffff000
        v_mov_b32 v4, 1
        v_mov_b32 v5, 0
        s_mov_b64 exec, 1
        buffer_atomic_add v4, v5, s[16:19], s54 offen sc1
        s_mov_b64 exec, -1""")
        q.add("sig")
        stamp(k, tag + "_kvsig")

    gemm_loader(k, 1, 2048, R, STG, False, True, tag, wt, npre=3, preflag=pre_wkv, first=2, lims={0: 4},
                mid={0: kv_a, 2: kv_b, 5: kv_c})
    k("s_barrier\n" * (2 if first else 1) + f"s_branch {END}\n{LD}_2:")
    gemm_loader(k, 1, 2048, R, STG, False, True, tag, wt)
    k("s_barrier\n" * (2 if first else 1) + f"{END}:")


def phase_attn(k, tag, rep, oi):
    name = k.label(tag)
    Q, NEG, SA, SB, P, O, L, ONE, KF, VF = 8, 16, 32, 48, 64, 80, 96, 100, 104, 120
    k(f"""
    s_lshr_b32 s36, s3, 2
    s_and_b32 s37, s3, 3
    s_lshl_b32 s38, s5, 1
    s_add_u32 s38, s38, s36
    s_lshl_b32 s39, s4, 2
    s_add_u32 s39, s39, s37
    v_lshlrev_b32 v128, 4, v1
    """)
    cnt = new_cnt()
    zero_cnt(k, cnt)
    k(f"""
    s_waitcnt lgkmcnt(0)
    s_cmp_lg_u32 s3, 7
    s_cbranch_scc1 {name}_np
    """)
    wait_flag(k, flag_off(rep, F_KVB), None, 8, True)
    k(f"""{name}_np:
    s_barrier
    s_cmp_ge_u32 s3, 4
    s_cbranch_scc1 {name}_qld
    """)
    for i in range(8):
        k(f"v_mov_b32 v{Q+i}, v{180+i}")
    k(f"""s_branch {name}_go
    {name}_qld:
    s_lshl_b32 s34, s37, 11
    s_add_u32 s34, s34, {QX_B}
    v_add_u32 v5, s34, v128
    ds_read_b128 {vr(Q,4)}, v5
    ds_read_b128 {vr(Q+4,4)}, v5 offset:1024
    {name}_go:
    v_mov_b32 v4, v128
    s_lshl_b32 s30, s3, 12
    s_add_u32 s31, s30, {hex(WS_KV[rep])}
    """)
    stamp(k, tag + "_e2")

    def dma():
        for q in range(4):
            k(f"buffer_load_dwordx4 v4, s[16:19], s31 offen offset:{1024*q} sc1 lds")
        k("s_add_u32 s31, s31, 32768")

    for c in range(3):
        k(f"s_add_u32 m0, s30, {32768*c}")
        dma()
    ones_pattern(k, ONE, 5, 6)
    for i in range(16):
        k(f"v_mov_b32 v{O+i}, 0")
    for i in range(4):
        k(f"v_mov_b32 v{L+i}, 0")
    for i in range(8):
        k(f"v_mov_b32 v{P+i}, 0")
    k("s_waitcnt vmcnt(8)\ns_barrier")
    stamp(k, tag + "_b0")
    K1, K2, V1, V2 = KF, KF + 4, VF, VF + 4
    k(f"""ds_read_b128 {vr(K1,4)}, v4
    ds_read_b128 {vr(K2,4)}, v4 offset:1024
    s_waitcnt lgkmcnt(0)
    """)
    k(M32(SA, K1, Q, "0"))
    k(M32(SA, K2, Q + 4))
    k(f"v_max3_f32 v5, v{SA}, v{SA+1}, v{SA+2}")
    for i in range(3, 15, 2):
        k(f"v_max3_f32 v5, v5, v{SA+i}, v{SA+i+1}")
    k(f"""v_max_f32 v5, v5, v{SA+15}
    v_mov_b32 v6, v5
    v_permlane32_swap_b32 v5, v6
    v_max_f32 v5, v5, v6
    """)
    for i in range(16):
        k(f"v_sub_f32 v{NEG+i}, 0, v5")
    for i in range(16):
        k(f"v_sub_f32 v{SA+i}, v{SA+i}, v5")
    if "at_prio" in sys.argv:
        k(f"s_cmp_lt_u32 s3, 4\ns_cbranch_scc1 {name}_pr\ns_setprio 1\n{name}_pr:")
    k(f"""ds_read_b128 {vr(V2,4)}, v4 offset:3072
    ds_read_b128 {vr(K1,4)}, v4 offset:4096
    ds_read_b128 {vr(K2,4)}, v4 offset:5120
    ds_read_b128 {vr(V1,4)}, v4 offset:2048
    s_mov_b32 s32, 0
    v_mov_b32 v5, v4
    v_add_u32 v6, 32768, v4
    s_mov_b32 s33, 0x18000
    {name}_loop:""")

    def ex(cur, a, b):
        for i in range(a, b):
            k(f"v_exp_f32 v{cur+i}, v{cur+i}")

    def cv(cur, a, b):
        for i in range(a, b):
            k(f"v_cvt_pk_bf16_f32 v{P+i}, v{cur+2*i}, v{cur+2*i+1}")

    def rd(dst, tile, part):
        if "at_nord" in sys.argv:
            return
        bb, oo = (5, tile * 4096) if tile < 8 else (6, (tile - 8) * 4096)
        k(f"ds_read_b128 {vr(dst,4)}, v{bb} offset:{oo+1024*part}")

    for j in range(8):
        cur, nxt = (SA, SB) if j % 2 == 0 else (SB, SA)
        k("s_waitcnt lgkmcnt(3)")
        k(M32(O, V2, P + 4))
        rd(V2, j, 3)
        ex(cur, 0, 4)
        k(M16(L, ONE, P + 4))
        ex(cur, 4, 6)
        if j == 6 and "at_nobar" not in sys.argv:
            k(f"""s_waitcnt vmcnt(4)
            s_barrier
            s_cmp_ge_u32 s32, 5
            s_cbranch_scc1 {name}_nodma
            s_add_u32 m0, s30, s33""")
            dma()
            k(f"""s_branch {name}_dmadone
            {name}_nodma:
            s_waitcnt vmcnt(0)
            s_barrier
            {name}_dmadone:""")
        if j % 2 == 0:
            k(f"s_setprio {3 - ((j - 6) % 8) // 2}")
        k("s_waitcnt lgkmcnt(3)")
        k(M32(nxt, K1, Q, vr(NEG, 16)))
        rd(K1, j + 2, 0)
        ex(cur, 6, 8)
        cv(cur, 0, 4)
        k("s_waitcnt lgkmcnt(3)")
        k(M32(nxt, K2, Q + 4))
        rd(K2, j + 2, 1)
        ex(cur, 8, 12)
        k("s_waitcnt lgkmcnt(3)")
        k(M32(O, V1, P))
        rd(V1, j + 1, 2)
        ex(cur, 12, 16)
        k(M16(L, ONE, P))
        cv(cur, 4, 8)
        if j == 7:
            k(f"""
            v_mov_b32 v5, v6
            s_add_u32 s33, s33, 0x8000
            s_and_b32 s33, s33, 0x1ffff
            s_add_u32 s34, s33, 0x10000
            s_and_b32 s34, s34, 0x1ffff
            v_add_u32 v6, s34, v4
            s_add_u32 s32, s32, 1
            s_cmp_lt_u32 s32, 8
            s_cbranch_scc1 {name}_loop
            s_waitcnt lgkmcnt(0)
            s_barrier
            """)
    k(M32(O, V2, P + 4))
    k(M16(L, ONE, P + 4))
    stamp(k, tag + "_loopend")
    k("s_setprio 0")
    k(f"v_max3_f32 v5, abs(v{O}), abs(v{O+1}), abs(v{O+2})")
    for i in range(3, 15, 2):
        k(f"v_max3_f32 v5, v5, abs(v{O+i}), abs(v{O+i+1})")
    k(f"""v_max3_f32 v5, v5, abs(v{O+15}), v{L}
    v_mov_b32 v6, 0
    """)
    for i in range(16):
        k(f"v_fma_f32 v6, v{O+i}, 0, v6")
    k(f"""v_fma_f32 v6, v{L}, 0, v6
    v_add_f32 v5, v5, v6
    s_mov_b32 s34, {f32(2.0**100)}
    v_cmp_nlt_f32 vcc, v5, s34
    s_cbranch_vccz {name}_fin
    """)
    for i in range(16):
        k(f"v_mov_b32 v{O+i}, 0")
    for i in range(4):
        k(f"v_mov_b32 v{L+i}, 0")
    k(f"""v_mov_b32 v7, 0xff800000
    s_mov_b32 s31, {hex(WS_KV[rep])}
    s_mov_b32 s32, 0
    {name}_sloop:
    buffer_load_dwordx4 {vr(KF,4)}, v4, s[16:19], s31 offen sc1
    buffer_load_dwordx4 {vr(KF+4,4)}, v4, s[16:19], s31 offen offset:1024 sc1
    buffer_load_dwordx4 {vr(VF,4)}, v4, s[16:19], s31 offen offset:2048 sc1
    buffer_load_dwordx4 {vr(VF+4,4)}, v4, s[16:19], s31 offen offset:3072 sc1
    s_waitcnt vmcnt(0)
    """)
    k(M32(SA, KF, Q, "0"))
    k(M32(SA, KF + 4, Q + 4))
    k(f"v_max3_f32 v5, v{SA}, v{SA+1}, v{SA+2}")
    for i in range(3, 15, 2):
        k(f"v_max3_f32 v5, v5, v{SA+i}, v{SA+i+1}")
    k(f"""v_max_f32 v5, v5, v{SA+15}
    v_mov_b32 v6, v5
    v_permlane32_swap_b32 v5, v6
    v_max3_f32 v5, v5, v6, v7
    v_sub_f32 v6, v7, v5
    v_exp_f32 v6, v6
    v_mov_b32 v7, v5
    """)
    for i in range(16):
        k(f"v_sub_f32 v{SA+i}, v{SA+i}, v5")
    for i in range(16):
        k(f"v_exp_f32 v{SA+i}, v{SA+i}")
    for i in range(16):
        k(f"v_mul_f32 v{O+i}, v{O+i}, v6")
    for i in range(4):
        k(f"v_mul_f32 v{L+i}, v{L+i}, v6")
    for i in range(8):
        k(f"v_cvt_pk_bf16_f32 v{P+i}, v{SA+2*i}, v{SA+2*i+1}")
    k(M32(O, VF, P))
    k(M16(L, ONE, P))
    k(M32(O, VF + 4, P + 4))
    k(M16(L, ONE, P + 4))
    k(f"""s_add_u32 s31, s31, 4096
    s_add_u32 s32, s32, 1
    s_cmp_lt_u32 s32, 64
    s_cbranch_scc1 {name}_sloop
    {name}_fin:
    v_rcp_f32 v6, v{L}
    s_lshl_b32 s34, s39, 16
    s_lshl_b32 s35, s38, 11
    s_add_u32 s34, s34, s35
    s_add_u32 s34, s34, {hex(WS_O[oi])}
    v_mov_b32 v7, v6
    """)
    pk_mul(k, O, O, 6, 16)
    for i in range(8):
        k(f"v_cvt_pk_bf16_f32 v{P+i}, v{O+2*i}, v{O+2*i+1}")
    for t in range(2):
        k(f"buffer_store_dwordx4 {vr(P+4*t,4)}, v4, s[16:19], s34 offen offset:{1024*t} sc1")
    stamp(k, tag + "_st")
    k("s_waitcnt vmcnt(0)")
    stamp(k, tag + "_drain")
    signal(k, flag_off(rep, F_OB), "s4", 8, cnt)


def prep_jobs(k):
    def j_zero(q):
        k(f"""s_lshl_b32 s56, s2, 2
        s_add_u32 s56, s56, s30
        s_mul_i32 s56, s56, 48
        s_add_u32 s56, s56, {hex(WS_FL)}
        v_min_u32 v25, 11, v1
        v_lshlrev_b32 v25, 2, v25
        v_mov_b32 v26, 0
        buffer_store_dword v26, v25, s[16:19], s56 offen sc1""")
        q.add("jst")

    def j_wait(q):
        k(f"s_waitcnt vmcnt({q.cnt('jst')})")
        stamp(k, "job_drained")

    def j_sig(q):
        srd(k, 24, P_DBG, 256)
        k(f"""s_and_b32 s56, s2, 1
        s_lshl_b32 s56, s56, 7
        s_cmp_eq_u32 s3, 4
        s_cselect_b32 s56, s56, 0x7ffff000
        v_mov_b32 v4, 1
        v_mov_b32 v5, 0
        s_mov_b64 exec, 1
        buffer_atomic_add v4, v5, s[24:27], s56 offen sc1
        s_mov_b64 exec, -1""")
        q.add("jsig")

    def j_poll(q):
        L = k.label("ipoll")
        stamp(k, "job_prepoll")
        k(f"""s_cmp_lg_u32 s3, 4
        s_cbranch_scc1 {L}_ok
        v_and_b32 v4, 1, v1
        v_lshlrev_b32 v4, 7, v4
        s_mov_b32 s53, 0
        {L}:
        buffer_load_dword v5, v4, s[24:27], 0 offen sc1
        s_waitcnt vmcnt(0)
        v_cmp_gt_u32 vcc, 128, v5
        s_cbranch_vccz {L}_ok
        s_sleep 4
        s_add_u32 s53, s53, 1
        s_cmp_lt_u32 s53, 0x40000
        s_cbranch_scc1 {L}
        {L}_ok:""")
        stamp(k, "job_polled")

    return {0: j_zero, 3: j_wait, 6: j_sig, 12: j_poll}


def phase_qkva(k, tag, rep, lin, oi, wt):
    R, STG = 4, 40960
    LD, J0, J1, J2, NP = [k.label(tag + x) for x in ("_ld", "_j0", "_j1", "_j2", "_np")]
    tile_map(k, "8x4")
    first = lin == 0
    if first:
        srd(k, 8, P_X, S * D * 2)
    else:
        srd_off(k, 8, P_WS, WS_X[lin], S * D * 2)
    srd(k, 12, P_WQKV, D * 3 * D * 2)
    srd(k, 20, P_WPHI, H * DH * DH * 2)
    k(f"""
    s_bfe_u32 s48, s3, 0x10001
    s_and_b32 s49, s3, 1
    s_lshl_b32 s50, s5, 1
    s_add_u32 s50, s50, s49
    s_lshl_b32 s51, s48, 1
    s_lshr_b32 s31, s3, 2
    s_add_u32 s51, s51, s31
    """)
    STT, CS, WP = 176, 208, 220
    QXL = 51200
    KVL = 69632
    cnt_col, cnt_o = new_cnt(), new_cnt()
    RSTD = [168, 170]
    LC = 172
    BOP = [240, 244]
    addr_setup = lines(f"""
    s_lshl_b32 s35, s51, 5
    v_add_u32 v238, s35, v2
    v_mul_u32_u24 v238, 200, v238
    v_lshl_add_u32 v238, v3, 3, v238
    s_mul_i32 s35, s49, 25600
    v_add_u32 v238, s35, v238
    s_and_b32 s35, s3, 3
    s_lshl_b32 s35, s35, 12
    s_add_u32 s35, s35, {QXL}
    v_lshlrev_b32 v239, 4, v1
    v_add_u32 v239, s35, v239
    """)
    wp_pack = [f"v_lshl_or_b32 v{WP+i}, v{WP+2*i+1}, 16, v{WP+2*i}" for i in range(8)]
    k(f"s_cmp_ge_u32 s3, 4\ns_cbranch_scc1 {LD}")
    LCL = QXL + 16384
    STL, CSL = 81920, 83968
    wphi_loads(k, WP, "s50")
    if first:
        k("s_lshl_b32 s35, s48, 6")
        x_addr(k, 12, "s35")
        k("s_lshl_b32 s35, s49, 6")
        w_tr_base(k, 16, "s35", 128, True, hs=3)
    else:
        k(f"""v_lshlrev_b32 v12, 4, v1
        s_lshl_b32 s35, s48, 13
        v_add_u32 v12, s35, v12
        s_lshl_b32 s35, s49, 6""")
        w_tr_base(k, 13, "s35", 128, True)
    ACC = 32
    for i in range(96):
        k(f"v_mov_b32 v{ACC+i}, 0")

    def acc(p, b):
        return ACC + 32 * p + 16 * b

    def mf(fr, t):
        return [M32(acc(p, b), fr + 8 + 4 * p, fr + 4 * b) for p in range(3) for b in range(2)]

    def st_l(kk=k):
        stats_loads(kk, STT, "s51", 10, WS_ST[lin])
        kk("s_add_u32 s31, s51, 1")
        stats_loads(kk, STT + 16, "s31", 10, WS_ST[lin])

    tail = []
    for b in range(2):
        tail += [f"v_mov_b32 v{RSTD[b]+1}, v{RSTD[b]}"]
    tail += [f"v_mul_f32 v{LC}, {f32(LOG2E)}, v{RSTD[0]}", f"v_mov_b32 v{LC+1}, v{LC}",
             f"v_mul_f32 v{LC+2}, {f32(LOG2E)}, v{RSTD[1]}"]
    for p in range(3):
        tail += cs_build(CS + 4 * p, 248 + p)
    lc_addr = lines(f"""s_and_b32 s35, s3, 3
    s_lshl_b32 s35, s35, 8
    s_add_u32 s35, s35, {LCL}
    v_lshlrev_b32 v237, 2, v1
    v_add_u32 v237, s35, v237""")
    wl = [(1, 16384, 128), (1, 16384 + 8192, 128), (1, 16384 + 16384, 128)]
    if first:
        def touch2():
            if "notouch2" in sys.argv:
                return
            k(f"""s_lshl_b32 s34, s2, 2
            s_add_u32 s34, s34, s3
            s_lshl_b32 s37, s34, 11
            v_lshlrev_b32 v10, 4, v1""")
            for pw in (P_WOA, P_WQ, P_WOB):
                srd(k, 24, pw, D * D * 2)
                for i in range(2):
                    k(f"buffer_load_dwordx4 v[244:247], v10, s[24:27], s37 offen offset:{1024*i}")
            for pw in (P_WK, P_WV):
                srd(k, 24, pw, D * 32 * 2)
                k(f"buffer_load_dwordx4 v[244:247], v10, s[24:27], s37 offen")
                k(f"buffer_load_dwordx4 v[244:247], v10, s[24:27], s37 offen offset:1024")

        CA, SX, SQ, ON, TT = 176, 184, 188, 192, 196
        ones_pattern(k, ON, 4, 5)
        for i in range(176, 192):
            k(f"v_mov_b32 v{i}, 0")

        def mf0(fr, t):
            o = mf(fr, t)
            L1, L2, L3, L4 = [k.label("st") for _ in range(4)]

            def xs(b):
                r_ = M16(SX, ON, fr + 4 * b) + "\n"
                for i in range(4):
                    r_ += f"v_lshlrev_b32 v{TT+2*i}, 16, v{fr+4*b+i}\nv_and_b32 v{TT+2*i+1}, 0xffff0000, v{fr+4*b+i}\n"
                for i in range(8):
                    r_ += f"v_fmac_f32 v{SQ+(i&3)}, v{TT+i}, v{TT+i}\n"
                return r_
            o[4] += f"""
            s_cmp_eq_u32 s49, 0
            s_cbranch_scc0 {L1}
            {xs(0)}
            s_branch {L2}
            {L1}:
            {xs(1)}
            {L2}:"""
            o[5] += f"""
            s_cmp_eq_u32 s48, 0
            s_cbranch_scc0 {L3}
            {M16(CA, ON, fr + 8)}
            {M16(CA + 4, ON, fr + 12)}
            s_branch {L4}
            {L3}:
            {M16(CA, ON, fr + 16)}
            {L4}:"""
            return o

        def publish():
            k(f"""v_add_f32 v{SQ}, v{SQ}, v{SQ+1}
            v_add_f32 v{SQ+2}, v{SQ+2}, v{SQ+3}
            v_add_f32 v{SQ}, v{SQ}, v{SQ+2}
            v_mov_b32 v{SQ+1}, v{SQ}
            s_add_u32 s34, s4, s5
            s_and_b32 s34, s34, 15
            v_permlane32_swap_b32 v{SQ}, v{SQ+1}
            s_lshl_b32 s35, s4, 14
            s_lshl_b32 s36, s34, 10
            s_add_u32 s35, s35, s36
            s_lshl_b32 s36, s3, 8
            s_add_u32 s35, s35, s36
            s_add_u32 s35, s35, {hex(WS_ST[0])}
            v_add_f32 v{SQ}, v{SQ}, v{SQ+1}
            v_cndmask_b32 v{SQ}, v{SX}, v{SQ}, s[40:41]
            v_lshlrev_b32 v10, 2, v1
            buffer_store_dword v{SQ}, v10, s[16:19], s35 offen sc1
            s_mul_i32 s35, s50, 6144
            s_lshl_b32 s36, s34, 7
            s_add_u32 s35, s35, s36
            s_lshl_b32 s36, s48, 12
            s_add_u32 s35, s35, s36
            s_add_u32 s35, s35, {hex(WS_CSA)}
            s_cmp_eq_u32 s48, 0
            s_cselect_b32 s36, s35, 0x7ffff000
            v_lshlrev_b32 v10, 2, v2
            buffer_store_dword v{CA}, v10, s[16:19], s35 offen sc1
            buffer_store_dword v{CA+4}, v10, s[16:19], s36 offen offset:2048 sc1""")

        cap = Cap()
        st_l(cap)
        CL = 24
        cregs = [[24 + i for i in range(8)], [208 + i for i in range(8)], [236, 237, 238, 239, 216, 217, 218, 219]]
        cap(f"""v_lshlrev_b32 v9, 2, v2
        v_lshl_add_u32 v9, v3, 10, v9
        s_mul_i32 s35, s50, 6144
        s_add_u32 s35, s35, {hex(WS_CSA)}""")
        for p in range(3):
            for i in range(8):
                cap(f"buffer_load_dword v{cregs[p][i]}, v9, s[16:19], s35 offen offset:{128*i} sc1")
            cap("s_add_u32 s35, s35, 2048")
        fill = ["s_waitcnt vmcnt(0)"]
        for b in range(2):
            fill += ln_stats(STT + 16 * b, RSTD[b], BOP[b])
        for p in range(3):
            c_ = cregs[p]
            for st_ in (4, 2, 1):
                for i in range(st_):
                    fill.append(f"v_add_f32 v{c_[i]}, v{c_[i]}, v{c_[i+st_]}")
            fill += [f"v_mov_b32 v{c_[1]}, v{c_[0]}", f"v_permlane32_swap_b32 v{c_[0]}, v{c_[1]}",
                     f"v_add_f32 v{c_[0]}, v{c_[0]}, v{c_[1]}"] + hilo(c_[0], 248 + p, c_[1])
        gemm_compute(k, R, STG, 1, [12, 13, 14, 15, 16], [0, 4096], wl, 128, mf, 20, 17, tag, nbuf=2, per=2,
                     filler=fill + tail + wp_pack + addr_setup + lc_addr, e2=False, rm=True, pre_m=2,
                     at_iter=[(3, lambda: k("s_waitcnt vmcnt(0)")), (5, touch2)], mf_first=mf0, after_first=publish,
                     late={13: cap.l})
    else:
        fill = ["s_waitcnt vmcnt(0)"]
        for b in range(2):
            fill += ln_stats(STT + 16 * b, RSTD[b], BOP[b])
        gemm_compute(k, R, STG, 1, [12, 13], [0, 4096], wl, 128, mf, 20, 20, tag,
                     nbuf=2, per=2, filler=fill + tail + wp_pack + addr_setup + lc_addr, after_e2=st_l, pre_m=2)
    k(f"ds_write_b32 v237, v{LC+2}")
    for p, b in ((1, 1), (0, 1), (1, 0), (2, 0), (2, 1), (0, 0)):
        k(M32(acc(p, b), CS + 4 * p, BOP[b]))
    k(f"""v_lshlrev_b32 v4, 3, v1
    v_mov_b32 v6, 0
    v_mov_b32 v7, 0
    ds_write_b64 v4, v[6:7] offset:{KVL+8192-65536+65536 if KVL+8192 < 65536 else 0}""" if False else "")
    k(f"""v_lshlrev_b32 v4, 3, v1
    v_add_u32 v4, {KVL+8192}, v4
    v_mov_b32 v6, 0
    v_mov_b32 v7, 0
    ds_write_b64 v4, v[6:7]""")
    zero_cnt(k, cnt_col)
    zero_cnt(k, cnt_o)
    for p, d_ in ((1, 128), (0, 136)):
        for i in range(8):
            k(f"v_cvt_pk_bf16_f32 v{d_+i}, v{acc(p,1)+2*i}, v{acc(p,1)+2*i+1}")
        for t in range(2):
            k(f"ds_write_b128 v239, {vr(d_+4*t,4)} offset:{(d_-128)*256+1024*t}")
    for i in range(8):
        k(f"v_cvt_pk_bf16_f32 v{144+i}, v{acc(1,0)+2*i}, v{acc(1,0)+2*i+1}")
    k("s_waitcnt lgkmcnt(0)\ns_barrier")
    stamp(k, tag + "_ba")
    k(M32(acc(1, 0), WP, 144, "0"))
    k(M32(acc(1, 0), WP + 4, 148))
    for b in range(2):
        pk_mul(k, acc(2, b), acc(2, b), RSTD[b], 16)
        for i in range(8):
            k(f"v_cvt_pk_bf16_f32 v{128+8*b+i}, v{acc(2,b)+2*i}, v{acc(2,b)+2*i+1}")
        for i in range(4):
            k(f"ds_write_b64 v238, {vr(128+8*b+2*i,2)} offset:{6400*b+128+16*i}")
    for i in range(8):
        k(f"v_cvt_pk_bf16_f32 v{160+i}, v{acc(0,0)+2*i}, v{acc(0,0)+2*i+1}")
    KRAW = acc(1, 0)
    k(f"s_branch {J0}\n{LD}:")

    if first:
        gemm_loader(k, 3, 6144, R, STG, False, False, tag, None, pre=lambda: wphi_loads(k, WP, "s50"),
                    mid=prep_jobs(k), rm=True)
    else:
        gemm_loader(k, 3, 6144, R, STG, False, False, tag, wt, pre=lambda: wphi_loads(k, WP, "s50"))
    for l_ in addr_setup + lc_addr + wp_pack:
        k(l_)
    k("s_barrier\ns_barrier")
    k(f"""ds_read_b128 {vr(144,4)}, v239
    ds_read_b128 {vr(148,4)}, v239 offset:1024
    ds_read_b32 v{LC}, v237
    ds_read_b32 v{LC+1}, v237
    ds_read_b128 {vr(160,4)}, v239 offset:2048
    ds_read_b128 {vr(164,4)}, v239 offset:3072
    s_waitcnt lgkmcnt(2)""")
    k(M32(KRAW, WP, 144, "0"))
    k(M32(KRAW, WP + 4, 148))
    k(f"{J0}:")
    feat_map(k, KRAW, LC, 176, 144)
    for s_ in range(2):
        for i in range(4):
            k(f"ds_write_b64 v238, {vr(144+8*s_+2*i,2)} offset:{64*s_+16*i}")
    QRAW = 96
    k("s_waitcnt lgkmcnt(8)")
    k(M32(QRAW, WP, 160, "0"))
    k(M32(QRAW, WP + 4, 164))
    k(f"""
    v_and_b32 v4, 15, v1
    v_lshrrev_b32 v5, 2, v4
    v_lshl_add_u32 v5, v5, 3, v3
    v_mul_u32_u24 v5, 200, v5
    v_and_b32 v6, 3, v4
    v_lshl_add_u32 v5, v6, 3, v5
    v_bfe_u32 v7, v1, 4, 1
    v_lshl_add_u32 v5, v7, 5, v5
    s_mul_i32 s35, s49, 25600
    v_add_u32 v14, s35, v5
    s_lshl_b32 s35, s48, 6
    v_add_u32 v15, s35, v14
    """)
    ones_pattern(k, 24, 28, 29)
    k(f"""
    s_lshl_b32 s36, s50, 16
    s_lshl_b32 s35, s4, 12
    s_add_u32 s36, s36, s35
    s_lshl_b32 s35, s48, 11
    s_add_u32 s36, s36, s35
    s_add_u32 s36, s36, {hex(WS_KVP[rep])}
    s_lshl_b32 s39, s50, 12
    s_lshl_b32 s35, s4, 8
    s_add_u32 s39, s39, s35
    s_lshl_b32 s35, s48, 7
    s_add_u32 s39, s39, s35
    s_add_u32 s39, s39, {hex(WS_ZP[rep])}
    v_lshlrev_b32 v11, 2, v2
    v_lshlrev_b32 v10, 4, v1
    s_waitcnt lgkmcnt(0)
    s_barrier
    """)
    stamp(k, tag + "_bb")
    PHQ = 144
    k(f"s_cmp_ge_u32 s3, 4\ns_cbranch_scc1 {J1}")
    KVA, ZA = 32, 48
    FR = [176 + 8 * i for i in range(4)]

    def trr(s_):
        blk, t = s_ >> 1, s_ & 1
        f = FR[s_ % 4]
        for rd in range(2):
            off = (32 * blk + 4 * t + 2 * rd) * 200
            k(f"ds_read_b64_tr_b16 {vr(f+2*rd,2)}, v15 offset:{off}")
            k(f"ds_read_b64_tr_b16 {vr(f+4+2*rd,2)}, v14 offset:{off+128}")

    for s_ in range(3):
        trr(s_)
    for s_ in range(8):
        rem = min(7, s_ + 2) - s_
        k(f"s_waitcnt lgkmcnt({4*rem})")
        f = FR[s_ % 4]
        k(M32(KVA, f, f + 4, "0" if s_ == 0 else None))
        k(M16(ZA, 24, f, "0" if s_ == 0 else None))
        if s_ + 3 < 8:
            trr(s_ + 3)
    k(f"buffer_store_dword v{ZA}, v11, s[16:19], s39 offen sc1")
    for i in range(8):
        k(f"v_cvt_pk_bf16_f32 v{56+i}, v{KVA+2*i}, v{KVA+2*i+1}")
    for q in range(2):
        k(f"buffer_store_dwordx4 {vr(56+4*q,4)}, v10, s[16:19], s36 offen offset:{1024*q} sc1")
    stamp(k, tag + "_kvst")
    feat_map(k, QRAW, LC, 176, PHQ)
    k("s_waitcnt vmcnt(0)")
    stamp(k, tag + "_kvdrain")
    signal(k, flag_off(rep, F_COL), "s5", 4, cnt_col)
    k(f"s_branch {NP}\n{J1}:")
    feat_map(k, QRAW, LC, 176, PHQ)
    k(f"s_cmp_lg_u32 s3, 7\ns_cbranch_scc1 {NP}")
    wait_flag(k, flag_off(rep, F_COL), "s5", 16)
    k(f"{NP}:")
    k(f"""
    s_lshr_b32 s36, s3, 2
    s_and_b32 s37, s3, 3
    s_lshl_b32 s38, s5, 1
    s_add_u32 s38, s38, s36
    v_lshlrev_b32 v11, 2, v1
    s_lshl_b32 s34, s38, 16
    s_lshl_b32 s35, s37, 10
    s_add_u32 s34, s34, s35
    s_add_u32 s34, s34, {hex(WS_KVP[rep])}
    s_lshl_b32 s39, s38, 12
    s_add_u32 s39, s39, s35
    s_add_u32 s39, s39, {hex(WS_ZP[rep])}
    s_mov_b32 s52, 0x3f80
    s_mov_b32 s53, 0x3f800000
    s_barrier
    """)
    stamp(k, tag + "_e2a")
    for q in range(4):
        k(f"buffer_load_dword v{24+q}, v11, s[16:19], s39 offen offset:{256*q} sc1")
    for rt in range(16):
        k(f"buffer_load_dwordx4 {vr(48+4*rt,4)}, v10, s[16:19], s34 offen sc1")
        k("s_add_u32 s34, s34, 4096")
    for i in range(8):
        k(f"v_mov_b32 v{32+i}, 0")
    k(f"""s_lshl_b32 s35, s36, 8
    s_add_u32 s35, s35, {KVL+8192}
    v_add_u32 v13, s35, v11
    s_lshl_b32 s35, s3, 10
    s_add_u32 s35, s35, {KVL}
    v_add_u32 v12, s35, v10
    s_waitcnt vmcnt(16)
    v_add_f32 v24, v24, v25
    v_add_f32 v26, v26, v27
    v_add_f32 v24, v24, v26
    ds_add_f32 v13, v24""")
    for rt in range(16):
        k(f"s_waitcnt vmcnt({15-rt})")
        for i in range(4):
            k(f"v_dot2_f32_bf16 v{32+2*i}, v{48+4*rt+i}, s52, v{32+2*i}")
            k(f"v_dot2_f32_bf16 v{33+2*i}, v{48+4*rt+i}, s53, v{33+2*i}")
    for i in range(4):
        k(f"v_cvt_pk_bf16_f32 v{40+i}, v{32+2*i}, v{33+2*i}")
    KV, ZF, ZT = 32, 48, 64
    k(f"""
    ds_write_b128 v12, v[40:43]
    s_lshl_b32 s35, s49, 12
    s_add_u32 s35, s35, {KVL}
    v_add_u32 v12, s35, v10
    s_lshl_b32 s35, s49, 8
    s_add_u32 s35, s35, {KVL+8192}
    v_lshlrev_b32 v13, 4, v3
    v_add_u32 v13, s35, v13
    s_lshl_b32 s36, s4, 2
    s_add_u32 s36, s36, s51
    s_lshl_b32 s36, s36, 16
    s_lshl_b32 s35, s50, 11
    s_add_u32 s36, s36, s35
    s_add_u32 s36, s36, {hex(WS_O[oi])}
    s_waitcnt lgkmcnt(0)
    s_barrier
    """)
    stamp(k, tag + "_bc")
    for s_ in range(4):
        k(f"ds_read_b128 {vr(KV+4*s_,4)}, v12 offset:{1024*s_}")
    for se in range(8):
        k(f"ds_read_b128 {vr(ZT+4*se,4)}, v13 offset:{32*se}")
    NUM, DEN = 176, 96
    k("s_waitcnt lgkmcnt(8)")
    for s_ in range(4):
        k(M32(NUM, KV + 4 * s_, PHQ + 4 * s_, "0" if s_ == 0 else None))
    k("s_waitcnt lgkmcnt(0)\ns_barrier")
    for i in range(16):
        k(f"v_cvt_pk_bf16_f32 v{ZF+i}, v{ZT+2*i}, v{ZT+2*i+1}")
    for s_ in range(4):
        k(M32(DEN, ZF + 4 * s_, PHQ + 4 * s_, "0" if s_ == 0 else None))
    k(f"v_add_f32 v{DEN}, {f32(1e-6)}, v{DEN}\nv_rcp_f32 v{DEN}, v{DEN}\nv_mov_b32 v{DEN+1}, v{DEN}")
    pk_mul(k, NUM, NUM, DEN, 16)
    for i in range(8):
        k(f"v_cvt_pk_bf16_f32 v{112+i}, v{NUM+2*i}, v{NUM+2*i+1}")
    for t in range(2):
        k(f"buffer_store_dwordx4 {vr(112+4*t,4)}, v10, s[16:19], s36 offen offset:{1024*t} sc1")
    stamp(k, tag + "_st")
    k("s_waitcnt vmcnt(0)")
    stamp(k, tag + "_drain")
    signal(k, flag_off(rep, F_OA), "s4", 8, cnt_o)


def gen_mega():
    k = Kern("interleave_layers__linear_kernel_hedgehog__grouped_kv_mqa__prompt_kernel")
    k(f"""
    s_cmp_ge_u32 s2, 256
    s_cbranch_scc1 mega_exit
    s_load_dwordx16 s[64:79], s[0:1], 0
    s_load_dwordx8 s[80:87], s[0:1], 64
    v_lshrrev_b32 v1, 6, v0
    s_nop 0
    v_readfirstlane_b32 s3, v1
    v_and_b32 v1, 63, v0
    v_and_b32 v2, 31, v1
    v_lshrrev_b32 v3, 5, v1
    v_cmp_eq_u32 s[40:41], 1, v3
    s_waitcnt lgkmcnt(0)
    """)
    if PROF:
        k("v_mov_b32 v255, 0\nv_mov_b32 v254, 0\ns_memrealtime s[88:89]\ns_waitcnt lgkmcnt(0)\nv_writelane_b32 v255, s88, 0")
        stamp(k, "start")
    srd(k, 16, P_WS, WS_END)
    for rep in range(2):
        lin = 2 * rep
        phase_qkva(k, f"qa{rep}", rep, lin, 2 * rep, (flag_off(0, F_XB), "s4", 16) if rep else None)
        phase_wo(k, f"wa{rep}", P_WOA, lin, 2 * rep, (flag_off(rep, F_OA), "s4", 16), flag_off(rep, F_XA), False)
        phase_qkvb(k, f"qb{rep}", rep, lin + 1, (flag_off(rep, F_XA), "s4", 16))
        phase_attn(k, f"at{rep}", rep, 2 * rep + 1)
        phase_wo(k, f"wb{rep}", P_WOB, lin + 1, 2 * rep + 1, (flag_off(rep, F_OB), "s4", 16), flag_off(rep, F_XB),
                 rep == 1)
    stamp(k, "end")
    if PROF:
        k(f"""s_memrealtime s[88:89]
        s_waitcnt lgkmcnt(0)
        v_writelane_b32 v255, s88, 1
        s_add_u32 s84, s{P_WS}, {hex(WS_PROF)}
        s_addc_u32 s85, s{P_WS+1}, 0
        s_and_b32 s85, s85, 0xffff
        s_mov_b32 s86, 0x100000
        s_mov_b32 s87, 0x20000
        s_lshl_b32 s88, s2, 3
        s_add_u32 s88, s88, s3
        s_lshl_b32 s88, s88, 9
        v_lshlrev_b32 v0, 2, v1
        buffer_store_dword v255, v0, s[84:87], s88 offen
        buffer_store_dword v254, v0, s[84:87], s88 offen offset:256""")
    k("mega_exit:\ns_endpgm")
    return k, (256, 512, 163840)


def main():
    ks = [gen_mega()]
    hdr = open("interleave_layers__linear_kernel_hedgehog__grouped_kv_mqa__prompt.s.ref").read()
    hdr = "".join(l + "\n" for l in hdr.split("\n") if l.startswith(";") and "@launch" not in l and "Override" not in l and "grid=ceil" not in l)
    out = hdr
    for kern, (g, b, l) in ks:
        if "list" in sys.argv:
            out += f"; @launch kernel={kern.name} grid=({g},1,1) block=({b},1,1) lds={l}\n"
        else:
            out += f"; @launch grid=({g},1,1) block=({b},1,1) lds={l}\n"
    if PROF:
        out += "; STAMPS " + " ".join(f"{n}={i}" for n, i in STAMPS.items()) + "\n"
    out += '.amdgcn_target "amdgcn-amd-amdhsa--gfx950"\n.text\n'
    for kern, geo in ks:
        out += kern.text()
    out += '.section .rodata,"a"\n'
    for kern, geo in ks:
        out += kern.desc()
    sys.stdout.write(out)


if __name__ == "__main__":
    main()
```

```python
import sys, struct, math
from asmlib import Kern, vr, sr

S, D, H, DH = 2048, 1024, 32, 32
KA_X, KA_WQKV, KA_WPHI, KA_WOA, KA_BX, KA_WQ, KA_WK, KA_WV, KA_WOB, KA_OUT, KA_DBG, KA_WS = [8 * i for i in range(12)]
P_X, P_WQKV, P_WPHI, P_WOA, P_BX, P_WQ, P_WK, P_WV, P_WOB, P_OUT, P_DBG, P_WS = [64 + 2 * i for i in range(12)]
MB = 1 << 20
WS_X = [None, 0 * MB, 4 * MB, 8 * MB]
WS_O = [12 * MB, 16 * MB, 20 * MB, 24 * MB]
WS_KVP = [28 * MB, 32 * MB]
WS_KV = [36 * MB, 36 * MB + 0x40000]
WS_ZP = [37 * MB, 37 * MB + 0x20000]
WS_ST = [38 * MB + i * 0x40000 for i in range(4)]
WS_CSA = 39 * MB
WS_CSB = 39 * MB + 0x40000
WS_FL = 40 * MB
WS_END = 48 * MB
WS_PROF = 64 * MB
LOG2E = 1.4426950408889634
ONES2 = "0x3f803f80"
PROF = "prof" in sys.argv
X_NOLOAD = "noload" in sys.argv
X_NOMFMA = "nomfma" in sys.argv
NST = 16
STAGED = "nostaged" not in sys.argv
F_COL, F_OA, F_XA, F_KVB, F_OB, F_XB = range(6)


def flag_off(rep, grp):
    return WS_FL + (rep * 6 + grp) * 4096


def f32(x):
    return "0x%08x" % struct.unpack("<I", struct.pack("<f", x))[0]


def srd(k, d, ptr, nbytes):
    k(f"""s_mov_b32 s{d}, s{ptr}
    s_and_b32 s{d+1}, s{ptr+1}, 0xffff
    s_mov_b32 s{d+2}, {hex(nbytes)}
    s_mov_b32 s{d+3}, 0x20000""")


def srd_off(k, d, ptr, off, nbytes):
    k(f"""s_add_u32 s{d}, s{ptr}, {hex(off)}
    s_addc_u32 s{d+1}, s{ptr+1}, 0
    s_and_b32 s{d+1}, s{d+1}, 0xffff
    s_mov_b32 s{d+2}, {hex(nbytes)}
    s_mov_b32 s{d+3}, 0x20000""")


STAMPS = {}


def stamp(k, name):
    if not PROF:
        return
    idx = STAMPS.setdefault(name, len(STAMPS) + 2)
    assert idx < 128
    ins = "s_memtime" if "cyc" in sys.argv else "s_memrealtime"
    k(f"{ins} s[88:89]\ns_waitcnt lgkmcnt(0)\nv_writelane_b32 v{255 - idx // 64}, s88, {idx % 64}")


def M32(d, a, b, c=None):
    c = vr(d, 16) if c is None else c
    return f"v_mfma_f32_32x32x16_bf16 {vr(d,16)}, {vr(a,4)}, {vr(b,4)}, {c}"


def M16(d, a, b, c=None):
    c = vr(d, 4) if c is None else c
    return f"v_mfma_f32_16x16x32_bf16 {vr(d,4)}, {vr(a,4)}, {vr(b,4)}, {c}"


def gen_prep():
    k = Kern("prep_kernel")
    NWG = 258 + 64
    k(f"""
    s_cmp_ge_u32 s2, {NWG}
    s_cbranch_scc1 prep_end
    s_load_dwordx4 s[4:7], s[0:1], {KA_X}
    s_load_dwordx4 s[8:11], s[0:1], {KA_WQ}
    s_load_dwordx2 s[12:13], s[0:1], {KA_WV}
    s_load_dwordx2 s[14:15], s[0:1], {KA_WS}
    s_load_dwordx2 s[36:37], s[0:1], {KA_WOA}
    s_load_dwordx2 s[38:39], s[0:1], {KA_WOB}
    v_lshrrev_b32 v1, 6, v0
    v_and_b32 v2, 63, v0
    v_readfirstlane_b32 s3, v1
    s_waitcnt lgkmcnt(0)
    """)
    srd(k, 16, 14, WS_END)
    k("""s_cmp_ge_u32 s2, 258
    s_cbranch_scc1 prep_touch
    s_cmp_ge_u32 s2, 128
    s_cbranch_scc1 prep_cols""")
    srd(k, 20, 4, S * D * 2)
    k(f"""
    s_lshl_b32 s24, s2, 4
    s_lshl_b32 s25, s3, 2
    s_add_u32 s24, s24, s25
    s_lshl_b32 s25, s24, 11
    v_lshlrev_b32 v3, 4, v2
    s_mov_b32 s26, {ONES2}
    """)
    for i in range(4):
        k(f"buffer_load_dwordx4 {vr(8+8*i,4)}, v3, s[20:23], s25 offen offset:0")
        k(f"buffer_load_dwordx4 {vr(12+8*i,4)}, v3, s[20:23], s25 offen offset:1024")
        k(f"s_add_u32 s25, s25, 2048")
    k(f"""
    s_cmp_ge_u32 s2, 12
    s_cbranch_scc1 prep_nz
    v_mov_b32 v44, 0
    v_mov_b32 v45, 0
    v_mov_b32 v46, 0
    v_mov_b32 v47, 0
    v_lshlrev_b32 v4, 4, v0
    s_lshl_b32 s25, s2, 12
    s_add_u32 s25, s25, {hex(WS_FL)}
    buffer_store_dwordx4 v[44:47], v4, s[16:19], s25 offen
    prep_nz:
    v_and_b32 v4, 1, v2
    v_lshlrev_b32 v4, 7, v4
    v_lshrrev_b32 v5, 2, v2
    v_lshl_add_u32 v4, v5, 10, v4
    s_lshr_b32 s25, s24, 7
    s_lshl_b32 s25, s25, 14
    s_bfe_u32 s27, s24, 0x20005
    s_lshl_b32 s27, s27, 8
    s_add_u32 s25, s25, s27
    s_and_b32 s27, s24, 31
    s_lshl_b32 s28, s27, 2
    s_add_u32 s25, s25, s28
    s_add_u32 s25, s25, {hex(WS_ST[0])}
    v_lshrrev_b32 v6, 1, v2
    v_lshlrev_b32 v6, 10, v6
    v_and_b32 v5, 1, v2
    v_lshl_add_u32 v6, v5, 9, v6
    s_lshr_b32 s29, s24, 5
    s_lshl_b32 s29, s29, 16
    s_lshl_b32 s28, s27, 4
    s_add_u32 s29, s29, s28
    s_add_u32 s29, s29, {hex(WS_X[0])}
    s_add_u32 s30, s29, 32768
    v_cmp_eq_u32 vcc, 1, v5
    s_waitcnt vmcnt(0)
    """)
    for i in range(4):
        k("v_mov_b32 v40, 0\nv_mov_b32 v41, 0")
        for j in range(8):
            k(f"v_dot2_f32_bf16 v40, v{8+8*i+j}, s26, v40")
            k(f"v_dot2_f32_bf16 v41, v{8+8*i+j}, v{8+8*i+j}, v41")
        k("""v_cndmask_b32 v42, v40, v41, vcc
        v_cndmask_b32 v43, v41, v40, vcc
        v_add_f32_dpp v42, v43, v42 quad_perm:[1,0,3,2] row_mask:0xf bank_mask:0xf
        v_add_f32_dpp v48, v42, v42 quad_perm:[2,3,0,1] row_mask:0xf bank_mask:0xf
        """)
        k(f"buffer_store_dword v48, v4, s[16:19], s25 offen offset:{4*i}")
        for hf in range(2):
            a_ = 8 + 8 * i + 4 * hf
            o_ = 52 + 8 * i + 4 * hf
            k(f"""v_cndmask_b32 v50, v{a_+2}, v{a_}, vcc
            v_cndmask_b32 v51, v{a_+3}, v{a_+1}, vcc
            v_mov_b32_dpp v50, v50 quad_perm:[1,0,3,2] row_mask:0xf bank_mask:0xf
            v_mov_b32_dpp v51, v51 quad_perm:[1,0,3,2] row_mask:0xf bank_mask:0xf
            v_cndmask_b32 v{o_}, v{a_}, v50, vcc
            v_cndmask_b32 v{o_+1}, v{a_+1}, v51, vcc
            v_cndmask_b32 v{o_+2}, v50, v{a_+2}, vcc
            v_cndmask_b32 v{o_+3}, v51, v{a_+3}, vcc
            buffer_store_dwordx4 {vr(o_,4)}, v6, s[16:19], s{29+hf} offen offset:{16*i}""")
    k("s_endpgm")
    k(f"""prep_touch:
    s_sub_u32 s24, s2, 258
    s_cmp_ge_u32 s24, 32
    s_cselect_b32 s32, s38, s36
    s_cselect_b32 s33, s39, s37
    s_and_b32 s24, s24, 31
    s_lshl_b32 s24, s24, 16
    v_lshlrev_b32 v3, 4, v0
    """)
    srd(k, 20, 32, D * D * 2)
    for i in range(16):
        k(f"buffer_load_dwordx4 {vr(16+4*i,4)}, v3, s[20:23], s24 offen")
        k("s_add_u32 s24, s24, 4096")
    k("s_waitcnt vmcnt(0)\ns_endpgm")
    k("prep_cols:")
    k(f"""
    s_sub_u32 s24, s2, 128
    s_and_b32 s25, s24, 3
    s_lshr_b32 s26, s24, 2
    s_cmp_ge_u32 s2, 256
    s_cbranch_scc1 prep_small
    s_cmp_ge_u32 s2, 224
    s_cbranch_scc1 prep_wq
    """)
    srd(k, 20, 6, D * 3 * D * 2)
    k(f"""s_mov_b32 s27, 6144
    s_lshl_b32 s28, s26, 11
    s_add_u32 s28, s28, {hex(WS_CSA)}
    s_branch prep_big
    prep_wq:""")
    srd(k, 20, 8, D * D * 2)
    k(f"""s_mov_b32 s27, 2048
    s_sub_u32 s26, s26, 24
    s_lshl_b32 s28, s26, 11
    s_add_u32 s28, s28, {hex(WS_CSB)}
    prep_big:
    s_lshl_b32 s29, s25, 8
    s_lshl_b32 s30, s3, 6
    s_add_u32 s29, s29, s30
    s_mul_i32 s29, s29, s27
    s_lshl_b32 s30, s26, 8
    s_add_u32 s29, s29, s30
    s_lshl_b32 s30, s25, 2
    s_add_u32 s28, s28, s30
    v_lshlrev_b32 v6, 4, v0
    s_mov_b32 s31, 0
    s_branch prep_sum
    prep_small:
    s_cmp_eq_u32 s2, 257
    s_cselect_b32 s32, s12, s10
    s_cselect_b32 s33, s13, s11
    s_cselect_b32 s28, 512, 0
    s_add_u32 s28, s28, {hex(WS_CSB + 1024*16)}
    """)
    srd(k, 20, 32, D * 32 * 2)
    k(f"""s_mov_b32 s27, 256
    s_lshl_b32 s29, s3, 14
    v_and_b32 v6, 31, v0
    v_lshlrev_b32 v6, 4, v6
    v_lshrrev_b32 v7, 5, v0
    v_lshl_add_u32 v6, v7, 2, v6
    s_mov_b32 s31, 1
    prep_sum:
    v_lshrrev_b32 v3, 4, v2
    v_mul_lo_u32 v3, v3, s27
    v_and_b32 v4, 15, v2
    v_lshl_add_u32 v3, v4, 4, v3
    s_lshl_b32 s30, s27, 2
    """)
    for i in range(16):
        k(f"buffer_load_dwordx4 {vr(16+4*i,4)}, v3, s[20:23], s29 offen")
        k("s_add_u32 s29, s29, s30")
    k("s_mov_b32 s34, 0x3f80\ns_mov_b32 s35, 0x3f800000")
    for j in range(8):
        k(f"v_mov_b32 v{8+j}, 0")
    for i in range(16):
        k(f"s_waitcnt vmcnt({15-i})")
        for j in range(4):
            k(f"v_dot2_f32_bf16 v{8+2*j}, v{16+4*i+j}, s34, v{8+2*j}")
            k(f"v_dot2_f32_bf16 v{9+2*j}, v{16+4*i+j}, s35, v{9+2*j}")
    k(f"""
    v_lshlrev_b32 v3, 5, v0
    ds_write_b128 v3, v[8:11]
    ds_write_b128 v3, v[12:15] offset:16
    s_waitcnt lgkmcnt(0)
    s_barrier
    s_cmp_ge_u32 s3, 2
    s_cbranch_scc1 prep_end
    s_cmp_eq_u32 s31, 1
    s_cbranch_scc1 prep_red_small
    v_lshlrev_b32 v3, 2, v0
    """)
    for g in range(16):
        k(f"ds_read_b32 v{16+g}, v3 offset:{g*512}")
    k(f"""s_branch prep_red
    prep_red_small:
    v_and_b32 v3, 31, v0
    v_lshlrev_b32 v3, 2, v3
    v_lshrrev_b32 v4, 5, v0
    v_lshl_add_u32 v3, v4, 11, v3
    """)
    for g in range(16):
        k(f"ds_read_b32 v{16+g}, v3 offset:{(g>>2)*512 + (g&3)*128}")
    k("prep_red:\ns_waitcnt lgkmcnt(0)")
    for st in (8, 4, 2, 1):
        for g in range(st):
            k(f"v_add_f32 v{16+g}, v{16+g}, v{16+g+st}")
    k("""
    v_cvt_pk_bf16_f32 v17, v16, v16
    v_lshlrev_b32 v18, 16, v17
    v_sub_f32 v18, v16, v18
    v_cvt_pk_bf16_f32 v17, v16, v18
    buffer_store_dword v17, v6, s[16:19], s28 offen
    prep_end:
    s_endpgm
    """)
    return k, (NWG, 256, 8192)


def tile_map(k, mode):
    if mode == "4x8":
        k("""s_and_b32 s6, s2, 7
        s_lshr_b32 s7, s2, 3
        s_lshr_b32 s4, s6, 1
        s_lshl_b32 s4, s4, 2
        s_lshr_b32 s5, s7, 3
        s_add_u32 s4, s4, s5
        s_and_b32 s5, s6, 1
        s_lshl_b32 s5, s5, 3
        s_and_b32 s7, s7, 7
        s_add_u32 s5, s5, s7""")
    elif mode == "8x4":
        k("""s_and_b32 s6, s2, 7
        s_lshr_b32 s7, s2, 3
        s_lshr_b32 s4, s6, 2
        s_lshl_b32 s4, s4, 3
        s_lshr_b32 s5, s7, 2
        s_add_u32 s4, s4, s5
        s_and_b32 s5, s6, 3
        s_lshl_b32 s5, s5, 2
        s_and_b32 s7, s7, 3
        s_add_u32 s5, s5, s7""")


def lines(txt):
    return [l.strip() for l in txt.split("\n") if l.strip()]


def ln_stats(tmp, out_rstd, out_bop, single=False):
    t = tmp
    o = []
    for g in range(0, 8, 2):
        o.append(f"v_pk_add_f32 {vr(t+g,2)}, {vr(t+g,2)}, {vr(t+g+8,2)}")
    for g in range(0, 4, 2):
        o.append(f"v_pk_add_f32 {vr(t+g,2)}, {vr(t+g,2)}, {vr(t+g+4,2)}")
    o.append(f"v_pk_add_f32 {vr(t,2)}, {vr(t,2)}, {vr(t+2,2)}")
    o.append(f"v_add_f32 v{t}, v{t}, v{t+1}")
    if single:
        o = []
    o += lines(f"""
    v_mul_f32 v{t}, {f32(1.0/D)}, v{t}
    v_mov_b32 v{t+1}, v{t}
    v_permlane32_swap_b32 v{t}, v{t+1}
    v_fma_f32 v{t+1}, -v{t}, v{t}, v{t+1}
    v_max_f32 v{t+1}, 0, v{t+1}
    v_add_f32 v{t+1}, {f32(1e-5)}, v{t+1}
    v_rsq_f32 v{out_rstd}, v{t+1}
    """)
    if out_bop is not None:
        o += lines(f"""
        v_sub_f32 v{t}, 0, v{t}
        v_cvt_pk_bf16_f32 v{t+2}, v{t}, v{t}
        v_lshlrev_b32 v{t+3}, 16, v{t+2}
        v_sub_f32 v{t+3}, v{t}, v{t+3}
        v_cvt_pk_bf16_f32 v{t+3}, v{t+3}, v{t+3}
        v_cndmask_b32 v{out_bop}, v{t+2}, v{t+3}, s[40:41]
        v_mov_b32 v{out_bop+1}, v{out_bop}
        v_mov_b32 v{out_bop+2}, v{out_bop}
        v_mov_b32 v{out_bop+3}, v{out_bop}
        """)
    return o


def pk_mul(k, dst, src, sc, n):
    for i in range(0, n, 2):
        k(f"v_pk_mul_f32 {vr(dst+i,2)}, {vr(src+i,2)}, {vr(sc,2)}")


def feat_map(k, src, cvec, tmp, outp):
    t = tmp
    a, b, c, d = t + 32, t + 34, t + 36, t + 38
    k(f"v_max3_f32 v{a}, v{src}, v{src+1}, v{src+2}\nv_min3_f32 v{b}, v{src}, v{src+1}, v{src+2}")
    for i in range(3, 15, 2):
        k(f"v_max3_f32 v{a}, v{a}, v{src+i}, v{src+i+1}\nv_min3_f32 v{b}, v{b}, v{src+i}, v{src+i+1}")
    k(f"""v_max_f32 v{a}, v{a}, v{src+15}
    v_min_f32 v{b}, v{b}, v{src+15}
    v_mov_b32 v{c}, v{a}
    v_mov_b32 v{d}, v{b}
    v_permlane32_swap_b32 v{a}, v{c}
    v_permlane32_swap_b32 v{b}, v{d}
    v_max_f32 v{a}, v{a}, v{c}
    v_min_f32 v{b}, v{b}, v{d}
    v_mul_f32 v{a}, v{a}, v{cvec}
    v_mul_f32 v{b}, v{b}, v{cvec}
    v_mov_b32 v{a+1}, v{a}
    v_mov_b32 v{b+1}, v{b}
    """)
    for i in range(0, 16, 2):
        k(f"v_pk_fma_f32 {vr(t+i,2)}, {vr(src+i,2)}, {vr(cvec,2)}, {vr(a,2)} neg_lo:[0,0,1] neg_hi:[0,0,1]")
        k(f"v_pk_fma_f32 {vr(t+16+i,2)}, {vr(src+i,2)}, {vr(cvec,2)}, {vr(b,2)} neg_lo:[1,0,0] neg_hi:[1,0,0]")
    for i in range(32):
        k(f"v_exp_f32 v{t+i}, v{t+i}")
    k(f"v_pk_add_f32 {vr(a,2)}, {vr(t,2)}, {vr(t+2,2)}\nv_pk_add_f32 {vr(b,2)}, {vr(t+16,2)}, {vr(t+18,2)}")
    for i in range(4, 16, 2):
        k(f"v_pk_add_f32 {vr(a,2)}, {vr(a,2)}, {vr(t+i,2)}\nv_pk_add_f32 {vr(b,2)}, {vr(b,2)}, {vr(t+16+i,2)}")
    k(f"""v_add_f32 v{a}, v{a}, v{a+1}
    v_add_f32 v{b}, v{b}, v{b+1}
    v_mov_b32 v{c}, v{a}
    v_mov_b32 v{d}, v{b}
    v_permlane32_swap_b32 v{a}, v{c}
    v_permlane32_swap_b32 v{b}, v{d}
    v_add_f32 v{a}, v{a}, v{c}
    v_add_f32 v{b}, v{b}, v{d}
    v_rcp_f32 v{a}, v{a}
    v_rcp_f32 v{b}, v{b}
    v_mov_b32 v{a+1}, v{a}
    v_mov_b32 v{b+1}, v{b}
    """)
    pk_mul(k, t, t, a, 16)
    pk_mul(k, t + 16, t + 16, b, 16)
    for i in range(16):
        k(f"v_cvt_pk_bf16_f32 v{outp+i}, v{t+2*i}, v{t+2*i+1}")


def ones_pattern(k, dst, t0, t1):
    k(f"""v_bfe_u32 v{t0}, v1, 2, 1
    v_bfe_u32 v{t1}, v1, 4, 1
    v_cmp_eq_u32 vcc, v{t0}, v{t1}
    v_mov_b32 v{t0}, {ONES2}
    v_cndmask_b32 v{dst}, 0, v{t0}, vcc
    v_mov_b32 v{dst+1}, v{dst}
    v_mov_b32 v{dst+2}, v{dst}
    v_mov_b32 v{dst+3}, v{dst}""")


def wphi_loads(k, WP, headsreg):
    k(f"""v_lshlrev_b32 v10, 1, v2
    v_lshl_add_u32 v10, v3, 8, v10
    s_lshl_b32 s34, {headsreg}, 11""")
    for t in range(2):
        for e in range(2):
            for j in range(4):
                k(f"buffer_load_ushort v{WP+8*t+4*e+j}, v10, s[20:23], s34 offen offset:{(16*t+8*e+j)*64}")


CNT = 163840 - 64
_cnt = [0]


def new_cnt():
    _cnt[0] = (_cnt[0] + 1) % 16
    return CNT + 4 * _cnt[0]


def zero_cnt(k, addr):
    k(f"v_mov_b32 v4, {addr}\nv_mov_b32 v5, 0\nds_write_b32 v4, v5")


def signal(k, base, idx_sreg, nw=1, cnt=None, word=None):
    L = k.label("sig")
    k(f"""s_lshl_b32 s34, {idx_sreg}, 8
    s_add_u32 s34, s34, {hex(base)}
    v_mov_b32 v4, 1
    v_mov_b32 v5, 0
    s_mov_b64 exec, 1""")
    if nw > 1:
        k(f"""v_mov_b32 v6, {cnt}
        ds_add_rtn_u32 v7, v6, v4
        s_waitcnt lgkmcnt(0)
        v_readfirstlane_b32 s35, v7
        s_cmp_eq_u32 s35, {nw-1}
        s_cbranch_scc0 {L}""")
    if word:
        k(f"""s_lshl_b32 s35, {word}, 2
        s_add_u32 s34, s34, s35
        buffer_store_dword v4, v5, s[16:19], s34 offen sc1""")
    else:
        k("buffer_atomic_add v4, v5, s[16:19], s34 offen sc1")
    k(f"""{L}:
    s_mov_b64 exec, -1""")


def wait_flag(k, base, idx_sreg, target, all16=False, sa=52, sb=53):
    L = k.label("poll")
    if all16:
        k(f"""v_and_b32 v4, 15, v1
        v_lshlrev_b32 v4, 8, v4
        s_mov_b32 s{sa}, {hex(base)}""")
    else:
        k(f"""v_mov_b32 v4, 0
        s_lshl_b32 s{sa}, {idx_sreg}, 8
        s_add_u32 s{sa}, s{sa}, {hex(base)}""")
    if True:
        k(f"""s_mov_b32 s{sb}, 0
        {L}:
        buffer_load_dword v5, v4, s[16:19], s{sa} offen sc1
        s_waitcnt vmcnt(0)
        v_cmp_gt_u32 vcc, {target}, v5
        s_cbranch_vccz {L}_ok
        s_add_u32 s{sb}, s{sb}, 1
        s_cmp_lt_u32 s{sb}, 0x40000
        s_cbranch_scc1 {L}
        {L}_ok:""")
        return
    k(f"""s_mov_b32 s{sb}, 0
    buffer_load_dword v5, v4, s[16:19], s{sa} offen sc1
    s_sleep 2
    buffer_load_dword v6, v4, s[16:19], s{sa} offen sc1
    s_sleep 2
    {L}:""")
    for a_, b_ in ((7, 5), (5, 6), (6, 7)):
        k(f"""buffer_load_dword v{a_}, v4, s[16:19], s{sa} offen sc1
        s_waitcnt vmcnt(2)
        v_cmp_gt_u32 vcc, {target}, v{b_}
        s_cbranch_vccz {L}_ok""")
    k(f"""s_add_u32 s{sb}, s{sb}, 1
    s_cmp_lt_u32 s{sb}, 0x20000
    s_cbranch_scc1 {L}
    {L}_ok:
    s_waitcnt vmcnt(0)""")


class VQ:
    def __init__(self):
        self.q = []

    def add(self, tag, n=1):
        self.q += [tag] * n

    def cnt(self, tag):
        last = max(i for i, t in enumerate(self.q) if t == tag)
        return len(self.q) - 1 - last


def gemm_loader(k, nseg, wstride, R, stage_bytes, extra, relaxed, tag, wt, pre=None, mid=None, npre=None,
                preflag=None, first=1, lims=None, rm=False, staged=False):
    if pre:
        pre()
    k(f"""
    s_sub_u32 s30, s3, 4
    v_lshrrev_b32 v6, 3, v1
    v_and_b32 v7, 7, v1
    s_lshl_b32 s31, s30, 4
    s_mov_b32 s33, {wstride}
    v_lshrrev_b32 v5, 1, v6
    v_and_b32 v5, 1, v5
    v_lshlrev_b32 v5, 2, v5
    v_xor_b32 v5, v5, v7
    v_lshlrev_b32 v5, 4, v5
    s_lshl_b32 s32, s5, 7
    v_add_u32 v5, s32, v5
    """)
    for jj in range(2):
        k(f"""
        v_add_u32 v4, {8*jj}, v6
        v_add_u32 v4, s31, v4
        v_mul_lo_u32 v4, v4, s33
        v_add_u32 v{12+jj}, v4, v5
        """)
        if jj:
            k(f"v_subrev_u32 v{12+jj}, {1024*jj}, v{12+jj}")
    for p in range(1, nseg):
        for jj in range(2):
            k(f"v_add_u32 v{12+2*p+jj}, {2048*p}, v{12+jj}")
    k("v_lshlrev_b32 v8, 4, v1")
    if extra:
        k(f"""s_lshl_b32 s31, s30, 10
        v_add_u32 v20, s31, v8""")
    k(f"""
    s_lshl_b32 s34, s30, 12
    s_lshl_b32 s35, s30, 11
    s_add_u32 s35, s35, 16384
    s_lshl_b32 s36, s30, 10
    s_add_u32 s36, s36, {16384 + nseg*8192}
    s_lshl_b32 s37, s4, 2
    s_add_u32 s37, s37, s30
    s_lshl_b32 s37, s37, 16
    s_mov_b32 s38, 0
    s_mov_b32 s39, 0
    """)
    if rm:
        k(f"""s_lshl_b32 s31, s4, 7
        s_lshl_b32 s32, s30, 5
        s_add_u32 s31, s31, s32
        s_add_u32 s61, s4, s5
        s_and_b32 s61, s61, 15
        s_mov_b32 s62, s61
        s_lshl_b32 s37, s61, 7
        s_mul_i32 s38, s61, {64*wstride}""")
        for jj in range(4):
            k(f"""
            v_add_u32 v4, {8*jj}, v6
            v_lshrrev_b32 v5, 1, v4
            v_and_b32 v5, 7, v5
            v_xor_b32 v5, v5, v7
            v_add_u32 v4, s31, v4
            v_lshlrev_b32 v4, 11, v4
            v_lshl_add_u32 v{20+jj}, v5, 4, v4
            """)
            if jj:
                k(f"v_subrev_u32 v{20+jj}, {1024*jj}, v{20+jj}")
    q = VQ()

    def issueW(st):
        slot = (st % R) * stage_bytes
        for p in range(nseg):
            k(f"s_add_u32 m0, s35, {slot + p*8192}")
            for jj in range(2):
                if not (X_NOLOAD and st >= R):
                    k(f"buffer_load_dwordx4 v{12+2*p+jj}, s[12:15], s38 offen offset:{1024*jj} lds")
                q.add(("s", st))
        if extra:
            k(f"s_add_u32 m0, s36, {slot}")
            k(f"buffer_load_dwordx4 v20, s[20:23], s39 offen lds")
            q.add(("s", st))
            k("s_add_u32 s39, s39, 4096")
        if rm:
            k(f"s_cmp_le_u32 s61, {st}\ns_cselect_b32 s62, {st+1}, {st}\ns_mul_i32 s38, s62, {64*wstride}")
        else:
            k(f"s_add_u32 s38, s38, {64*wstride}")

    def issueX(st):
        slot = (st % R) * stage_bytes
        if staged:
            L = k.label("sp")
            k(f"""s_cmp_gt_u32 s63, {st}
            s_cbranch_scc1 {L}_ok
            s_mov_b32 s53, 0
            {L}:
            buffer_load_dword v5, v4, s[16:19], s52 offen sc1
            s_waitcnt vmcnt(0)
            v_cmp_ne_u32 vcc, 1, v5
            s_or_b32 s63, vcc_lo, 0x10000
            s_ff1_i32_b32 s63, s63
            s_cmp_gt_u32 s63, {st}
            s_cbranch_scc1 {L}_ok
            s_add_u32 s53, s53, 1
            s_cmp_lt_u32 s53, 0x40000
            s_cbranch_scc1 {L}
            {L}_ok:""")
            if st == 0:
                stamp(k, tag + "_flag")
        k(f"s_add_u32 m0, s34, {slot}")
        for jj in range(4):
            if X_NOLOAD and st >= R:
                pass
            elif rm:
                k(f"buffer_load_dwordx4 v{20+jj}, s[8:11], s37 offen offset:{1024*jj} lds")
            else:
                k(f"buffer_load_dwordx4 v8, s[8:11], s37 offen offset:{1024*jj} sc1 lds")
            q.add(("s", st))
        if rm:
            k(f"s_cmp_le_u32 s61, {st}\ns_cselect_b32 s62, {st+1}, {st}\ns_lshl_b32 s37, s62, 7")
        else:
            k("s_add_u32 s37, s37, 4096")

    if wt:
        P_ = R if R * stage_bytes <= CNT else R - 1
        if npre is not None:
            P_ = npre
        for st in range(P_):
            issueW(st)
        if preflag:
            preflag(q)
        if staged:
            k(f"""v_and_b32 v4, 15, v1
            v_lshlrev_b32 v4, 2, v4
            s_lshl_b32 s52, {wt[1]}, 8
            s_add_u32 s52, s52, {hex(wt[0])}
            s_mov_b32 s63, 0""")
        else:
            NPL = k.label("np")
            k(f"s_cmp_lg_u32 s3, 4\ns_cbranch_scc1 {NPL}")
            wait_flag(k, *wt)
            k(f"{NPL}:\ns_waitcnt vmcnt(0)\ns_barrier")
            stamp(k, tag + "_flag")
        xi, wi = 0, P_
    else:
        xi, wi = 0, 0
    D_ = R - 2 if relaxed else R - 1

    def upto(lim):
        nonlocal xi, wi
        while xi <= lim or wi <= lim:
            if xi <= lim:
                issueX(xi)
                xi += 1
            if wi <= lim and wi < xi:
                issueW(wi)
                wi += 1

    upto(first)
    for i in range(NST):
        k(f"s_waitcnt vmcnt({q.cnt(('s', i))})")
        k("s_barrier")
        lim = min(NST - 1, max(R - 1, i + D_))
        if lims and i in lims:
            lim = lims[i]
        upto(lim)
        if mid and i in mid:
            mid[i](q)


def gemm_compute(k, R, stage_bytes, A, bases, xoffs, waddr_list, frag_base, mfmas, nfragregs, ab, tag, nbuf=4,
                 per=None, filler=None, fper=3, after_b0=None, e2=True, after_e2=None, rm=False, late=None, pre_m=0, at_iter=None, mf_first=None, after_first=None):
    loopname = k.label(tag + "_loop")

    def upd():
        for i, b in enumerate(bases):
            k(f"v_add_u32 v{ab+i}, s32, v{b}")

    def reads(t):
        out = []
        fr = frag_base + (t % nbuf) * nfragregs
        for i, xo in enumerate(xoffs):
            if rm:
                out.append(f"ds_read_b128 {vr(fr+4*i,4)}, v{ab+t} offset:{xo}")
            else:
                out.append(f"ds_read_b128 {vr(fr+4*i,4)}, v{ab} offset:{xo + 1024*t}")
        fr += 4 * len(xoffs)
        for i, (wi, wo, rb) in enumerate(waddr_list):
            for rd in range(2):
                if rm:
                    out.append(f"ds_read_b64_tr_b16 {vr(fr+4*i+2*rd,2)}, v{ab+wi+3} offset:{wo + (16*t+4*rd)*rb}")
                else:
                    out.append(f"ds_read_b64_tr_b16 {vr(fr+4*i+2*rd,2)}, v{ab+wi} offset:{wo + (16*t+8*rd)*rb}")
        return out

    n = len(reads(0))

    def stage(last, fill, mfmas=mfmas):
        for t in range(4):
            nxt = t + A
            rd = []
            if nxt < 4:
                rd = reads(nxt)
            elif not last:
                rd = reads(nxt - 4)
            young = sum(1 for u in range(t + 1, t + A) if (u < 4 or not last)) * n
            k(f"s_waitcnt lgkmcnt({min(young,15)})")
            ms = mfmas(frag_base + (t % nbuf) * nfragregs, t)
            if X_NOMFMA:
                ms, rd = ms[:1], []
            p = per or max(1, -(-len(rd) // max(1, len(ms) - 1)))
            if nxt == 4 and not last:
                k(f"""s_add_u32 s32, s32, {stage_bytes}
                s_cmp_eq_u32 s32, {R*stage_bytes}
                s_cselect_b32 s32, 0, s32""")
                for m in ms[:pre_m]:
                    k(m)
                ms = ms[pre_m:]
                upd()
                k("s_barrier")
                if pre_m:
                    p = -(-len(rd) // max(1, len(ms) - 1 if len(ms) > 1 else 1))
                    for r_ in rd[:p]:
                        k(r_)
                    rd = rd[p:]
            if last and t == 3:
                k(ms[0])
                ms = ms[1:]
                k("s_barrier")
            for i, m in enumerate(ms):
                k(m)
                rr = rd[i * p:(i + 1) * p]
                for r_ in rr:
                    k(r_)
                for _ in range(max(0, fper + 2 - len(rr))):
                    if fill:
                        k(fill.pop(0))
            for r_ in rd[len(ms) * p:]:
                k(r_)
        while fill:
            k(fill.pop(0))

    k(f"s_mov_b32 s32, 0\ns_mov_b32 s33, 0")
    stamp(k, tag + "_b0pre")
    if e2:
        k("s_barrier")
    if after_e2:
        after_e2()
    k("s_barrier")
    stamp(k, tag + "_b0")
    upd()
    for t in range(A):
        for r_ in reads(t):
            k(r_)
    if after_b0:
        after_b0()
    nloop = min(late) if late else NST - 1
    if mf_first:
        stage(False, [], mf_first)
        k("s_mov_b32 s33, 1")
        after_first()
    k(f"{loopname}:")
    stage(False, [])
    for it_, fn_ in (at_iter or []):
        SKP = k.label("skip")
        k(f"s_cmp_eq_u32 s33, {it_}\ns_cbranch_scc0 {SKP}")
        fn_()
        k(f"{SKP}:")
    k(f"""s_add_u32 s33, s33, 1
    s_cmp_lt_u32 s33, {nloop}
    s_cbranch_scc1 {loopname}""")
    for st in range(nloop, NST - 1):
        stage(False, list(late.get(st, [])))
    stage(True, list(filler or []))
    stamp(k, tag + "_loopend")


def x_addr(k, dst, rowsreg):
    k(f"""
    v_add_u32 v4, {rowsreg}, v2
    v_bfe_u32 v5, v4, 1, 3
    v_lshlrev_b32 v4, 7, v4
    """)
    for t in range(4):
        k(f"""v_add_u32 v6, {2*t}, v3
        v_xor_b32 v6, v6, v5
        v_lshl_add_u32 v{dst+t}, v6, 4, v4""")


def hilo(src, dst, tmp):
    return lines(f"""v_cvt_pk_bf16_f32 v{tmp}, v{src}, v{src}
    v_lshlrev_b32 v{tmp}, 16, v{tmp}
    v_sub_f32 v{tmp}, v{src}, v{tmp}
    v_cvt_pk_bf16_f32 v{dst}, v{src}, v{tmp}""")


def cs_build(dst, src):
    return [f"v_mov_b32 v{dst}, v{src}"] + [f"v_mov_b32 v{dst+i}, 0" for i in (1, 2, 3)]


class Cap:
    def __init__(self):
        self.l = []

    def __call__(self, t):
        self.l += lines(t)


def w_tr_base(k, dst, col0, rb, swz, hs=2):
    k(f"""
    v_and_b32 v4, 15, v1
    v_lshrrev_b32 v5, 2, v4
    v_lshl_add_u32 v5, v3, {hs}, v5
    v_mul_u32_u24 v5, {rb}, v5
    v_and_b32 v6, 3, v4
    v_lshlrev_b32 v6, 3, v6
    v_bfe_u32 v7, v1, 4, 1
    v_lshl_add_u32 v6, v7, 5, v6
    v_add_u32 v6, {col0}, v6
    """)
    if swz:
        k(f"""v_bfe_u32 v7, v1, 3, 1
        v_lshlrev_b32 v7, 6, v7
        v_xor_b32 v6, v6, v7""")
    k(f"v_add_u32 v{dst}, v5, v6")


def stats_loads(k, dst, w32_sreg, tmpv, st_off, q=None):
    k(f"""v_lshlrev_b32 v{tmpv}, 2, v1
    s_lshl_b32 s54, s4, 14
    s_lshl_b32 s55, {w32_sreg}, 8
    s_add_u32 s54, s54, s55
    s_add_u32 s54, s54, {hex(st_off)}""")
    for c in range(16):
        k(f"buffer_load_dword v{dst+c}, v{tmpv}, s[16:19], s54 offen offset:{1024*(c&3)} sc1")
        if q is not None:
            q.add("stats")
        if c & 3 == 3 and c < 15:
            k("s_add_u32 s54, s54, 4096")


XINIT = int(dict(a.split('=') for a in sys.argv if '=' in a).get('xinit', 8))
XDEPTH = int(dict(a.split('=') for a in sys.argv if '=' in a).get('xdepth', 20))
WGRP = [0, 4, 10]


def stage_poll(k, st):
    L = k.label("sp")
    k(f"""s_cmp_gt_u32 s63, {st}
    s_cbranch_scc1 {L}_ok
    s_mov_b32 s53, 0
    {L}:
    buffer_load_dword v5, v4, s[16:19], s52 offen sc1
    s_waitcnt vmcnt(0)
    v_cmp_ne_u32 vcc, 1, v5
    s_or_b32 s63, vcc_lo, 0x10000
    s_ff1_i32_b32 s63, s63
    s_cmp_gt_u32 s63, {st}
    s_cbranch_scc1 {L}_ok
    s_add_u32 s53, s53, 1
    s_cmp_lt_u32 s53, 0x40000
    s_cbranch_scc1 {L}
    {L}_ok:""")


def wpf_setup(k, ptr, nw, widx):
    srd(k, 24, ptr, D * D * 2)
    sh = 3 if nw == 8 else 4
    k(f"""s_and_b32 s57, s2, 1
    s_lshl_b32 s57, s57, 3
    s_bfe_u32 s58, s2, 0x30003
    s_add_u32 s57, s57, s58
    s_lshl_b32 s57, s57, 7
    v_lshrrev_b32 v241, 3, v1
    v_bfe_u32 v242, v241, 1, 1
    v_lshlrev_b32 v242, 2, v242
    v_and_b32 v243, 7, v1
    v_xor_b32 v242, v242, v243
    v_lshlrev_b32 v242, 4, v242
    s_lshl_b32 s58, {widx}, {sh}
    v_add_u32 v241, s58, v241
    v_lshl_add_u32 v241, v241, 11, v242
    v_add_u32 v241, s57, v241
    v_add_u32 v242, {8*2048-1024}, v241
    s_lshl_b32 s60, {widx}, {sh+7}""")


def wpf_issue(k, stages, wloc, nw, q=None):
    for st in stages:
        k(f"s_add_u32 m0, s60, {wloc(st)}\ns_mov_b32 s59, {st*64*2048}")
        k("buffer_load_dwordx4 v241, s[24:27], s59 offen lds")
        if nw == 4:
            k("buffer_load_dwordx4 v242, s[24:27], s59 offen offset:1024 lds")
        if q is not None:
            q.add("wpf", 8 // nw)


def wloc_a(st):
    return 81920 + 8192 * st if st < 9 else 8192 * (st - 9)


def wloc_b(st):
    return 8192 * st if st < 12 else (131072 + 8192 * (st - 12) if st < 15 else 98304)


def gemm2_loader(k, tag, wloc, order=None, hooks=None):
    k(f"""
    s_sub_u32 s30, s3, 4
    v_lshrrev_b32 v6, 3, v1
    v_and_b32 v7, 7, v1
    s_lshl_b32 s31, s30, 4
    v_lshrrev_b32 v5, 1, v6
    v_and_b32 v5, 1, v5
    v_lshlrev_b32 v5, 2, v5
    v_xor_b32 v5, v5, v7
    v_lshlrev_b32 v5, 4, v5
    s_lshl_b32 s32, s5, 7
    v_add_u32 v5, s32, v5
    v_add_u32 v4, s31, v6
    v_lshl_add_u32 v12, v4, 11, v5
    v_add_u32 v13, {8*2048-1024}, v12
    v_lshlrev_b32 v8, 4, v1
    s_lshl_b32 s35, s30, 11
    """)
    q = VQ()
    if order is None:
        order = list(range(16)) + [("bar", g) for g in (3, 9, 15)]
    for o in order:
        if callable(o):
            o(q)
        elif o == ("bar0",):
            k("s_barrier")
        elif isinstance(o, tuple):
            k(f"s_waitcnt vmcnt({q.cnt(('s', o[1]))})\ns_barrier")
        else:
            k(f"s_add_u32 m0, s35, {wloc(o)}\ns_mov_b32 s38, {o*64*2048}")
            for jj in range(2):
                k(f"buffer_load_dwordx4 v{12+jj}, s[12:15], s38 offen offset:{1024*jj} lds")
                q.add(("s", o))


def rdy_poller(k, wt, rdy):
    L = k.label("rp")
    k(f"""s_cmp_lg_u32 s3, 7
    s_cbranch_scc1 {L}_ok
    v_and_b32 v4, 15, v1
    v_lshlrev_b32 v4, 2, v4
    s_lshl_b32 s52, {wt[1]}, 8
    s_add_u32 s52, s52, {hex(wt[0])}
    s_mov_b32 s53, 0
    v_mov_b32 v6, {rdy}
    {L}:
    buffer_load_dword v5, v4, s[16:19], s52 offen sc1
    s_waitcnt vmcnt(0)
    v_cmp_ne_u32 vcc, 1, v5
    s_or_b32 s63, vcc_lo, 0x10000
    s_ff1_i32_b32 s63, s63
    s_add_u32 s53, s53, 1
    s_cmp_lt_u32 s53, 0x40000
    s_cselect_b32 s63, s63, 16
    v_mov_b32 v7, s63
    ds_write_b32 v6, v7
    s_cmp_lt_u32 s63, 16
    s_cbranch_scc1 {L}
    {L}_ok:""")


def gemm2_compute(k, tag, ACC, XR, WF, wb, wloc, wt, filler=None, extra=None, late=None, groups=WGRP, pre=None, rdy=None,
                  before_x=None, ring=32, fill_from=48):
    q = VQ()
    fill = list(filler or [])
    k(f"""v_add_u32 v{wb+2}, 0x10000, v{wb}
    v_add_u32 v{wb+3}, 0x10000, v{wb+1}
    v_add_u32 v{wb+4}, 0x20000, v{wb}
    v_add_u32 v{wb+5}, 0x20000, v{wb+1}""")
    if wt:
        k(f"v_mov_b32 v4, {rdy}\ns_mov_b32 s63, 0")

    def xload(j):
        if j % 4 == 0 and wt:
            L = k.label("lp")
            k(f"""s_cmp_gt_u32 s63, {j//4}
            s_cbranch_scc1 {L}_ok
            {L}:
            ds_read_b32 v5, v4
            s_waitcnt lgkmcnt(0)
            v_readfirstlane_b32 s63, v5
            s_cmp_gt_u32 s63, {j//4}
            s_cbranch_scc0 {L}
            {L}_ok:""")
            if j == 0:
                stamp(k, tag + "_flag")
        k(f"buffer_load_dwordx4 {vr(XR+4*(j%ring),4)}, v10, s[8:11], s39 offen offset:{1024*(j&3)} sc1")
        q.add(("x", j))
        if j % 4 == 3:
            k("s_add_u32 s39, s39, 4096")

    def wreads(j):
        off = wloc(j // 4) + (16 * (j % 4)) * 128
        hi = off >> 16
        return [f"ds_read_b64_tr_b16 {vr(WF+8*(j%4)+4*bl+2*rd,2)}, v{wb+2*hi+bl} offset:{(off & 0xffff) + 1024*rd}"
                for bl in range(2) for rd in range(2)]

    stamp(k, tag + "_b0pre")
    k("s_barrier")
    if before_x:
        before_x()
    nx = 0
    for j in range(XINIT):
        xload(j)
        nx += 1
    if pre:
        pre(q)
    stamp(k, tag + "_b0")
    for j in range(2):
        for r_ in wreads(j):
            k(r_)
    for j in range(64):
        if late and j in late:
            late[j](q)
        rd = wreads(j + 2) if j + 2 < 64 else []
        k(f"s_waitcnt vmcnt({min(63, q.cnt(('x', j)))}) lgkmcnt({4 if j < 63 else 0})")
        x, w = XR + 4 * (j % ring), WF + 8 * (j % 4)
        k(M32(ACC, w, x))
        if j == 63 or ((j + 2) % 4 == 0 and (j + 2) // 4 in groups[1:]):
            k("s_barrier")
        for r_ in rd[:2]:
            k(r_)
        for _ in range(2):
            if j >= fill_from and fill:
                k(fill.pop(0))
        k(M32(ACC + 16, w + 4, x))
        if extra:
            extra(j, w)
        for r_ in rd[2:]:
            k(r_)
        for _ in range(2):
            if nx < 64 and nx <= j + XDEPTH:
                xload(nx)
                nx += 1
        for _ in range(2):
            if j >= fill_from and fill:
                k(fill.pop(0))
    while fill:
        k(fill.pop(0))
    stamp(k, tag + "_loopend")


def phase_wo(k, tag, p_w, lin, oi, wt, sig_base, final):
    LD, END = k.label(tag + "_ld"), k.label(tag + "_end")
    tile_map(k, "4x8")
    srd_off(k, 8, P_WS, WS_O[oi], S * D * 2)
    srd(k, 12, p_w, D * D * 2)
    if final:
        srd(k, 24, P_OUT, S * D * 2)
    if lin == 0:
        srd(k, 24, P_X, S * D * 2)
    k(f"s_cmp_ge_u32 s3, 4\ns_cbranch_scc1 {LD}")
    k(f"""
    s_lshl_b32 s30, s4, 2
    s_add_u32 s30, s30, s3
    s_lshl_b32 s39, s30, 16
    s_lshl_b32 s31, s5, 12
    s_add_u32 s36, s39, s31
    s_add_u32 s37, s36, {hex(WS_X[lin] or 0)}
    v_lshlrev_b32 v10, 4, v1
    """)
    rm_addr = lines(f"""s_lshl_b32 s31, s30, 5
        v_add_u32 v9, s31, v2
        v_lshlrev_b32 v9, 11, v9
        v_lshl_add_u32 v9, v3, 4, v9
        s_lshl_b32 s31, s5, 7
        v_add_u32 v9, s31, v9""")
    ACC, RES, XR, WF = 32, 64, 96, 64
    if lin == 0:
        for l_ in rm_addr:
            k(l_)
    for q in range(4):
        if lin == 0:
            k(f"buffer_load_dwordx4 {vr(RES+4*q,4)}, v9, s[24:27], 0 offen offset:{32*q}")
        else:
            k(f"buffer_load_dwordx4 {vr(RES+4*q,4)}, v10, s[16:19], s37 offen offset:{1024*q} sc1")
    w_tr_base(k, 12, "0", 128, True)
    k("v_xor_b32 v13, 64, v12")
    cnt = new_cnt()
    zero_cnt(k, cnt)
    rdy = new_cnt()
    zero_cnt(k, rdy)
    k("s_waitcnt vmcnt(0) lgkmcnt(0)")
    if lin == 0:
        for q in range(4):
            a = RES + 4 * q
            k(f"v_permlane32_swap_b32 v{a}, v{a+2}\nv_permlane32_swap_b32 v{a+1}, v{a+3}")
    for i in range(16):
        k(f"v_lshlrev_b32 v{ACC+2*i}, 16, v{RES+i}\nv_and_b32 v{ACC+2*i+1}, 0xffff0000, v{RES+i}")
    if final:
        fill = list(rm_addr)
    else:
        fill = lines(f"""s_add_u32 s37, s36, {hex(WS_X[lin+1])}
        s_mov_b32 s35, {ONES2}
        v_mov_b32 v24, 0
        v_mov_b32 v25, 0
        s_lshl_b32 s38, s4, 14
        s_lshl_b32 s31, s5, 10
        s_add_u32 s38, s38, s31
        s_lshl_b32 s31, s3, 8
        s_add_u32 s38, s38, s31
        s_add_u32 s38, s38, {hex(WS_ST[lin+1])}
        v_lshlrev_b32 v9, 2, v1""")
    if p_w == P_WOA:
        wloc, groups, order = wloc_a, [0, 9], list(range(9, 16)) + [("bar0",), lambda q: rdy_poller(k, wt, rdy), ("bar", 15),
                                                          lambda q: (qkvb_early(k, 0), qkvb_early(k, 1))]
    else:
        wloc, groups, order = wloc_b, [0, 15], [15, ("bar0",), lambda q: rdy_poller(k, wt, rdy), ("bar", 15)]
    gemm2_compute(k, tag, ACC, XR, WF, 12, wloc, wt, filler=fill, groups=groups, rdy=rdy)
    RES = 96
    for q in range(4):
        a = RES + 4 * q
        for j in range(4):
            ac = ACC + 8 * q + 2 * j
            k(f"v_cvt_pk_bf16_f32 v{a+j}, v{ac}, v{ac+1}")
        if final:
            k(f"v_permlane32_swap_b32 v{a}, v{a+2}\nv_permlane32_swap_b32 v{a+1}, v{a+3}")
            k(f"buffer_store_dwordx4 {vr(a,4)}, v9, s[24:27], 0 offen offset:{32*q}")
        else:
            k(f"buffer_store_dwordx4 {vr(a,4)}, v10, s[16:19], s37 offen offset:{1024*q} sc1")
    if not final:
        for i in range(16):
            k(f"v_dot2_f32_bf16 v24, v{RES+i}, s35, v24\nv_dot2_f32_bf16 v25, v{RES+i}, v{RES+i}, v25")
        k(f"""
        v_permlane32_swap_b32 v24, v25
        v_add_f32 v24, v24, v25
        buffer_store_dword v24, v9, s[16:19], s38 offen sc1
        """)
        stamp(k, tag + "_st")
        k("s_waitcnt vmcnt(0)")
        stamp(k, tag + "_drain")
        signal(k, sig_base, "s4", 4, cnt, "s5")
    k(f"s_branch {END}\n{LD}:")
    gemm2_loader(k, tag, wloc, order)
    k(f"s_barrier\n{END}:")
    if False:
        k("s_barrier")


QX_B = 147456
WKV_L = 81920
VT_B = 155648
CSP_L = VT_B + 2304
CSX_L = 131072


def wloc_q(st):
    if st < 3:
        return 57344 + 8192 * st
    if st < 10:
        return 8192 * (st - 3)
    if st == 10:
        return 147456
    if st < 15:
        return WKV_L + 16384 * (st - 11) + 8192
    return WKV_L


def qkvb_early(k, part):
    if part == 0:
        wpf_setup(k, P_WQ, 4, "s30")
        wpf_issue(k, [0, 1, 2], wloc_q, 4)
        return
    A_, B_ = k.label("qe"), k.label("qe")
    k(f"s_cmp_ge_u32 s5, 8\ns_cbranch_scc1 {A_}")
    k(f"""s_bitcmp1_b32 s5, 0
    s_cselect_b32 s46, s{P_WV}, s{P_WK}
    s_cselect_b32 s47, s{P_WV+1}, s{P_WK+1}""")
    srd(k, 20, 46, D * 32 * 2)
    k(f"""s_lshl_b32 s39, s30, 14
    s_add_u32 s31, s39, {WKV_L}""")
    for g in range(4):
        k(f"s_add_u32 m0, s31, {4096*g}")
        for jj in range(4):
            k(f"buffer_load_dwordx4 v8, s[20:23], s39 offen offset:{1024*jj} lds")
        k("s_add_u32 s39, s39, 4096")
    k(f"s_branch {B_}\n{A_}:")
    wpf_issue(k, [11, 12, 13, 14, 15], wloc_q, 4)
    k(f"{B_}:")


def phase_qkvb(k, tag, rep, lin, wt):
    LD, END, NOKV, SG = [k.label(tag + x) for x in ("_ld", "_end", "_nokv", "_sg")]
    first = rep == 0
    tile_map(k, "4x8")
    srd_off(k, 8, P_WS, WS_X[lin], S * D * 2)
    srd(k, 12, P_WQ, D * D * 2)
    k("s_lshr_b32 s48, s5, 1")
    rdy = new_cnt()
    k(f"s_cmp_ge_u32 s3, 4\ns_cbranch_scc1 {LD}")
    ACC, WF, XR = 32, 64, 96
    STT, CS, RSTD, SC, BOP = 224, 20, 18, 28, 240
    CA, ON = 224 - 16, 224 - 8
    k(f"""
    v_lshlrev_b32 v10, 4, v1
    s_lshl_b32 s39, s4, 2
    s_add_u32 s36, s39, s48
    s_add_u32 s39, s39, s3
    s_lshl_b32 s39, s39, 16
    s_lshl_b32 s36, s36, 16
    s_lshl_b32 s31, s3, 14
    s_add_u32 s36, s36, s31
    """)
    w_tr_base(k, 12, "0", 128, True)
    k("v_xor_b32 v13, 64, v12")
    w_tr_base(k, 30, "0", 64, False)
    k(f"""s_lshl_b32 s31, s3, 14
    s_add_u32 s31, s31, {WKV_L}
    v_add_u32 v30, s31, v30
    v_add_u32 v31, s31, v10""")
    zero_cnt(k, rdy)
    for i in range(32):
        k(f"v_mov_b32 v{ACC+i}, 0")
    if first:
        ones_pattern(k, ON, 4, 5)
        for i in range(8):
            k(f"v_mov_b32 v{CA+i}, 0")
    k("s_waitcnt lgkmcnt(0)")

    def extra(j, w):
        if first:
            L_ = k.label("cs")
            k(f"""s_cmp_eq_u32 s3, {j % 4}
            s_cbranch_scc0 {L_}
            {M16(CA, ON, w)}
            {M16(CA + 4, ON, w + 4)}
            {L_}:""")

    fill = ["s_waitcnt vmcnt(0)"] + ln_stats(STT, RSTD, BOP) + [
        f"v_mul_f32 v{SC}, {f32(LOG2E * DH**-0.5)}, v{RSTD}",
        f"v_mov_b32 v{SC+1}, v{SC}"] + lines(f"""s_lshl_b32 s34, s3, 11
        s_add_u32 s34, s34, {QX_B}
        v_add_u32 v11, s34, v10""")
    if not first:
        fill += cs_build(CS, 251) + cs_build(CS + 4, 252)

    XF, WP_, E_ = 128, 64, 192

    def prepass_a():
        L = k.label("pp")
        k(f"""s_cmp_ge_u32 s5, 8
        s_cbranch_scc1 {NOKV}_a
        s_lshl_b32 s31, s3, 2
        s_add_u32 s31, s31, 3
        {L}:
        ds_read_b32 v5, v4
        s_waitcnt lgkmcnt(0)
        v_readfirstlane_b32 s63, v5
        s_cmp_gt_u32 s63, s31
        s_cbranch_scc0 {L}""")
        for t in range(16):
            k(f"buffer_load_dwordx4 {vr(XF+4*t,4)}, v10, s[8:11], s36 offen offset:{1024*(t&3)} sc1")
            if t & 3 == 3:
                k("s_add_u32 s36, s36, 4096")
        k(f"{NOKV}_a:")

    def prepass_b(q):
        k(f"s_cmp_ge_u32 s5, 8\ns_cbranch_scc1 {NOKV}")

        def wr(t):
            for rd in range(2):
                k(f"ds_read_b64_tr_b16 {vr(WP_+4*(t%8)+2*rd,2)}, v30 offset:{(16*t+8*rd)*64}")
        for t in range(7):
            wr(t)
        for t in range(16):
            k(f"s_waitcnt vmcnt({15-t+XINIT}) lgkmcnt({2*min(6, 15-t)})")
            k(M32(E_, WP_ + 4 * (t % 8), XF + 4 * t, "0" if t == 0 else None))
            if first:
                k(M16(224, ON, WP_ + 4 * (t % 8), "0" if t == 0 else None))
            if t + 7 < 16:
                wr(t + 7)
        for qq in range(4):
            k(f"ds_write_b128 v31, {vr(E_+4*qq,4)} offset:{1024*qq}")
        if first:
            k(f"""s_lshl_b32 s31, s3, 8
            s_add_u32 s31, s31, {CSP_L}
            v_lshlrev_b32 v9, 2, v1
            v_add_u32 v9, s31, v9
            ds_write_b32 v9, v224""")
        k(f"s_waitcnt lgkmcnt(0)\n{NOKV}:\ns_barrier")

    gemm2_compute(k, tag, ACC, XR, WF, 12, wloc_q, wt, filler=fill, extra=extra, groups=[0, 11, 15], rdy=rdy,
                  before_x=prepass_a, pre=prepass_b, ring=28,
                  late={46: lambda q: stats_loads(k, STT, "s3", 9, WS_ST[lin], q)}, fill_from=58)
    if first:
        k(f"""v_lshlrev_b32 v9, 2, v1
        v_add_u32 v9, {CSX_L}, v9
        s_lshl_b32 s31, s3, 9
        v_add_u32 v4, s31, v9
        ds_write_b32 v4, v{CA}
        ds_write_b32 v4, v{CA+4} offset:256
        s_waitcnt lgkmcnt(0)
        s_barrier""")
        for w in range(4):
            for bl in range(2):
                k(f"ds_read_b32 v{144+4*bl+w}, v9 offset:{512*w+256*bl}")
        k("s_waitcnt lgkmcnt(0)")
        for bl in range(2):
            t_ = 144 + 4 * bl
            k(f"v_add_f32 v{t_}, v{t_}, v{t_+1}\nv_add_f32 v{t_+2}, v{t_+2}, v{t_+3}\nv_add_f32 v{t_}, v{t_}, v{t_+2}")
            for l_ in hilo(t_, 251 + bl, 4) + cs_build(CS + 4 * bl, 251 + bl):
                k(l_)
    k(M32(ACC + 16, CS + 4, BOP))
    k(M32(ACC, CS, BOP))
    pk_mul(k, ACC + 16, ACC + 16, SC, 16)
    for i in range(8):
        k(f"v_cvt_pk_bf16_f32 v{88+i}, v{ACC+16+2*i}, v{ACC+16+2*i+1}")
    for t in range(2):
        k(f"ds_write_b128 v11, {vr(88+4*t,4)} offset:{1024*t}")
    pk_mul(k, ACC, ACC, SC, 16)
    for i in range(8):
        k(f"v_cvt_pk_bf16_f32 v{180+i}, v{ACC+2*i}, v{ACC+2*i+1}")
    k(f"s_branch {END}\n{LD}:")

    E = 32

    def g0(q):
        k("s_waitcnt vmcnt(16)\ns_barrier")
        rdy_poller(k, wt, rdy)
        S6, L6 = k.label("s6"), k.label("l6")
        k(f"""s_cmp_lg_u32 s3, 6
        s_cbranch_scc1 {S6}
        s_setprio 3
        v_mov_b32 v4, {rdy}
        {L6}:
        ds_read_b32 v5, v4
        s_waitcnt lgkmcnt(0)
        v_readfirstlane_b32 s63, v5
        s_cmp_gt_u32 s63, 15
        s_cbranch_scc0 {L6}
        s_and_b32 s49, s48, 3""")
        stats_loads(k, STT, "s49", 9, WS_ST[lin])
        k(f"""s_lshl_b32 s54, s4, 2
        s_add_u32 s54, s54, s48
        s_lshl_b32 s54, s54, 12
        s_add_u32 s54, s54, {hex(WS_KV[rep])}
        v_mul_u32_u24 v26, 72, v2
        v_lshl_add_u32 v26, v3, 3, v26
        v_add_u32 v26, {VT_B}, v26
        v_and_b32 v24, 15, v1
        v_lshrrev_b32 v25, 2, v24
        v_lshl_add_u32 v25, v3, 2, v25
        v_mul_u32_u24 v25, 72, v25
        v_and_b32 v24, 3, v24
        v_lshl_add_u32 v25, v24, 3, v25
        v_bfe_u32 v24, v1, 4, 1
        v_lshl_add_u32 v25, v24, 5, v25
        v_add_u32 v25, {VT_B}, v25
        s_waitcnt vmcnt(0)""")
        for l_ in ln_stats(STT, RSTD, BOP):
            k(l_)
        k(f"v_mov_b32 v{RSTD+1}, v{RSTD}")
        if not first:
            for l_ in cs_build(CS, 248):
                k(l_)
        k(f"{S6}:\ns_waitcnt vmcnt(0)\ns_barrier")

    def w1114():
        for st in (11, 12, 13, 14):
            k(f"s_add_u32 m0, s35, {wloc_q(st)}\ns_mov_b32 s38, {st*64*2048}")
            for jj in range(2):
                k(f"buffer_load_dwordx4 v{12+jj}, s[12:15], s38 offen offset:{1024*jj} lds")

    def kvfin(q):
        SK, S2, W6 = k.label("kvs"), k.label("kvs"), k.label("kvs")
        k(f"""s_cmp_ge_u32 s5, 8
        s_cbranch_scc1 {SK}
        s_cmp_eq_u32 s3, 6
        s_cbranch_scc1 {W6}""")
        w1114()
        k(f"s_branch {SK}\n{W6}:")
        k(f"v_add_u32 v9, {WKV_L}, v8")
        for w in range(4):
            for qq in range(4):
                k(f"ds_read_b128 {vr(E+16*w+4*qq,4)}, v9 offset:{16384*w+1024*qq}")
        if first:
            k(f"v_lshlrev_b32 v9, 2, v1\nv_add_u32 v9, {CSP_L}, v9")
            for w in range(4):
                k(f"ds_read_b32 v{100+w}, v9 offset:{256*w}")
        k("s_waitcnt lgkmcnt(0)")
        for i in range(0, 16, 2):
            k(f"v_pk_add_f32 {vr(E+i,2)}, {vr(E+i,2)}, {vr(E+16+i,2)}")
            k(f"v_pk_add_f32 {vr(E+32+i,2)}, {vr(E+32+i,2)}, {vr(E+48+i,2)}")
            k(f"v_pk_add_f32 {vr(E+i,2)}, {vr(E+i,2)}, {vr(E+32+i,2)}")
        if first:
            k("v_add_f32 v100, v100, v101\nv_add_f32 v102, v102, v103\nv_add_f32 v100, v100, v102")
            for l_ in hilo(100, 248, 4) + cs_build(CS, 248):
                k(l_)
        k(M32(E, CS, BOP))
        pk_mul(k, E, E, RSTD, 16)
        for i in range(8):
            k(f"v_cvt_pk_bf16_f32 v{96+i}, v{E+2*i}, v{E+2*i+1}")
        k(f"s_bitcmp1_b32 s5, 0\ns_cbranch_scc0 {SG}")
        for i in range(4):
            k(f"ds_write_b64 v26, {vr(96+2*i,2)} offset:{16*i}")
        k("s_waitcnt lgkmcnt(0)")
        for t in range(2):
            for e in range(2):
                k(f"ds_read_b64_tr_b16 {vr(96+4*t+2*e,2)}, v25 offset:{(16*t+8*e)*72}")
        k(f"s_waitcnt lgkmcnt(0)\ns_add_u32 s54, s54, 2048\n{SG}:")
        for t in range(2):
            k(f"buffer_store_dwordx4 {vr(96+4*t,4)}, v8, s[16:19], s54 offen offset:{1024*t} sc1")
        k("s_waitcnt vmcnt(0)\ns_mov_b32 s61, s35")
        signal(k, flag_off(rep, F_KVB), "s4")
        k("s_mov_b32 s35, s61")
        stamp(k, tag + "_kvsig")
        w1114()
        k(f"""{SK}:
        s_setprio 0
        s_waitcnt vmcnt(0)
        s_barrier
        s_cmp_ge_u32 s5, 8
        s_cbranch_scc1 {S2}
        s_add_u32 m0, s35, {wloc_q(15)}
        s_mov_b32 s38, {15*64*2048}""")
        for jj in range(2):
            k(f"buffer_load_dwordx4 v{12+jj}, s[12:15], s38 offen offset:{1024*jj} lds")
        k(f"{S2}:")
        NPK = k.label("npk")
        k(f"s_cmp_lg_u32 s3, 7\ns_cbranch_scc1 {NPK}")
        wait_flag(k, flag_off(rep, F_KVB), None, 8, True)
        stamp(k, tag + "_kvflag")
        k(f"""{NPK}:
        s_waitcnt vmcnt(0)
        s_barrier
        s_lshl_b32 s31, s30, 13
        s_add_u32 s39, s31, {hex(WS_KV[rep])}""")
        for hf in range(2):
            k(f"s_add_u32 m0, s31, {4096*hf}")
            for qq in range(4):
                k(f"buffer_load_dwordx4 v8, s[16:19], s39 offen offset:{1024*qq} sc1 lds")
            k("s_add_u32 s39, s39, 4096")

    gemm2_loader(k, tag, wloc_q, list(range(3, 11)) + [g0, kvfin])
    k("s_barrier\n" * (2 if first else 1) + f"{END}:")


def phase_attn(k, tag, rep, oi):
    name = k.label(tag)
    Q, NEG, SA, SB, P, O, L, ONE, KF, VF = 8, 16, 32, 48, 64, 80, 96, 100, 104, 120
    k(f"""
    s_lshr_b32 s36, s3, 2
    s_and_b32 s37, s3, 3
    s_lshl_b32 s38, s5, 1
    s_add_u32 s38, s38, s36
    s_lshl_b32 s39, s4, 2
    s_add_u32 s39, s39, s37
    v_lshlrev_b32 v128, 4, v1
    """)
    cnt = new_cnt()
    zero_cnt(k, cnt)
    k(f"""
    v_mov_b32 v4, v128
    s_lshl_b32 s30, s3, 12
    s_add_u32 s31, s30, {hex(WS_KV[rep] + 32768)}
    """)

    def dma():
        for q in range(4):
            k(f"buffer_load_dwordx4 v4, s[16:19], s31 offen offset:{1024*q} sc1 lds")
        k("s_add_u32 s31, s31, 32768")

    for c in range(2):
        k(f"s_add_u32 m0, s30, {32768*(c+1)}")
        dma()
    ones_pattern(k, ONE, 5, 6)
    for i in range(16):
        k(f"v_mov_b32 v{O+i}, 0")
    for i in range(4):
        k(f"v_mov_b32 v{L+i}, 0")
    for i in range(8):
        k(f"v_mov_b32 v{P+i}, 0")
    k(f"v_mov_b32 v129, v4\ns_waitcnt vmcnt(8) lgkmcnt(0)")
    stamp(k, tag + "_e2")
    k(f"""s_barrier
    s_cmp_ge_u32 s3, 4
    s_cbranch_scc1 {name}_qld
    """)
    for i in range(8):
        k(f"v_mov_b32 v{Q+i}, v{180+i}")
    k(f"""s_branch {name}_go
    {name}_qld:
    s_lshl_b32 s34, s37, 11
    s_add_u32 s34, s34, {QX_B}
    v_add_u32 v5, s34, v128
    ds_read_b128 {vr(Q,4)}, v5
    ds_read_b128 {vr(Q+4,4)}, v5 offset:1024
    {name}_go:""")
    stamp(k, tag + "_b0")
    K1, K2, V1, V2 = KF, KF + 4, VF, VF + 4
    k(f"""ds_read_b128 {vr(K1,4)}, v129
    ds_read_b128 {vr(K2,4)}, v129 offset:1024
    s_waitcnt lgkmcnt(0)
    """)
    k(M32(SA, K1, Q, "0"))
    k(M32(SA, K2, Q + 4))
    k(f"v_max3_f32 v5, v{SA}, v{SA+1}, v{SA+2}")
    for i in range(3, 15, 2):
        k(f"v_max3_f32 v5, v5, v{SA+i}, v{SA+i+1}")
    k(f"""v_max_f32 v5, v5, v{SA+15}
    v_mov_b32 v6, v5
    v_permlane32_swap_b32 v5, v6
    v_max_f32 v5, v5, v6
    """)
    for i in range(16):
        k(f"v_sub_f32 v{NEG+i}, 0, v5")
    for i in range(16):
        k(f"v_sub_f32 v{SA+i}, v{SA+i}, v5")
    if "at_prio" in sys.argv:
        k(f"s_cmp_lt_u32 s3, 4\ns_cbranch_scc1 {name}_pr\ns_setprio 1\n{name}_pr:")
    k(f"""ds_read_b128 {vr(V2,4)}, v129 offset:3072
    ds_read_b128 {vr(K1,4)}, v129 offset:4096
    ds_read_b128 {vr(K2,4)}, v129 offset:5120
    ds_read_b128 {vr(V1,4)}, v129 offset:2048
    s_mov_b32 s32, 0
    v_mov_b32 v5, v129
    v_add_u32 v6, 32768, v4
    s_mov_b32 s33, 0x18000
    {name}_loop:""")

    def ex(cur, a, b):
        for i in range(a, b):
            k(f"v_exp_f32 v{cur+i}, v{cur+i}")

    def cv(cur, a, b):
        for i in range(a, b):
            k(f"v_cvt_pk_bf16_f32 v{P+i}, v{cur+2*i}, v{cur+2*i+1}")

    def rd(dst, tile, part):
        if "at_nord" in sys.argv:
            return
        bb, oo = (5, tile * 4096) if tile < 8 else (6, (tile - 8) * 4096)
        k(f"ds_read_b128 {vr(dst,4)}, v{bb} offset:{oo+1024*part}")

    for j in range(8):
        cur, nxt = (SA, SB) if j % 2 == 0 else (SB, SA)
        k("s_waitcnt lgkmcnt(3)")
        k(M32(O, V2, P + 4))
        rd(V2, j, 3)
        ex(cur, 0, 4)
        k(M16(L, ONE, P + 4))
        ex(cur, 4, 6)
        if j == 6 and "at_nobar" not in sys.argv:
            k(f"""s_cmp_ge_u32 s32, 5
            s_cbranch_scc1 {name}_nodma
            s_waitcnt vmcnt(4)
            s_barrier
            s_add_u32 m0, s30, s33""")
            dma()
            k(f"""s_branch {name}_dmadone
            {name}_nodma:
            s_waitcnt vmcnt(0)
            s_barrier
            s_cmp_eq_u32 s32, 6
            s_cbranch_scc1 {name}_p6
            s_cmp_eq_u32 s32, 7
            s_cbranch_scc1 {name}_p7""")
            wpf_setup(k, P_WOB, 8, "s3")
            wpf_issue(k, [0, 1, 2, 3, 12, 13, 14], wloc_b, 8)
            k(f"s_branch {name}_dmadone\n{name}_p6:")
            wpf_issue(k, [4, 5, 6, 7], wloc_b, 8)
            k(f"s_branch {name}_dmadone\n{name}_p7:")
            wpf_issue(k, [8, 9, 10, 11], wloc_b, 8)
            k(f"""{name}_dmadone:""")
        if j % 2 == 0:
            k(f"s_setprio {3 - ((j - 6) % 8) // 2}")
        k("s_waitcnt lgkmcnt(3)")
        k(M32(nxt, K1, Q, vr(NEG, 16)))
        rd(K1, j + 2, 0)
        ex(cur, 6, 8)
        cv(cur, 0, 4)
        k("s_waitcnt lgkmcnt(3)")
        k(M32(nxt, K2, Q + 4))
        rd(K2, j + 2, 1)
        ex(cur, 8, 12)
        k("s_waitcnt lgkmcnt(3)")
        k(M32(O, V1, P))
        rd(V1, j + 1, 2)
        ex(cur, 12, 16)
        k(M16(L, ONE, P))
        cv(cur, 4, 8)
        if j == 7:
            k(f"""
            v_mov_b32 v5, v6
            s_add_u32 s33, s33, 0x8000
            s_and_b32 s33, s33, 0x1ffff
            s_add_u32 s34, s33, 0x10000
            s_and_b32 s34, s34, 0x1ffff
            v_add_u32 v6, s34, v4
            s_add_u32 s32, s32, 1
            s_cmp_lt_u32 s32, 8
            s_cbranch_scc1 {name}_loop
            s_waitcnt lgkmcnt(0)
            s_barrier
            """)
    k(M32(O, V2, P + 4))
    k(M16(L, ONE, P + 4))
    stamp(k, tag + "_loopend")
    k("s_setprio 0")
    k(f"v_max3_f32 v5, abs(v{O}), abs(v{O+1}), abs(v{O+2})")
    for i in range(3, 15, 2):
        k(f"v_max3_f32 v5, v5, abs(v{O+i}), abs(v{O+i+1})")
    k(f"""v_max3_f32 v5, v5, abs(v{O+15}), v{L}
    v_mov_b32 v6, 0
    """)
    for i in range(16):
        k(f"v_fma_f32 v6, v{O+i}, 0, v6")
    k(f"""v_fma_f32 v6, v{L}, 0, v6
    v_add_f32 v5, v5, v6
    s_mov_b32 s34, {f32(2.0**100)}
    v_cmp_nlt_f32 vcc, v5, s34
    s_cbranch_vccz {name}_fin
    """)
    for i in range(16):
        k(f"v_mov_b32 v{O+i}, 0")
    for i in range(4):
        k(f"v_mov_b32 v{L+i}, 0")
    k(f"""v_mov_b32 v7, 0xff800000
    s_mov_b32 s31, {hex(WS_KV[rep])}
    s_mov_b32 s32, 0
    {name}_sloop:
    buffer_load_dwordx4 {vr(KF,4)}, v4, s[16:19], s31 offen sc1
    buffer_load_dwordx4 {vr(KF+4,4)}, v4, s[16:19], s31 offen offset:1024 sc1
    buffer_load_dwordx4 {vr(VF,4)}, v4, s[16:19], s31 offen offset:2048 sc1
    buffer_load_dwordx4 {vr(VF+4,4)}, v4, s[16:19], s31 offen offset:3072 sc1
    s_waitcnt vmcnt(0)
    """)
    k(M32(SA, KF, Q, "0"))
    k(M32(SA, KF + 4, Q + 4))
    k(f"v_max3_f32 v5, v{SA}, v{SA+1}, v{SA+2}")
    for i in range(3, 15, 2):
        k(f"v_max3_f32 v5, v5, v{SA+i}, v{SA+i+1}")
    k(f"""v_max_f32 v5, v5, v{SA+15}
    v_mov_b32 v6, v5
    v_permlane32_swap_b32 v5, v6
    v_max3_f32 v5, v5, v6, v7
    v_sub_f32 v6, v7, v5
    v_exp_f32 v6, v6
    v_mov_b32 v7, v5
    """)
    for i in range(16):
        k(f"v_sub_f32 v{SA+i}, v{SA+i}, v5")
    for i in range(16):
        k(f"v_exp_f32 v{SA+i}, v{SA+i}")
    for i in range(16):
        k(f"v_mul_f32 v{O+i}, v{O+i}, v6")
    for i in range(4):
        k(f"v_mul_f32 v{L+i}, v{L+i}, v6")
    for i in range(8):
        k(f"v_cvt_pk_bf16_f32 v{P+i}, v{SA+2*i}, v{SA+2*i+1}")
    k(M32(O, VF, P))
    k(M16(L, ONE, P))
    k(M32(O, VF + 4, P + 4))
    k(M16(L, ONE, P + 4))
    k(f"""s_add_u32 s31, s31, 4096
    s_add_u32 s32, s32, 1
    s_cmp_lt_u32 s32, 64
    s_cbranch_scc1 {name}_sloop
    {name}_fin:
    v_rcp_f32 v6, v{L}
    s_lshl_b32 s34, s39, 16
    s_lshl_b32 s35, s38, 11
    s_add_u32 s34, s34, s35
    s_add_u32 s34, s34, {hex(WS_O[oi])}
    v_mov_b32 v7, v6
    """)
    pk_mul(k, O, O, 6, 16)
    for i in range(8):
        k(f"v_cvt_pk_bf16_f32 v{P+i}, v{O+2*i}, v{O+2*i+1}")
    for t in range(2):
        k(f"buffer_store_dwordx4 {vr(P+4*t,4)}, v4, s[16:19], s34 offen offset:{1024*t} sc1")
    stamp(k, tag + "_st")
    k("s_waitcnt vmcnt(0)")
    stamp(k, tag + "_drain")
    signal(k, flag_off(rep, F_OB), "s4", 8, cnt, "s5" if STAGED else None)


def prep_jobs(k):
    def j_zero(q):
        k(f"""s_lshl_b32 s56, s2, 2
        s_add_u32 s56, s56, s30
        s_mul_i32 s56, s56, 48
        s_add_u32 s56, s56, {hex(WS_FL)}
        v_min_u32 v25, 11, v1
        v_lshlrev_b32 v25, 2, v25
        v_mov_b32 v26, 0
        buffer_store_dword v26, v25, s[16:19], s56 offen sc1""")
        q.add("jst")

    def j_wait(q):
        k(f"s_waitcnt vmcnt({q.cnt('jst')})")
        stamp(k, "job_drained")

    def j_sig(q):
        srd(k, 24, P_DBG, 256)
        k(f"""s_and_b32 s56, s2, 1
        s_lshl_b32 s56, s56, 7
        s_cmp_eq_u32 s3, 4
        s_cselect_b32 s56, s56, 0x7ffff000
        v_mov_b32 v4, 1
        v_mov_b32 v5, 0
        s_mov_b64 exec, 1
        buffer_atomic_add v4, v5, s[24:27], s56 offen sc1
        s_mov_b64 exec, -1""")
        q.add("jsig")

    def j_poll(q):
        L = k.label("ipoll")
        stamp(k, "job_prepoll")
        k(f"""s_cmp_lg_u32 s3, 4
        s_cbranch_scc1 {L}_ok
        v_and_b32 v4, 1, v1
        v_lshlrev_b32 v4, 7, v4
        s_mov_b32 s53, 0
        {L}:
        buffer_load_dword v5, v4, s[24:27], 0 offen sc1
        s_waitcnt vmcnt(0)
        v_cmp_gt_u32 vcc, 128, v5
        s_cbranch_vccz {L}_ok
        s_sleep 4
        s_add_u32 s53, s53, 1
        s_cmp_lt_u32 s53, 0x40000
        s_cbranch_scc1 {L}
        {L}_ok:""")
        stamp(k, "job_polled")

    return {0: j_zero, 3: j_wait, 6: j_sig, 12: j_poll}


def phase_qkva(k, tag, rep, lin, oi, wt):
    R, STG = 4, 40960
    LD, J0, J1, J2, NP = [k.label(tag + x) for x in ("_ld", "_j0", "_j1", "_j2", "_np")]
    tile_map(k, "8x4")
    first = lin == 0
    if first:
        srd(k, 8, P_X, S * D * 2)
    else:
        srd_off(k, 8, P_WS, WS_X[lin], S * D * 2)
    srd(k, 12, P_WQKV, D * 3 * D * 2)
    srd(k, 20, P_WPHI, H * DH * DH * 2)
    k(f"""
    s_bfe_u32 s48, s3, 0x10001
    s_and_b32 s49, s3, 1
    s_lshl_b32 s50, s5, 1
    s_add_u32 s50, s50, s49
    s_lshl_b32 s51, s48, 1
    s_lshr_b32 s31, s3, 2
    s_add_u32 s51, s51, s31
    """)
    STT, CS, WP = 176, 208, 220
    QXL = 51200
    KVL = 69632
    cnt_col, cnt_o = new_cnt(), new_cnt()
    RSTD = [168, 170]
    LC = 172
    BOP = [240, 244]
    addr_setup = lines(f"""
    s_lshl_b32 s35, s51, 5
    v_add_u32 v238, s35, v2
    v_mul_u32_u24 v238, 200, v238
    v_lshl_add_u32 v238, v3, 3, v238
    s_mul_i32 s35, s49, 25600
    v_add_u32 v238, s35, v238
    s_and_b32 s35, s3, 3
    s_lshl_b32 s35, s35, 12
    s_add_u32 s35, s35, {QXL}
    v_lshlrev_b32 v239, 4, v1
    v_add_u32 v239, s35, v239
    """)
    wp_pack = [f"v_lshl_or_b32 v{WP+i}, v{WP+2*i+1}, 16, v{WP+2*i}" for i in range(8)]
    k(f"s_cmp_ge_u32 s3, 4\ns_cbranch_scc1 {LD}")
    LCL = QXL + 16384
    STL, CSL = 81920, 83968
    wphi_loads(k, WP, "s50")
    if first:
        k("s_lshl_b32 s35, s48, 6")
        x_addr(k, 12, "s35")
        k("s_lshl_b32 s35, s49, 6")
        w_tr_base(k, 16, "s35", 128, True, hs=3)
    else:
        k(f"""v_lshlrev_b32 v12, 4, v1
        s_lshl_b32 s35, s48, 13
        v_add_u32 v12, s35, v12
        s_lshl_b32 s35, s49, 6""")
        w_tr_base(k, 13, "s35", 128, True)
    ACC = 32
    for i in range(96):
        k(f"v_mov_b32 v{ACC+i}, 0")

    def acc(p, b):
        return ACC + 32 * p + 16 * b

    def mf(fr, t):
        return [M32(acc(p, b), fr + 8 + 4 * p, fr + 4 * b) for p in range(3) for b in range(2)]

    def st_l(kk=k):
        stats_loads(kk, STT, "s51", 10, WS_ST[lin])
        kk("s_add_u32 s31, s51, 1")
        stats_loads(kk, STT + 16, "s31", 10, WS_ST[lin])

    tail = []
    for b in range(2):
        tail += [f"v_mov_b32 v{RSTD[b]+1}, v{RSTD[b]}"]
    tail += [f"v_mul_f32 v{LC}, {f32(LOG2E)}, v{RSTD[0]}", f"v_mov_b32 v{LC+1}, v{LC}",
             f"v_mul_f32 v{LC+2}, {f32(LOG2E)}, v{RSTD[1]}"]
    for p in range(3):
        tail += cs_build(CS + 4 * p, 248 + p)
    lc_addr = lines(f"""s_and_b32 s35, s3, 3
    s_lshl_b32 s35, s35, 8
    s_add_u32 s35, s35, {LCL}
    v_lshlrev_b32 v237, 2, v1
    v_add_u32 v237, s35, v237""")
    wl = [(1, 16384, 128), (1, 16384 + 8192, 128), (1, 16384 + 16384, 128)]
    if first:
        def touch2():
            if "notouch2" in sys.argv:
                return
            k(f"""s_lshl_b32 s34, s2, 2
            s_add_u32 s34, s34, s3
            s_lshl_b32 s37, s34, 11
            v_lshlrev_b32 v10, 4, v1""")
            for pw in (P_WOA, P_WQ, P_WOB):
                srd(k, 24, pw, D * D * 2)
                for i in range(2):
                    k(f"buffer_load_dwordx4 v[244:247], v10, s[24:27], s37 offen offset:{1024*i}")
            for pw in (P_WK, P_WV):
                srd(k, 24, pw, D * 32 * 2)
                k(f"buffer_load_dwordx4 v[244:247], v10, s[24:27], s37 offen")
                k(f"buffer_load_dwordx4 v[244:247], v10, s[24:27], s37 offen offset:1024")

        CA, SX, SQ, ON, TT = 176, 184, 188, 192, 196
        ones_pattern(k, ON, 4, 5)
        for i in range(176, 192):
            k(f"v_mov_b32 v{i}, 0")

        def mf0(fr, t):
            o = mf(fr, t)
            L1, L2, L3, L4 = [k.label("st") for _ in range(4)]

            def xs(b):
                r_ = M16(SX, ON, fr + 4 * b) + "\n"
                for i in range(4):
                    r_ += f"v_lshlrev_b32 v{TT+2*i}, 16, v{fr+4*b+i}\nv_and_b32 v{TT+2*i+1}, 0xffff0000, v{fr+4*b+i}\n"
                for i in range(8):
                    r_ += f"v_fmac_f32 v{SQ+(i&3)}, v{TT+i}, v{TT+i}\n"
                return r_
            o[4] += f"""
            s_cmp_eq_u32 s49, 0
            s_cbranch_scc0 {L1}
            {xs(0)}
            s_branch {L2}
            {L1}:
            {xs(1)}
            {L2}:"""
            o[5] += f"""
            s_cmp_eq_u32 s48, 0
            s_cbranch_scc0 {L3}
            {M16(CA, ON, fr + 8)}
            {M16(CA + 4, ON, fr + 12)}
            s_branch {L4}
            {L3}:
            {M16(CA, ON, fr + 16)}
            {L4}:"""
            return o

        def publish():
            k(f"""v_add_f32 v{SQ}, v{SQ}, v{SQ+1}
            v_add_f32 v{SQ+2}, v{SQ+2}, v{SQ+3}
            v_add_f32 v{SQ}, v{SQ}, v{SQ+2}
            v_mov_b32 v{SQ+1}, v{SQ}
            s_add_u32 s34, s4, s5
            s_and_b32 s34, s34, 15
            v_permlane32_swap_b32 v{SQ}, v{SQ+1}
            s_lshl_b32 s35, s4, 14
            s_lshl_b32 s36, s34, 10
            s_add_u32 s35, s35, s36
            s_lshl_b32 s36, s3, 8
            s_add_u32 s35, s35, s36
            s_add_u32 s35, s35, {hex(WS_ST[0])}
            v_add_f32 v{SQ}, v{SQ}, v{SQ+1}
            v_cndmask_b32 v{SQ}, v{SX}, v{SQ}, s[40:41]
            v_lshlrev_b32 v10, 2, v1
            buffer_store_dword v{SQ}, v10, s[16:19], s35 offen sc1
            s_mul_i32 s35, s50, 6144
            s_lshl_b32 s36, s34, 7
            s_add_u32 s35, s35, s36
            s_lshl_b32 s36, s48, 12
            s_add_u32 s35, s35, s36
            s_add_u32 s35, s35, {hex(WS_CSA)}
            s_cmp_eq_u32 s48, 0
            s_cselect_b32 s36, s35, 0x7ffff000
            v_lshlrev_b32 v10, 2, v2
            buffer_store_dword v{CA}, v10, s[16:19], s35 offen sc1
            buffer_store_dword v{CA+4}, v10, s[16:19], s36 offen offset:2048 sc1""")

        cap = Cap()
        st_l(cap)
        CL = 24
        cregs = [[24 + i for i in range(8)], [208 + i for i in range(8)], [236, 237, 238, 239, 216, 217, 218, 219]]
        cap(f"""v_lshlrev_b32 v9, 2, v2
        v_lshl_add_u32 v9, v3, 10, v9
        s_mul_i32 s35, s50, 6144
        s_add_u32 s35, s35, {hex(WS_CSA)}""")
        for p in range(3):
            for i in range(8):
                cap(f"buffer_load_dword v{cregs[p][i]}, v9, s[16:19], s35 offen offset:{128*i} sc1")
            cap("s_add_u32 s35, s35, 2048")
        fill = ["s_waitcnt vmcnt(0)"]
        for b in range(2):
            fill += ln_stats(STT + 16 * b, RSTD[b], BOP[b])
        for p in range(3):
            c_ = cregs[p]
            for st_ in (4, 2, 1):
                for i in range(st_):
                    fill.append(f"v_add_f32 v{c_[i]}, v{c_[i]}, v{c_[i+st_]}")
            fill += [f"v_mov_b32 v{c_[1]}, v{c_[0]}", f"v_permlane32_swap_b32 v{c_[0]}, v{c_[1]}",
                     f"v_add_f32 v{c_[0]}, v{c_[0]}, v{c_[1]}"] + hilo(c_[0], 248 + p, c_[1])
        gemm_compute(k, R, STG, 1, [12, 13, 14, 15, 16], [0, 4096], wl, 128, mf, 20, 17, tag, nbuf=2, per=2,
                     filler=fill + tail + wp_pack + addr_setup + lc_addr, e2=False, rm=True, pre_m=2,
                     at_iter=[(3, lambda: k("s_waitcnt vmcnt(0)")), (5, touch2)], mf_first=mf0, after_first=publish,
                     late={13: cap.l})
    else:
        fill = ["s_waitcnt vmcnt(0)"]
        for b in range(2):
            fill += ln_stats(STT + 16 * b, RSTD[b], BOP[b])
        if STAGED:
            cap = Cap()
            st_l(cap)
            gemm_compute(k, R, STG, 1, [12, 13], [0, 4096], wl, 128, mf, 20, 20, tag, nbuf=2, per=2,
                         filler=fill + tail + wp_pack + addr_setup + lc_addr, e2=False, late={13: cap.l}, pre_m=2)
        else:
            gemm_compute(k, R, STG, 1, [12, 13], [0, 4096], wl, 128, mf, 20, 20, tag, nbuf=2, per=2,
                         filler=fill + tail + wp_pack + addr_setup + lc_addr, after_e2=st_l, pre_m=2)
    k(f"ds_write_b32 v237, v{LC+2}")
    for p, b in ((1, 1), (0, 1), (1, 0), (2, 0), (2, 1), (0, 0)):
        k(M32(acc(p, b), CS + 4 * p, BOP[b]))
    k(f"""v_lshlrev_b32 v4, 3, v1
    v_mov_b32 v6, 0
    v_mov_b32 v7, 0
    ds_write_b64 v4, v[6:7] offset:{KVL+8192-65536+65536 if KVL+8192 < 65536 else 0}""" if False else "")
    k(f"""v_lshlrev_b32 v4, 3, v1
    v_add_u32 v4, {KVL+8192}, v4
    v_mov_b32 v6, 0
    v_mov_b32 v7, 0
    ds_write_b64 v4, v[6:7]""")
    zero_cnt(k, cnt_col)
    zero_cnt(k, cnt_o)
    for p, d_ in ((1, 128), (0, 136)):
        for i in range(8):
            k(f"v_cvt_pk_bf16_f32 v{d_+i}, v{acc(p,1)+2*i}, v{acc(p,1)+2*i+1}")
        for t in range(2):
            k(f"ds_write_b128 v239, {vr(d_+4*t,4)} offset:{(d_-128)*256+1024*t}")
    for i in range(8):
        k(f"v_cvt_pk_bf16_f32 v{144+i}, v{acc(1,0)+2*i}, v{acc(1,0)+2*i+1}")
    k("s_waitcnt lgkmcnt(0)\ns_barrier")
    stamp(k, tag + "_ba")
    k(M32(acc(1, 0), WP, 144, "0"))
    k(M32(acc(1, 0), WP + 4, 148))
    for b in range(2):
        pk_mul(k, acc(2, b), acc(2, b), RSTD[b], 16)
        for i in range(8):
            k(f"v_cvt_pk_bf16_f32 v{128+8*b+i}, v{acc(2,b)+2*i}, v{acc(2,b)+2*i+1}")
        for i in range(4):
            k(f"ds_write_b64 v238, {vr(128+8*b+2*i,2)} offset:{6400*b+128+16*i}")
    for i in range(8):
        k(f"v_cvt_pk_bf16_f32 v{160+i}, v{acc(0,0)+2*i}, v{acc(0,0)+2*i+1}")
    KRAW = acc(1, 0)
    k(f"s_branch {J0}\n{LD}:")

    if first:
        gemm_loader(k, 3, 6144, R, STG, False, False, tag, None, pre=lambda: wphi_loads(k, WP, "s50"),
                    mid=prep_jobs(k), rm=True)
    else:
        gemm_loader(k, 3, 6144, R, STG, False, False, tag, wt, pre=lambda: wphi_loads(k, WP, "s50"), staged=STAGED)
    for l_ in addr_setup + lc_addr + wp_pack:
        k(l_)
    wpf_setup(k, P_WOA, 4, "s30")
    k("s_barrier\ns_barrier")
    k(f"""ds_read_b128 {vr(144,4)}, v239
    ds_read_b128 {vr(148,4)}, v239 offset:1024
    ds_read_b32 v{LC}, v237
    ds_read_b32 v{LC+1}, v237
    ds_read_b128 {vr(160,4)}, v239 offset:2048
    ds_read_b128 {vr(164,4)}, v239 offset:3072
    s_waitcnt lgkmcnt(2)""")
    k(M32(KRAW, WP, 144, "0"))
    k(M32(KRAW, WP + 4, 148))
    k(f"{J0}:")
    feat_map(k, KRAW, LC, 176, 144)
    for s_ in range(2):
        for i in range(4):
            k(f"ds_write_b64 v238, {vr(144+8*s_+2*i,2)} offset:{64*s_+16*i}")
    QRAW = 96
    k("s_waitcnt lgkmcnt(8)")
    k(M32(QRAW, WP, 160, "0"))
    k(M32(QRAW, WP + 4, 164))
    k(f"""
    v_and_b32 v4, 15, v1
    v_lshrrev_b32 v5, 2, v4
    v_lshl_add_u32 v5, v5, 3, v3
    v_mul_u32_u24 v5, 200, v5
    v_and_b32 v6, 3, v4
    v_lshl_add_u32 v5, v6, 3, v5
    v_bfe_u32 v7, v1, 4, 1
    v_lshl_add_u32 v5, v7, 5, v5
    s_mul_i32 s35, s49, 25600
    v_add_u32 v14, s35, v5
    s_lshl_b32 s35, s48, 6
    v_add_u32 v15, s35, v14
    """)
    ones_pattern(k, 24, 28, 29)
    k(f"""
    s_lshl_b32 s36, s50, 16
    s_lshl_b32 s35, s4, 12
    s_add_u32 s36, s36, s35
    s_lshl_b32 s35, s48, 11
    s_add_u32 s36, s36, s35
    s_add_u32 s36, s36, {hex(WS_KVP[rep])}
    s_lshl_b32 s39, s50, 12
    s_lshl_b32 s35, s4, 8
    s_add_u32 s39, s39, s35
    s_lshl_b32 s35, s48, 7
    s_add_u32 s39, s39, s35
    s_add_u32 s39, s39, {hex(WS_ZP[rep])}
    v_lshlrev_b32 v11, 2, v2
    v_lshlrev_b32 v10, 4, v1
    s_waitcnt lgkmcnt(0)
    s_barrier
    """)
    stamp(k, tag + "_bb")
    PHQ = 144
    k(f"s_cmp_ge_u32 s3, 4\ns_cbranch_scc1 {J1}")
    KVA, ZA = 32, 48
    FR = [176 + 8 * i for i in range(4)]

    def trr(s_):
        blk, t = s_ >> 1, s_ & 1
        f = FR[s_ % 4]
        for rd in range(2):
            off = (32 * blk + 4 * t + 2 * rd) * 200
            k(f"ds_read_b64_tr_b16 {vr(f+2*rd,2)}, v15 offset:{off}")
            k(f"ds_read_b64_tr_b16 {vr(f+4+2*rd,2)}, v14 offset:{off+128}")

    for s_ in range(3):
        trr(s_)
    for s_ in range(8):
        rem = min(7, s_ + 2) - s_
        k(f"s_waitcnt lgkmcnt({4*rem})")
        f = FR[s_ % 4]
        k(M32(KVA, f, f + 4, "0" if s_ == 0 else None))
        k(M16(ZA, 24, f, "0" if s_ == 0 else None))
        if s_ + 3 < 8:
            trr(s_ + 3)
    k(f"buffer_store_dword v{ZA}, v11, s[16:19], s39 offen sc1")
    for i in range(8):
        k(f"v_cvt_pk_bf16_f32 v{56+i}, v{KVA+2*i}, v{KVA+2*i+1}")
    for q in range(2):
        k(f"buffer_store_dwordx4 {vr(56+4*q,4)}, v10, s[16:19], s36 offen offset:{1024*q} sc1")
    stamp(k, tag + "_kvst")
    feat_map(k, QRAW, LC, 176, PHQ)
    k("s_waitcnt vmcnt(0)")
    stamp(k, tag + "_kvdrain")
    signal(k, flag_off(rep, F_COL), "s5", 4, cnt_col)
    k(f"s_branch {NP}\n{J1}:")
    wpf_issue(k, range(9), wloc_a, 4)
    feat_map(k, QRAW, LC, 176, PHQ)
    k(f"s_cmp_lg_u32 s3, 7\ns_cbranch_scc1 {NP}")
    wait_flag(k, flag_off(rep, F_COL), "s5", 16)
    k(f"{NP}:")
    k(f"""
    s_lshr_b32 s36, s3, 2
    s_and_b32 s37, s3, 3
    s_lshl_b32 s38, s5, 1
    s_add_u32 s38, s38, s36
    v_lshlrev_b32 v11, 2, v1
    s_lshl_b32 s34, s38, 16
    s_lshl_b32 s35, s37, 10
    s_add_u32 s34, s34, s35
    s_add_u32 s34, s34, {hex(WS_KVP[rep])}
    s_lshl_b32 s39, s38, 12
    s_add_u32 s39, s39, s35
    s_add_u32 s39, s39, {hex(WS_ZP[rep])}
    s_mov_b32 s52, 0x3f80
    s_mov_b32 s53, 0x3f800000
    s_barrier
    """)
    stamp(k, tag + "_e2a")
    for q in range(4):
        k(f"buffer_load_dword v{24+q}, v11, s[16:19], s39 offen offset:{256*q} sc1")
    for rt in range(16):
        k(f"buffer_load_dwordx4 {vr(48+4*rt,4)}, v10, s[16:19], s34 offen sc1")
        k("s_add_u32 s34, s34, 4096")
    for i in range(8):
        k(f"v_mov_b32 v{32+i}, 0")
    k(f"""s_lshl_b32 s35, s36, 8
    s_add_u32 s35, s35, {KVL+8192}
    v_add_u32 v13, s35, v11
    s_lshl_b32 s35, s3, 10
    s_add_u32 s35, s35, {KVL}
    v_add_u32 v12, s35, v10
    s_waitcnt vmcnt(16)
    v_add_f32 v24, v24, v25
    v_add_f32 v26, v26, v27
    v_add_f32 v24, v24, v26
    ds_add_f32 v13, v24""")
    for rt in range(16):
        k(f"s_waitcnt vmcnt({15-rt})")
        for i in range(4):
            k(f"v_dot2_f32_bf16 v{32+2*i}, v{48+4*rt+i}, s52, v{32+2*i}")
            k(f"v_dot2_f32_bf16 v{33+2*i}, v{48+4*rt+i}, s53, v{33+2*i}")
    for i in range(4):
        k(f"v_cvt_pk_bf16_f32 v{40+i}, v{32+2*i}, v{33+2*i}")
    KV, ZF, ZT = 32, 48, 64
    k(f"""
    ds_write_b128 v12, v[40:43]
    s_lshl_b32 s35, s49, 12
    s_add_u32 s35, s35, {KVL}
    v_add_u32 v12, s35, v10
    s_lshl_b32 s35, s49, 8
    s_add_u32 s35, s35, {KVL+8192}
    v_lshlrev_b32 v13, 4, v3
    v_add_u32 v13, s35, v13
    s_lshl_b32 s36, s4, 2
    s_add_u32 s36, s36, s51
    s_lshl_b32 s36, s36, 16
    s_lshl_b32 s35, s50, 11
    s_add_u32 s36, s36, s35
    s_add_u32 s36, s36, {hex(WS_O[oi])}
    s_waitcnt lgkmcnt(0)
    s_barrier
    """)
    stamp(k, tag + "_bc")
    for s_ in range(4):
        k(f"ds_read_b128 {vr(KV+4*s_,4)}, v12 offset:{1024*s_}")
    for se in range(8):
        k(f"ds_read_b128 {vr(ZT+4*se,4)}, v13 offset:{32*se}")
    NUM, DEN = 176, 96
    k("s_waitcnt lgkmcnt(8)")
    for s_ in range(4):
        k(M32(NUM, KV + 4 * s_, PHQ + 4 * s_, "0" if s_ == 0 else None))
    k("s_waitcnt lgkmcnt(0)\ns_barrier")
    for i in range(16):
        k(f"v_cvt_pk_bf16_f32 v{ZF+i}, v{ZT+2*i}, v{ZT+2*i+1}")
    for s_ in range(4):
        k(M32(DEN, ZF + 4 * s_, PHQ + 4 * s_, "0" if s_ == 0 else None))
    k(f"v_add_f32 v{DEN}, {f32(1e-6)}, v{DEN}\nv_rcp_f32 v{DEN}, v{DEN}\nv_mov_b32 v{DEN+1}, v{DEN}")
    pk_mul(k, NUM, NUM, DEN, 16)
    for i in range(8):
        k(f"v_cvt_pk_bf16_f32 v{112+i}, v{NUM+2*i}, v{NUM+2*i+1}")
    for t in range(2):
        k(f"buffer_store_dwordx4 {vr(112+4*t,4)}, v10, s[16:19], s36 offen offset:{1024*t} sc1")
    stamp(k, tag + "_st")
    k("s_waitcnt vmcnt(0)")
    stamp(k, tag + "_drain")
    signal(k, flag_off(rep, F_OA), "s4", 8, cnt_o, "s5" if STAGED else None)


def gen_mega():
    k = Kern("interleave_layers__linear_kernel_hedgehog__grouped_kv_mqa__prompt_kernel")
    k(f"""
    s_cmp_ge_u32 s2, 256
    s_cbranch_scc1 mega_exit
    s_load_dwordx16 s[64:79], s[0:1], 0
    s_load_dwordx8 s[80:87], s[0:1], 64
    v_lshrrev_b32 v1, 6, v0
    s_nop 0
    v_readfirstlane_b32 s3, v1
    v_and_b32 v1, 63, v0
    v_and_b32 v2, 31, v1
    v_lshrrev_b32 v3, 5, v1
    v_cmp_eq_u32 s[40:41], 1, v3
    s_waitcnt lgkmcnt(0)
    """)
    if PROF:
        k("v_mov_b32 v255, 0\nv_mov_b32 v254, 0\ns_memrealtime s[88:89]\ns_waitcnt lgkmcnt(0)\nv_writelane_b32 v255, s88, 0")
        stamp(k, "start")
    srd(k, 16, P_WS, WS_END)
    for rep in range(2):
        lin = 2 * rep
        phase_qkva(k, f"qa{rep}", rep, lin, 2 * rep, (flag_off(0, F_XB), "s4", 16) if rep else None)
        phase_wo(k, f"wa{rep}", P_WOA, lin, 2 * rep, (flag_off(rep, F_OA), "s4", 16), flag_off(rep, F_XA), False)
        phase_qkvb(k, f"qb{rep}", rep, lin + 1, (flag_off(rep, F_XA), "s4", 16))
        phase_attn(k, f"at{rep}", rep, 2 * rep + 1)
        phase_wo(k, f"wb{rep}", P_WOB, lin + 1, 2 * rep + 1, (flag_off(rep, F_OB), "s4", 16), flag_off(rep, F_XB),
                 rep == 1)
    stamp(k, "end")
    if PROF:
        k(f"""s_memrealtime s[88:89]
        s_waitcnt lgkmcnt(0)
        v_writelane_b32 v255, s88, 1
        s_add_u32 s84, s{P_WS}, {hex(WS_PROF)}
        s_addc_u32 s85, s{P_WS+1}, 0
        s_and_b32 s85, s85, 0xffff
        s_mov_b32 s86, 0x100000
        s_mov_b32 s87, 0x20000
        s_lshl_b32 s88, s2, 3
        s_add_u32 s88, s88, s3
        s_lshl_b32 s88, s88, 9
        v_lshlrev_b32 v0, 2, v1
        buffer_store_dword v255, v0, s[84:87], s88 offen
        buffer_store_dword v254, v0, s[84:87], s88 offen offset:256""")
    k("mega_exit:\ns_endpgm")
    return k, (256, 512, 163840)


def main():
    ks = [gen_mega()]
    hdr = open("interleave_layers__linear_kernel_hedgehog__grouped_kv_mqa__prompt.s.ref").read()
    hdr = "".join(l + "\n" for l in hdr.split("\n") if l.startswith(";") and "@launch" not in l and "Override" not in l and "grid=ceil" not in l)
    out = hdr
    for kern, (g, b, l) in ks:
        if "list" in sys.argv:
            out += f"; @launch kernel={kern.name} grid=({g},1,1) block=({b},1,1) lds={l}\n"
        else:
            out += f"; @launch grid=({g},1,1) block=({b},1,1) lds={l}\n"
    if PROF:
        out += "; STAMPS " + " ".join(f"{n}={i}" for n, i in STAMPS.items()) + "\n"
    out += '.amdgcn_target "amdgcn-amd-amdhsa--gfx950"\n.text\n'
    for kern, geo in ks:
        out += kern.text()
    out += '.section .rodata,"a"\n'
    for kern, geo in ks:
        out += kern.desc()
    sys.stdout.write(out)


if __name__ == "__main__":
    main()
```

```python
import sys, struct, math
from asmlib import Kern, vr, sr

S, D, H, DH = 2048, 1024, 32, 32
KA_X, KA_WQKV, KA_WPHI, KA_WOA, KA_BX, KA_WQ, KA_WK, KA_WV, KA_WOB, KA_OUT, KA_DBG, KA_WS = [8 * i for i in range(12)]
P_X, P_WQKV, P_WPHI, P_WOA, P_BX, P_WQ, P_WK, P_WV, P_WOB, P_OUT, P_DBG, P_WS = [64 + 2 * i for i in range(12)]
MB = 1 << 20
WS_X = [None, 0 * MB, 4 * MB, 8 * MB]
WS_O = [12 * MB, 16 * MB, 20 * MB, 24 * MB]
WS_KVP = [28 * MB, 32 * MB]
WS_KV = [36 * MB, 36 * MB + 0x40000]
WS_ZP = [37 * MB, 37 * MB + 0x20000]
WS_ST = [38 * MB + i * 0x40000 for i in range(4)]
WS_CSA = 39 * MB
WS_CSB = 39 * MB + 0x40000
WS_FL = 40 * MB
WS_END = 48 * MB
WS_PROF = 64 * MB
LOG2E = 1.4426950408889634
ONES2 = "0x3f803f80"
PROF = "prof" in sys.argv
X_NOLOAD = "noload" in sys.argv
X_NOMFMA = "nomfma" in sys.argv
NST = 16
STAGED = "nostaged" not in sys.argv
F_COL, F_OA, F_XA, F_KVB, F_OB, F_XB = range(6)


def flag_off(rep, grp):
    return WS_FL + (rep * 6 + grp) * 4096


def f32(x):
    return "0x%08x" % struct.unpack("<I", struct.pack("<f", x))[0]


def srd(k, d, ptr, nbytes):
    k(f"""s_mov_b32 s{d}, s{ptr}
    s_and_b32 s{d+1}, s{ptr+1}, 0xffff
    s_mov_b32 s{d+2}, {hex(nbytes)}
    s_mov_b32 s{d+3}, 0x20000""")


def srd_off(k, d, ptr, off, nbytes):
    k(f"""s_add_u32 s{d}, s{ptr}, {hex(off)}
    s_addc_u32 s{d+1}, s{ptr+1}, 0
    s_and_b32 s{d+1}, s{d+1}, 0xffff
    s_mov_b32 s{d+2}, {hex(nbytes)}
    s_mov_b32 s{d+3}, 0x20000""")


STAMPS = {}


def stamp(k, name):
    if not PROF:
        return
    idx = STAMPS.setdefault(name, len(STAMPS) + 2)
    assert idx < 128
    ins = "s_memtime" if "cyc" in sys.argv else "s_memrealtime"
    k(f"{ins} s[88:89]\ns_waitcnt lgkmcnt(0)\nv_writelane_b32 v{255 - idx // 64}, s88, {idx % 64}")


def M32(d, a, b, c=None):
    c = vr(d, 16) if c is None else c
    return f"v_mfma_f32_32x32x16_bf16 {vr(d,16)}, {vr(a,4)}, {vr(b,4)}, {c}"


def M16(d, a, b, c=None):
    c = vr(d, 4) if c is None else c
    return f"v_mfma_f32_16x16x32_bf16 {vr(d,4)}, {vr(a,4)}, {vr(b,4)}, {c}"


def gen_prep():
    k = Kern("prep_kernel")
    NWG = 258 + 64
    k(f"""
    s_cmp_ge_u32 s2, {NWG}
    s_cbranch_scc1 prep_end
    s_load_dwordx4 s[4:7], s[0:1], {KA_X}
    s_load_dwordx4 s[8:11], s[0:1], {KA_WQ}
    s_load_dwordx2 s[12:13], s[0:1], {KA_WV}
    s_load_dwordx2 s[14:15], s[0:1], {KA_WS}
    s_load_dwordx2 s[36:37], s[0:1], {KA_WOA}
    s_load_dwordx2 s[38:39], s[0:1], {KA_WOB}
    v_lshrrev_b32 v1, 6, v0
    v_and_b32 v2, 63, v0
    v_readfirstlane_b32 s3, v1
    s_waitcnt lgkmcnt(0)
    """)
    srd(k, 16, 14, WS_END)
    k("""s_cmp_ge_u32 s2, 258
    s_cbranch_scc1 prep_touch
    s_cmp_ge_u32 s2, 128
    s_cbranch_scc1 prep_cols""")
    srd(k, 20, 4, S * D * 2)
    k(f"""
    s_lshl_b32 s24, s2, 4
    s_lshl_b32 s25, s3, 2
    s_add_u32 s24, s24, s25
    s_lshl_b32 s25, s24, 11
    v_lshlrev_b32 v3, 4, v2
    s_mov_b32 s26, {ONES2}
    """)
    for i in range(4):
        k(f"buffer_load_dwordx4 {vr(8+8*i,4)}, v3, s[20:23], s25 offen offset:0")
        k(f"buffer_load_dwordx4 {vr(12+8*i,4)}, v3, s[20:23], s25 offen offset:1024")
        k(f"s_add_u32 s25, s25, 2048")
    k(f"""
    s_cmp_ge_u32 s2, 12
    s_cbranch_scc1 prep_nz
    v_mov_b32 v44, 0
    v_mov_b32 v45, 0
    v_mov_b32 v46, 0
    v_mov_b32 v47, 0
    v_lshlrev_b32 v4, 4, v0
    s_lshl_b32 s25, s2, 12
    s_add_u32 s25, s25, {hex(WS_FL)}
    buffer_store_dwordx4 v[44:47], v4, s[16:19], s25 offen
    prep_nz:
    v_and_b32 v4, 1, v2
    v_lshlrev_b32 v4, 7, v4
    v_lshrrev_b32 v5, 2, v2
    v_lshl_add_u32 v4, v5, 10, v4
    s_lshr_b32 s25, s24, 7
    s_lshl_b32 s25, s25, 14
    s_bfe_u32 s27, s24, 0x20005
    s_lshl_b32 s27, s27, 8
    s_add_u32 s25, s25, s27
    s_and_b32 s27, s24, 31
    s_lshl_b32 s28, s27, 2
    s_add_u32 s25, s25, s28
    s_add_u32 s25, s25, {hex(WS_ST[0])}
    v_lshrrev_b32 v6, 1, v2
    v_lshlrev_b32 v6, 10, v6
    v_and_b32 v5, 1, v2
    v_lshl_add_u32 v6, v5, 9, v6
    s_lshr_b32 s29, s24, 5
    s_lshl_b32 s29, s29, 16
    s_lshl_b32 s28, s27, 4
    s_add_u32 s29, s29, s28
    s_add_u32 s29, s29, {hex(WS_X[0])}
    s_add_u32 s30, s29, 32768
    v_cmp_eq_u32 vcc, 1, v5
    s_waitcnt vmcnt(0)
    """)
    for i in range(4):
        k("v_mov_b32 v40, 0\nv_mov_b32 v41, 0")
        for j in range(8):
            k(f"v_dot2_f32_bf16 v40, v{8+8*i+j}, s26, v40")
            k(f"v_dot2_f32_bf16 v41, v{8+8*i+j}, v{8+8*i+j}, v41")
        k("""v_cndmask_b32 v42, v40, v41, vcc
        v_cndmask_b32 v43, v41, v40, vcc
        v_add_f32_dpp v42, v43, v42 quad_perm:[1,0,3,2] row_mask:0xf bank_mask:0xf
        v_add_f32_dpp v48, v42, v42 quad_perm:[2,3,0,1] row_mask:0xf bank_mask:0xf
        """)
        k(f"buffer_store_dword v48, v4, s[16:19], s25 offen offset:{4*i}")
        for hf in range(2):
            a_ = 8 + 8 * i + 4 * hf
            o_ = 52 + 8 * i + 4 * hf
            k(f"""v_cndmask_b32 v50, v{a_+2}, v{a_}, vcc
            v_cndmask_b32 v51, v{a_+3}, v{a_+1}, vcc
            v_mov_b32_dpp v50, v50 quad_perm:[1,0,3,2] row_mask:0xf bank_mask:0xf
            v_mov_b32_dpp v51, v51 quad_perm:[1,0,3,2] row_mask:0xf bank_mask:0xf
            v_cndmask_b32 v{o_}, v{a_}, v50, vcc
            v_cndmask_b32 v{o_+1}, v{a_+1}, v51, vcc
            v_cndmask_b32 v{o_+2}, v50, v{a_+2}, vcc
            v_cndmask_b32 v{o_+3}, v51, v{a_+3}, vcc
            buffer_store_dwordx4 {vr(o_,4)}, v6, s[16:19], s{29+hf} offen offset:{16*i}""")
    k("s_endpgm")
    k(f"""prep_touch:
    s_sub_u32 s24, s2, 258
    s_cmp_ge_u32 s24, 32
    s_cselect_b32 s32, s38, s36
    s_cselect_b32 s33, s39, s37
    s_and_b32 s24, s24, 31
    s_lshl_b32 s24, s24, 16
    v_lshlrev_b32 v3, 4, v0
    """)
    srd(k, 20, 32, D * D * 2)
    for i in range(16):
        k(f"buffer_load_dwordx4 {vr(16+4*i,4)}, v3, s[20:23], s24 offen")
        k("s_add_u32 s24, s24, 4096")
    k("s_waitcnt vmcnt(0)\ns_endpgm")
    k("prep_cols:")
    k(f"""
    s_sub_u32 s24, s2, 128
    s_and_b32 s25, s24, 3
    s_lshr_b32 s26, s24, 2
    s_cmp_ge_u32 s2, 256
    s_cbranch_scc1 prep_small
    s_cmp_ge_u32 s2, 224
    s_cbranch_scc1 prep_wq
    """)
    srd(k, 20, 6, D * 3 * D * 2)
    k(f"""s_mov_b32 s27, 6144
    s_lshl_b32 s28, s26, 11
    s_add_u32 s28, s28, {hex(WS_CSA)}
    s_branch prep_big
    prep_wq:""")
    srd(k, 20, 8, D * D * 2)
    k(f"""s_mov_b32 s27, 2048
    s_sub_u32 s26, s26, 24
    s_lshl_b32 s28, s26, 11
    s_add_u32 s28, s28, {hex(WS_CSB)}
    prep_big:
    s_lshl_b32 s29, s25, 8
    s_lshl_b32 s30, s3, 6
    s_add_u32 s29, s29, s30
    s_mul_i32 s29, s29, s27
    s_lshl_b32 s30, s26, 8
    s_add_u32 s29, s29, s30
    s_lshl_b32 s30, s25, 2
    s_add_u32 s28, s28, s30
    v_lshlrev_b32 v6, 4, v0
    s_mov_b32 s31, 0
    s_branch prep_sum
    prep_small:
    s_cmp_eq_u32 s2, 257
    s_cselect_b32 s32, s12, s10
    s_cselect_b32 s33, s13, s11
    s_cselect_b32 s28, 512, 0
    s_add_u32 s28, s28, {hex(WS_CSB + 1024*16)}
    """)
    srd(k, 20, 32, D * 32 * 2)
    k(f"""s_mov_b32 s27, 256
    s_lshl_b32 s29, s3, 14
    v_and_b32 v6, 31, v0
    v_lshlrev_b32 v6, 4, v6
    v_lshrrev_b32 v7, 5, v0
    v_lshl_add_u32 v6, v7, 2, v6
    s_mov_b32 s31, 1
    prep_sum:
    v_lshrrev_b32 v3, 4, v2
    v_mul_lo_u32 v3, v3, s27
    v_and_b32 v4, 15, v2
    v_lshl_add_u32 v3, v4, 4, v3
    s_lshl_b32 s30, s27, 2
    """)
    for i in range(16):
        k(f"buffer_load_dwordx4 {vr(16+4*i,4)}, v3, s[20:23], s29 offen")
        k("s_add_u32 s29, s29, s30")
    k("s_mov_b32 s34, 0x3f80\ns_mov_b32 s35, 0x3f800000")
    for j in range(8):
        k(f"v_mov_b32 v{8+j}, 0")
    for i in range(16):
        k(f"s_waitcnt vmcnt({15-i})")
        for j in range(4):
            k(f"v_dot2_f32_bf16 v{8+2*j}, v{16+4*i+j}, s34, v{8+2*j}")
            k(f"v_dot2_f32_bf16 v{9+2*j}, v{16+4*i+j}, s35, v{9+2*j}")
    k(f"""
    v_lshlrev_b32 v3, 5, v0
    ds_write_b128 v3, v[8:11]
    ds_write_b128 v3, v[12:15] offset:16
    s_waitcnt lgkmcnt(0)
    s_barrier
    s_cmp_ge_u32 s3, 2
    s_cbranch_scc1 prep_end
    s_cmp_eq_u32 s31, 1
    s_cbranch_scc1 prep_red_small
    v_lshlrev_b32 v3, 2, v0
    """)
    for g in range(16):
        k(f"ds_read_b32 v{16+g}, v3 offset:{g*512}")
    k(f"""s_branch prep_red
    prep_red_small:
    v_and_b32 v3, 31, v0
    v_lshlrev_b32 v3, 2, v3
    v_lshrrev_b32 v4, 5, v0
    v_lshl_add_u32 v3, v4, 11, v3
    """)
    for g in range(16):
        k(f"ds_read_b32 v{16+g}, v3 offset:{(g>>2)*512 + (g&3)*128}")
    k("prep_red:\ns_waitcnt lgkmcnt(0)")
    for st in (8, 4, 2, 1):
        for g in range(st):
            k(f"v_add_f32 v{16+g}, v{16+g}, v{16+g+st}")
    k("""
    v_cvt_pk_bf16_f32 v17, v16, v16
    v_lshlrev_b32 v18, 16, v17
    v_sub_f32 v18, v16, v18
    v_cvt_pk_bf16_f32 v17, v16, v18
    buffer_store_dword v17, v6, s[16:19], s28 offen
    prep_end:
    s_endpgm
    """)
    return k, (NWG, 256, 8192)


def tile_map(k, mode):
    if mode == "4x8":
        k("""s_and_b32 s6, s2, 7
        s_lshr_b32 s7, s2, 3
        s_lshr_b32 s4, s6, 1
        s_lshl_b32 s4, s4, 2
        s_lshr_b32 s5, s7, 3
        s_add_u32 s4, s4, s5
        s_and_b32 s5, s6, 1
        s_lshl_b32 s5, s5, 3
        s_and_b32 s7, s7, 7
        s_add_u32 s5, s5, s7""")
    elif mode == "2x16":
        k("""s_and_b32 s6, s2, 7
        s_lshr_b32 s7, s2, 3
        s_lshl_b32 s4, s6, 1
        s_lshr_b32 s5, s7, 4
        s_add_u32 s4, s4, s5
        s_and_b32 s5, s7, 15""")
    elif mode == "8x4":
        k("""s_and_b32 s6, s2, 7
        s_lshr_b32 s7, s2, 3
        s_lshr_b32 s4, s6, 2
        s_lshl_b32 s4, s4, 3
        s_lshr_b32 s5, s7, 2
        s_add_u32 s4, s4, s5
        s_and_b32 s5, s6, 3
        s_lshl_b32 s5, s5, 2
        s_and_b32 s7, s7, 3
        s_add_u32 s5, s5, s7""")


def lines(txt):
    return [l.strip() for l in txt.split("\n") if l.strip()]


def ln_stats(tmp, out_rstd, out_bop, single=False):
    t = tmp
    o = []
    for g in range(0, 8, 2):
        o.append(f"v_pk_add_f32 {vr(t+g,2)}, {vr(t+g,2)}, {vr(t+g+8,2)}")
    for g in range(0, 4, 2):
        o.append(f"v_pk_add_f32 {vr(t+g,2)}, {vr(t+g,2)}, {vr(t+g+4,2)}")
    o.append(f"v_pk_add_f32 {vr(t,2)}, {vr(t,2)}, {vr(t+2,2)}")
    o.append(f"v_add_f32 v{t}, v{t}, v{t+1}")
    if single:
        o = []
    o += lines(f"""
    v_mul_f32 v{t}, {f32(1.0/D)}, v{t}
    v_mov_b32 v{t+1}, v{t}
    v_permlane32_swap_b32 v{t}, v{t+1}
    v_fma_f32 v{t+1}, -v{t}, v{t}, v{t+1}
    v_max_f32 v{t+1}, 0, v{t+1}
    v_add_f32 v{t+1}, {f32(1e-5)}, v{t+1}
    v_rsq_f32 v{out_rstd}, v{t+1}
    """)
    if out_bop is not None:
        o += lines(f"""
        v_sub_f32 v{t}, 0, v{t}
        v_cvt_pk_bf16_f32 v{t+2}, v{t}, v{t}
        v_lshlrev_b32 v{t+3}, 16, v{t+2}
        v_sub_f32 v{t+3}, v{t}, v{t+3}
        v_cvt_pk_bf16_f32 v{t+3}, v{t+3}, v{t+3}
        v_cndmask_b32 v{out_bop}, v{t+2}, v{t+3}, s[40:41]
        v_mov_b32 v{out_bop+1}, v{out_bop}
        v_mov_b32 v{out_bop+2}, v{out_bop}
        v_mov_b32 v{out_bop+3}, v{out_bop}
        """)
    return o


def pk_mul(k, dst, src, sc, n):
    for i in range(0, n, 2):
        k(f"v_pk_mul_f32 {vr(dst+i,2)}, {vr(src+i,2)}, {vr(sc,2)}")


def feat_map(k, src, cvec, tmp, outp):
    t = tmp
    a, b, c, d = t + 32, t + 34, t + 36, t + 38
    k(f"v_max3_f32 v{a}, v{src}, v{src+1}, v{src+2}\nv_min3_f32 v{b}, v{src}, v{src+1}, v{src+2}")
    for i in range(3, 15, 2):
        k(f"v_max3_f32 v{a}, v{a}, v{src+i}, v{src+i+1}\nv_min3_f32 v{b}, v{b}, v{src+i}, v{src+i+1}")
    k(f"""v_max_f32 v{a}, v{a}, v{src+15}
    v_min_f32 v{b}, v{b}, v{src+15}
    v_mov_b32 v{c}, v{a}
    v_mov_b32 v{d}, v{b}
    v_permlane32_swap_b32 v{a}, v{c}
    v_permlane32_swap_b32 v{b}, v{d}
    v_max_f32 v{a}, v{a}, v{c}
    v_min_f32 v{b}, v{b}, v{d}
    v_mul_f32 v{a}, v{a}, v{cvec}
    v_mul_f32 v{b}, v{b}, v{cvec}
    v_mov_b32 v{a+1}, v{a}
    v_mov_b32 v{b+1}, v{b}
    """)
    for i in range(0, 16, 2):
        k(f"v_pk_fma_f32 {vr(t+i,2)}, {vr(src+i,2)}, {vr(cvec,2)}, {vr(a,2)} neg_lo:[0,0,1] neg_hi:[0,0,1]")
        k(f"v_pk_fma_f32 {vr(t+16+i,2)}, {vr(src+i,2)}, {vr(cvec,2)}, {vr(b,2)} neg_lo:[1,0,0] neg_hi:[1,0,0]")
    for i in range(32):
        k(f"v_exp_f32 v{t+i}, v{t+i}")
    k(f"v_pk_add_f32 {vr(a,2)}, {vr(t,2)}, {vr(t+2,2)}\nv_pk_add_f32 {vr(b,2)}, {vr(t+16,2)}, {vr(t+18,2)}")
    for i in range(4, 16, 2):
        k(f"v_pk_add_f32 {vr(a,2)}, {vr(a,2)}, {vr(t+i,2)}\nv_pk_add_f32 {vr(b,2)}, {vr(b,2)}, {vr(t+16+i,2)}")
    k(f"""v_add_f32 v{a}, v{a}, v{a+1}
    v_add_f32 v{b}, v{b}, v{b+1}
    v_mov_b32 v{c}, v{a}
    v_mov_b32 v{d}, v{b}
    v_permlane32_swap_b32 v{a}, v{c}
    v_permlane32_swap_b32 v{b}, v{d}
    v_add_f32 v{a}, v{a}, v{c}
    v_add_f32 v{b}, v{b}, v{d}
    v_rcp_f32 v{a}, v{a}
    v_rcp_f32 v{b}, v{b}
    v_mov_b32 v{a+1}, v{a}
    v_mov_b32 v{b+1}, v{b}
    """)
    pk_mul(k, t, t, a, 16)
    pk_mul(k, t + 16, t + 16, b, 16)
    for i in range(16):
        k(f"v_cvt_pk_bf16_f32 v{outp+i}, v{t+2*i}, v{t+2*i+1}")


def ones_pattern(k, dst, t0, t1):
    k(f"""v_bfe_u32 v{t0}, v1, 2, 1
    v_bfe_u32 v{t1}, v1, 4, 1
    v_cmp_eq_u32 vcc, v{t0}, v{t1}
    v_mov_b32 v{t0}, {ONES2}
    v_cndmask_b32 v{dst}, 0, v{t0}, vcc
    v_mov_b32 v{dst+1}, v{dst}
    v_mov_b32 v{dst+2}, v{dst}
    v_mov_b32 v{dst+3}, v{dst}""")


def wphi_loads(k, WP, headsreg):
    k(f"""v_lshlrev_b32 v10, 1, v2
    v_lshl_add_u32 v10, v3, 8, v10
    s_lshl_b32 s34, {headsreg}, 11""")
    for t in range(2):
        for e in range(2):
            for j in range(4):
                k(f"buffer_load_ushort v{WP+8*t+4*e+j}, v10, s[20:23], s34 offen offset:{(16*t+8*e+j)*64}")


CNT = 163840 - 64
_cnt = [0]


def new_cnt():
    _cnt[0] = (_cnt[0] + 1) % 16
    return CNT + 4 * _cnt[0]


def zero_cnt(k, addr):
    k(f"v_mov_b32 v4, {addr}\nv_mov_b32 v5, 0\nds_write_b32 v4, v5")


def signal(k, base, idx_sreg, nw=1, cnt=None, word=None):
    L = k.label("sig")
    k(f"""s_lshl_b32 s34, {idx_sreg}, 8
    s_add_u32 s34, s34, {hex(base)}
    v_mov_b32 v4, 1
    v_mov_b32 v5, 0
    s_mov_b64 exec, 1""")
    if nw > 1:
        k(f"""v_mov_b32 v6, {cnt}
        ds_add_rtn_u32 v7, v6, v4
        s_waitcnt lgkmcnt(0)
        v_readfirstlane_b32 s35, v7
        s_cmp_eq_u32 s35, {nw-1}
        s_cbranch_scc0 {L}""")
    if word:
        k(f"""s_lshl_b32 s35, {word}, 2
        s_add_u32 s34, s34, s35
        buffer_store_dword v4, v5, s[16:19], s34 offen sc1""")
    else:
        k("buffer_atomic_add v4, v5, s[16:19], s34 offen sc1")
    k(f"""{L}:
    s_mov_b64 exec, -1""")


def wait_flag(k, base, idx_sreg, target, all16=False, sa=52, sb=53):
    L = k.label("poll")
    if all16:
        k(f"""v_and_b32 v4, 15, v1
        v_lshlrev_b32 v4, 8, v4
        s_mov_b32 s{sa}, {hex(base)}""")
    else:
        k(f"""v_mov_b32 v4, 0
        s_lshl_b32 s{sa}, {idx_sreg}, 8
        s_add_u32 s{sa}, s{sa}, {hex(base)}""")
    if True:
        k(f"""s_mov_b32 s{sb}, 0
        {L}:
        buffer_load_dword v5, v4, s[16:19], s{sa} offen sc1
        s_waitcnt vmcnt(0)
        v_cmp_gt_u32 vcc, {target}, v5
        s_cbranch_vccz {L}_ok
        s_add_u32 s{sb}, s{sb}, 1
        s_cmp_lt_u32 s{sb}, 0x40000
        s_cbranch_scc1 {L}
        {L}_ok:""")
        return
    k(f"""s_mov_b32 s{sb}, 0
    buffer_load_dword v5, v4, s[16:19], s{sa} offen sc1
    s_sleep 2
    buffer_load_dword v6, v4, s[16:19], s{sa} offen sc1
    s_sleep 2
    {L}:""")
    for a_, b_ in ((7, 5), (5, 6), (6, 7)):
        k(f"""buffer_load_dword v{a_}, v4, s[16:19], s{sa} offen sc1
        s_waitcnt vmcnt(2)
        v_cmp_gt_u32 vcc, {target}, v{b_}
        s_cbranch_vccz {L}_ok""")
    k(f"""s_add_u32 s{sb}, s{sb}, 1
    s_cmp_lt_u32 s{sb}, 0x20000
    s_cbranch_scc1 {L}
    {L}_ok:
    s_waitcnt vmcnt(0)""")


class VQ:
    def __init__(self):
        self.q = []

    def add(self, tag, n=1):
        self.q += [tag] * n

    def cnt(self, tag):
        last = max(i for i, t in enumerate(self.q) if t == tag)
        return len(self.q) - 1 - last


def gemm_loader(k, nseg, wstride, R, stage_bytes, extra, relaxed, tag, wt, pre=None, mid=None, npre=None,
                preflag=None, first=1, lims=None, rm=False, staged=False):
    if pre:
        pre()
    k(f"""
    s_sub_u32 s30, s3, 4
    v_lshrrev_b32 v6, 3, v1
    v_and_b32 v7, 7, v1
    s_lshl_b32 s31, s30, 4
    s_mov_b32 s33, {wstride}
    v_lshrrev_b32 v5, 1, v6
    v_and_b32 v5, 1, v5
    v_lshlrev_b32 v5, 2, v5
    v_xor_b32 v5, v5, v7
    v_lshlrev_b32 v5, 4, v5
    s_lshl_b32 s32, s5, 7
    v_add_u32 v5, s32, v5
    """)
    for jj in range(2):
        k(f"""
        v_add_u32 v4, {8*jj}, v6
        v_add_u32 v4, s31, v4
        v_mul_lo_u32 v4, v4, s33
        v_add_u32 v{12+jj}, v4, v5
        """)
        if jj:
            k(f"v_subrev_u32 v{12+jj}, {1024*jj}, v{12+jj}")
    for p in range(1, nseg):
        for jj in range(2):
            k(f"v_add_u32 v{12+2*p+jj}, {2048*p}, v{12+jj}")
    k("v_lshlrev_b32 v8, 4, v1")
    if extra:
        k(f"""s_lshl_b32 s31, s30, 10
        v_add_u32 v20, s31, v8""")
    k(f"""
    s_lshl_b32 s34, s30, 12
    s_lshl_b32 s35, s30, 11
    s_add_u32 s35, s35, 16384
    s_lshl_b32 s36, s30, 10
    s_add_u32 s36, s36, {16384 + nseg*8192}
    s_lshl_b32 s37, s4, 2
    s_add_u32 s37, s37, s30
    s_lshl_b32 s37, s37, 16
    s_mov_b32 s38, 0
    s_mov_b32 s39, 0
    """)
    if rm:
        k(f"""s_lshl_b32 s31, s4, 7
        s_lshl_b32 s32, s30, 5
        s_add_u32 s31, s31, s32
        s_add_u32 s61, s4, s5
        s_and_b32 s61, s61, 15
        s_mov_b32 s62, s61
        s_lshl_b32 s37, s61, 7
        s_mul_i32 s38, s61, {64*wstride}""")
        for jj in range(4):
            k(f"""
            v_add_u32 v4, {8*jj}, v6
            v_lshrrev_b32 v5, 1, v4
            v_and_b32 v5, 7, v5
            v_xor_b32 v5, v5, v7
            v_add_u32 v4, s31, v4
            v_lshlrev_b32 v4, 11, v4
            v_lshl_add_u32 v{20+jj}, v5, 4, v4
            """)
            if jj:
                k(f"v_subrev_u32 v{20+jj}, {1024*jj}, v{20+jj}")
    q = VQ()

    def issueW(st):
        slot = (st % R) * stage_bytes
        for p in range(nseg):
            k(f"s_add_u32 m0, s35, {slot + p*8192}")
            for jj in range(2):
                if not (X_NOLOAD and st >= R):
                    k(f"buffer_load_dwordx4 v{12+2*p+jj}, s[12:15], s38 offen offset:{1024*jj} lds")
                q.add(("s", st))
        if extra:
            k(f"s_add_u32 m0, s36, {slot}")
            k(f"buffer_load_dwordx4 v20, s[20:23], s39 offen lds")
            q.add(("s", st))
            k("s_add_u32 s39, s39, 4096")
        if rm:
            k(f"s_cmp_le_u32 s61, {st}\ns_cselect_b32 s62, {st+1}, {st}\ns_mul_i32 s38, s62, {64*wstride}")
        else:
            k(f"s_add_u32 s38, s38, {64*wstride}")

    def issueX(st):
        slot = (st % R) * stage_bytes
        if staged:
            L = k.label("sp")
            k(f"""s_cmp_gt_u32 s63, {st}
            s_cbranch_scc1 {L}_ok
            s_mov_b32 s53, 0
            {L}:
            buffer_load_dword v5, v4, s[16:19], s52 offen sc1
            s_waitcnt vmcnt(0)
            v_cmp_ne_u32 vcc, 1, v5
            s_or_b32 s63, vcc_lo, 0x10000
            s_ff1_i32_b32 s63, s63
            s_cmp_gt_u32 s63, {st}
            s_cbranch_scc1 {L}_ok
            s_add_u32 s53, s53, 1
            s_cmp_lt_u32 s53, 0x40000
            s_cbranch_scc1 {L}
            {L}_ok:""")
            if st == 0:
                stamp(k, tag + "_flag")
        k(f"s_add_u32 m0, s34, {slot}")
        for jj in range(4):
            if X_NOLOAD and st >= R:
                pass
            elif rm:
                k(f"buffer_load_dwordx4 v{20+jj}, s[8:11], s37 offen offset:{1024*jj} lds")
            else:
                k(f"buffer_load_dwordx4 v8, s[8:11], s37 offen offset:{1024*jj} sc1 lds")
            q.add(("s", st))
        if rm:
            k(f"s_cmp_le_u32 s61, {st}\ns_cselect_b32 s62, {st+1}, {st}\ns_lshl_b32 s37, s62, 7")
        else:
            k("s_add_u32 s37, s37, 4096")

    if wt:
        P_ = R if R * stage_bytes <= CNT else R - 1
        if npre is not None:
            P_ = npre
        for st in range(P_):
            issueW(st)
        if preflag:
            preflag(q)
        if staged:
            k(f"""v_and_b32 v4, 15, v1
            v_lshlrev_b32 v4, 2, v4
            s_lshl_b32 s52, {wt[1]}, 8
            s_add_u32 s52, s52, {hex(wt[0])}
            s_mov_b32 s63, 0""")
        else:
            NPL = k.label("np")
            k(f"s_cmp_lg_u32 s3, 4\ns_cbranch_scc1 {NPL}")
            wait_flag(k, *wt)
            k(f"{NPL}:\ns_waitcnt vmcnt(0)\ns_barrier")
            stamp(k, tag + "_flag")
        xi, wi = 0, P_
    else:
        xi, wi = 0, 0
    D_ = R - 2 if relaxed else R - 1

    def upto(lim):
        nonlocal xi, wi
        while xi <= lim or wi <= lim:
            if xi <= lim:
                issueX(xi)
                xi += 1
            if wi <= lim and wi < xi:
                issueW(wi)
                wi += 1

    upto(first)
    for i in range(NST):
        k(f"s_waitcnt vmcnt({q.cnt(('s', i))})")
        k("s_barrier")
        lim = min(NST - 1, max(R - 1, i + D_))
        if lims and i in lims:
            lim = lims[i]
        upto(lim)
        if mid and i in mid:
            mid[i](q)


def gemm_compute(k, R, stage_bytes, A, bases, xoffs, waddr_list, frag_base, mfmas, nfragregs, ab, tag, nbuf=4,
                 per=None, filler=None, fper=3, after_b0=None, e2=True, after_e2=None, rm=False, late=None, pre_m=0, at_iter=None, mf_first=None, after_first=None):
    loopname = k.label(tag + "_loop")

    def upd():
        for i, b in enumerate(bases):
            k(f"v_add_u32 v{ab+i}, s32, v{b}")

    def reads(t):
        out = []
        fr = frag_base + (t % nbuf) * nfragregs
        for i, xo in enumerate(xoffs):
            if rm:
                out.append(f"ds_read_b128 {vr(fr+4*i,4)}, v{ab+t} offset:{xo}")
            else:
                out.append(f"ds_read_b128 {vr(fr+4*i,4)}, v{ab} offset:{xo + 1024*t}")
        fr += 4 * len(xoffs)
        for i, (wi, wo, rb) in enumerate(waddr_list):
            for rd in range(2):
                if rm:
                    out.append(f"ds_read_b64_tr_b16 {vr(fr+4*i+2*rd,2)}, v{ab+wi+3} offset:{wo + (16*t+4*rd)*rb}")
                else:
                    out.append(f"ds_read_b64_tr_b16 {vr(fr+4*i+2*rd,2)}, v{ab+wi} offset:{wo + (16*t+8*rd)*rb}")
        return out

    n = len(reads(0))

    def stage(last, fill, mfmas=mfmas):
        for t in range(4):
            nxt = t + A
            rd = []
            if nxt < 4:
                rd = reads(nxt)
            elif not last:
                rd = reads(nxt - 4)
            young = sum(1 for u in range(t + 1, t + A) if (u < 4 or not last)) * n
            k(f"s_waitcnt lgkmcnt({min(young,15)})")
            ms = mfmas(frag_base + (t % nbuf) * nfragregs, t)
            if X_NOMFMA:
                ms, rd = ms[:1], []
            p = per or max(1, -(-len(rd) // max(1, len(ms) - 1)))
            if nxt == 4 and not last:
                k(f"""s_add_u32 s32, s32, {stage_bytes}
                s_cmp_eq_u32 s32, {R*stage_bytes}
                s_cselect_b32 s32, 0, s32""")
                for m in ms[:pre_m]:
                    k(m)
                ms = ms[pre_m:]
                upd()
                k("s_barrier")
                if pre_m:
                    p = -(-len(rd) // max(1, len(ms) - 1 if len(ms) > 1 else 1))
                    for r_ in rd[:p]:
                        k(r_)
                    rd = rd[p:]
            if last and t == 3:
                k(ms[0])
                ms = ms[1:]
                k("s_barrier")
            for i, m in enumerate(ms):
                k(m)
                rr = rd[i * p:(i + 1) * p]
                for r_ in rr:
                    k(r_)
                for _ in range(max(0, fper + 2 - len(rr))):
                    if fill:
                        k(fill.pop(0))
            for r_ in rd[len(ms) * p:]:
                k(r_)
        while fill:
            k(fill.pop(0))

    k(f"s_mov_b32 s32, 0\ns_mov_b32 s33, 0")
    stamp(k, tag + "_b0pre")
    if e2:
        k("s_barrier")
    if after_e2:
        after_e2()
    k("s_barrier")
    stamp(k, tag + "_b0")
    upd()
    for t in range(A):
        for r_ in reads(t):
            k(r_)
    if after_b0:
        after_b0()
    nloop = min(late) if late else NST - 1
    if mf_first:
        stage(False, [], mf_first)
        k("s_mov_b32 s33, 1")
        after_first()
    k(f"{loopname}:")
    stage(False, [])
    for it_, fn_ in (at_iter or []):
        SKP = k.label("skip")
        k(f"s_cmp_eq_u32 s33, {it_}\ns_cbranch_scc0 {SKP}")
        fn_()
        k(f"{SKP}:")
    k(f"""s_add_u32 s33, s33, 1
    s_cmp_lt_u32 s33, {nloop}
    s_cbranch_scc1 {loopname}""")
    for st in range(nloop, NST - 1):
        stage(False, list(late.get(st, [])))
    stage(True, list(filler or []))
    stamp(k, tag + "_loopend")


def x_addr(k, dst, rowsreg):
    k(f"""
    v_add_u32 v4, {rowsreg}, v2
    v_bfe_u32 v5, v4, 1, 3
    v_lshlrev_b32 v4, 7, v4
    """)
    for t in range(4):
        k(f"""v_add_u32 v6, {2*t}, v3
        v_xor_b32 v6, v6, v5
        v_lshl_add_u32 v{dst+t}, v6, 4, v4""")


def hilo(src, dst, tmp):
    return lines(f"""v_cvt_pk_bf16_f32 v{tmp}, v{src}, v{src}
    v_lshlrev_b32 v{tmp}, 16, v{tmp}
    v_sub_f32 v{tmp}, v{src}, v{tmp}
    v_cvt_pk_bf16_f32 v{dst}, v{src}, v{tmp}""")


def cs_build(dst, src):
    return [f"v_mov_b32 v{dst}, v{src}"] + [f"v_mov_b32 v{dst+i}, 0" for i in (1, 2, 3)]


def wqkv_warm(k, widx):
    srd(k, 24, P_WQKV, D * 3 * D * 2)
    k(f"""s_bfe_u32 s56, s2, 0x30005
    s_lshl_b32 s56, s56, 2
    s_add_u32 s56, s56, {widx}
    s_mul_i32 s56, s56, {32*6144}
    s_and_b32 s57, s2, 3
    s_lshl_b32 s57, s57, 2
    s_bfe_u32 s58, s2, 0x20003
    s_add_u32 s57, s57, s58
    s_lshl_b32 s57, s57, 7
    s_add_u32 s56, s56, s57
    v_mul_u32_u24 v246, 6144, v2
    v_lshl_add_u32 v247, v3, 11, v246
    buffer_load_dword v245, v247, s[24:27], s56 offen
    s_add_u32 s56, s56, 4096
    buffer_load_dword v245, v246, s[24:27], s56 offen""")


def warm(k, ptr, mode, widx):
    if "nowarm" in sys.argv:
        return
    nseg, stride = (3, 6144) if mode == "8x4" else (1, 2048)
    srd(k, 20, ptr, D * stride)
    if mode == "4x8":
        k(f"""s_bfe_u32 s56, s2, 0x20006
        s_lshl_b32 s56, s56, 2
        s_add_u32 s56, s56, {widx}
        s_lshl_b32 s56, s56, 6
        s_and_b32 s57, s2, 1
        s_lshl_b32 s57, s57, 3
        s_bfe_u32 s58, s2, 0x30003
        s_add_u32 s57, s57, s58""")
        n = 8
    else:
        k(f"""s_bfe_u32 s56, s2, 0x30005
        s_lshl_b32 s56, s56, 2
        s_add_u32 s56, s56, {widx}
        s_lshl_b32 s56, s56, 5
        s_and_b32 s57, s2, 3
        s_lshl_b32 s57, s57, 2
        s_bfe_u32 s58, s2, 0x20003
        s_add_u32 s57, s57, s58""")
        n = 4
    k(f"""s_mul_i32 s56, s56, {stride}
    s_lshl_b32 s57, s57, 7
    s_add_u32 s56, s56, s57
    v_lshrrev_b32 v239, 3, v1
    v_mul_u32_u24 v239, {stride}, v239
    v_and_b32 v238, 7, v1
    v_lshl_add_u32 v239, v238, 4, v239""")
    for i in range(n):
        for p in range(nseg):
            if p < 2:
                k(f"buffer_load_dwordx4 v[244:247], v239, s[20:23], s56 offen offset:{2048*p}")
            else:
                k(f"s_add_u32 s57, s56, 4096\nbuffer_load_dwordx4 v[244:247], v239, s[20:23], s57 offen")
        k(f"s_add_u32 s56, s56, {8*stride}")


class Cap:
    def __init__(self):
        self.l = []

    def __call__(self, t):
        self.l += lines(t)


def w_tr_base(k, dst, col0, rb, swz, hs=2):
    k(f"""
    v_and_b32 v4, 15, v1
    v_lshrrev_b32 v5, 2, v4
    v_lshl_add_u32 v5, v3, {hs}, v5
    v_mul_u32_u24 v5, {rb}, v5
    v_and_b32 v6, 3, v4
    v_lshlrev_b32 v6, 3, v6
    v_bfe_u32 v7, v1, 4, 1
    v_lshl_add_u32 v6, v7, 5, v6
    v_add_u32 v6, {col0}, v6
    """)
    if swz:
        k(f"""v_bfe_u32 v7, v1, 3, 1
        v_lshlrev_b32 v7, 6, v7
        v_xor_b32 v6, v6, v7""")
    k(f"v_add_u32 v{dst}, v5, v6")


def stats_loads(k, dst, w32_sreg, tmpv, st_off, q=None):
    k(f"""v_lshlrev_b32 v{tmpv}, 2, v1
    s_lshl_b32 s54, s4, 14
    s_lshl_b32 s55, {w32_sreg}, 8
    s_add_u32 s54, s54, s55
    s_add_u32 s54, s54, {hex(st_off)}""")
    for c in range(16):
        k(f"buffer_load_dword v{dst+c}, v{tmpv}, s[16:19], s54 offen offset:{1024*(c&3)} sc1")
        if q is not None:
            q.add("stats")
        if c & 3 == 3 and c < 15:
            k("s_add_u32 s54, s54, 4096")


XINIT = int(dict(a.split('=') for a in sys.argv if '=' in a).get('xinit', 8))
XDEPTH = int(dict(a.split('=') for a in sys.argv if '=' in a).get('xdepth', 20))
WGRP = [0, 4, 10]


def stage_poll(k, st):
    L = k.label("sp")
    k(f"""s_cmp_gt_u32 s63, {st}
    s_cbranch_scc1 {L}_ok
    s_mov_b32 s53, 0
    {L}:
    buffer_load_dword v5, v4, s[16:19], s52 offen sc1
    s_waitcnt vmcnt(0)
    v_cmp_ne_u32 vcc, 1, v5
    s_or_b32 s63, vcc_lo, 0x10000
    s_ff1_i32_b32 s63, s63
    s_cmp_gt_u32 s63, {st}
    s_cbranch_scc1 {L}_ok
    s_add_u32 s53, s53, 1
    s_cmp_lt_u32 s53, 0x40000
    s_cbranch_scc1 {L}
    {L}_ok:""")


def wpf_setup(k, ptr, nw, widx):
    srd(k, 24, ptr, D * D * 2)
    sh = 3 if nw == 8 else 4
    k(f"""s_and_b32 s57, s2, 1
    s_lshl_b32 s57, s57, 3
    s_bfe_u32 s58, s2, 0x30003
    s_add_u32 s57, s57, s58
    s_lshl_b32 s57, s57, 7
    v_lshrrev_b32 v241, 3, v1
    v_bfe_u32 v242, v241, 1, 1
    v_lshlrev_b32 v242, 2, v242
    v_and_b32 v243, 7, v1
    v_xor_b32 v242, v242, v243
    v_lshlrev_b32 v242, 4, v242
    s_lshl_b32 s58, {widx}, {sh}
    v_add_u32 v241, s58, v241
    v_lshl_add_u32 v241, v241, 11, v242
    v_add_u32 v241, s57, v241
    v_add_u32 v242, {8*2048-1024}, v241
    s_lshl_b32 s60, {widx}, {sh+7}""")


def wpf_issue(k, stages, wloc, nw, q=None):
    for st in stages:
        k(f"s_add_u32 m0, s60, {wloc(st)}\ns_mov_b32 s59, {st*64*2048}")
        k("buffer_load_dwordx4 v241, s[24:27], s59 offen lds")
        if nw == 4:
            k("buffer_load_dwordx4 v242, s[24:27], s59 offen offset:1024 lds")
        if q is not None:
            q.add("wpf", 8 // nw)


def wloc_a(st):
    return 81920 + 8192 * st if st < 9 else 8192 * (st - 9)


def wloc_b(st):
    return 8192 * st if st < 12 else (131072 + 8192 * (st - 12) if st < 15 else 98304)


def gemm2_loader(k, tag, wloc, order=None, hooks=None):
    k(f"""
    s_sub_u32 s30, s3, 4
    v_lshrrev_b32 v6, 3, v1
    v_and_b32 v7, 7, v1
    s_lshl_b32 s31, s30, 4
    v_lshrrev_b32 v5, 1, v6
    v_and_b32 v5, 1, v5
    v_lshlrev_b32 v5, 2, v5
    v_xor_b32 v5, v5, v7
    v_lshlrev_b32 v5, 4, v5
    s_lshl_b32 s32, s5, 7
    v_add_u32 v5, s32, v5
    v_add_u32 v4, s31, v6
    v_lshl_add_u32 v12, v4, 11, v5
    v_add_u32 v13, {8*2048-1024}, v12
    v_lshlrev_b32 v8, 4, v1
    s_lshl_b32 s35, s30, 11
    """)
    q = VQ()
    if order is None:
        order = list(range(16)) + [("bar", g) for g in (3, 9, 15)]
    for o in order:
        if callable(o):
            o(q)
        elif o == ("bar0",):
            k("s_barrier")
        elif isinstance(o, tuple):
            k(f"s_waitcnt vmcnt({q.cnt(('s', o[1]))})\ns_barrier")
        else:
            k(f"s_add_u32 m0, s35, {wloc(o)}\ns_mov_b32 s38, {o*64*2048}")
            for jj in range(2):
                k(f"buffer_load_dwordx4 v{12+jj}, s[12:15], s38 offen offset:{1024*jj} lds")
                q.add(("s", o))


def rdy_poller(k, wt, rdy):
    L = k.label("rp")
    k(f"""s_cmp_lg_u32 s3, 7
    s_cbranch_scc1 {L}_ok
    v_and_b32 v4, 15, v1
    v_lshlrev_b32 v4, 2, v4
    s_lshl_b32 s52, {wt[1]}, 8
    s_add_u32 s52, s52, {hex(wt[0])}
    s_mov_b32 s53, 0
    v_mov_b32 v6, {rdy}
    {L}:
    buffer_load_dword v5, v4, s[16:19], s52 offen sc1
    s_waitcnt vmcnt(0)
    v_cmp_ne_u32 vcc, 1, v5
    s_or_b32 s63, vcc_lo, 0x10000
    s_ff1_i32_b32 s63, s63
    s_add_u32 s53, s53, 1
    s_cmp_lt_u32 s53, 0x40000
    s_cselect_b32 s63, s63, 16
    v_mov_b32 v7, s63
    ds_write_b32 v6, v7
    s_cmp_lt_u32 s63, 16
    s_cbranch_scc1 {L}
    {L}_ok:""")


def gemm2_compute(k, tag, ACC, XR, WF, wb, wloc, wt, filler=None, extra=None, late=None, groups=WGRP, pre=None, rdy=None,
                  before_x=None, ring=32, fill_from=48):
    q = VQ()
    fill = list(filler or [])
    k(f"""v_add_u32 v{wb+2}, 0x10000, v{wb}
    v_add_u32 v{wb+3}, 0x10000, v{wb+1}
    v_add_u32 v{wb+4}, 0x20000, v{wb}
    v_add_u32 v{wb+5}, 0x20000, v{wb+1}""")
    if wt:
        k(f"v_mov_b32 v4, {rdy}\ns_mov_b32 s63, 0")

    def xload(j):
        if j % 4 == 0 and wt:
            L = k.label("lp")
            k(f"""s_cmp_gt_u32 s63, {j//4}
            s_cbranch_scc1 {L}_ok
            {L}:
            ds_read_b32 v5, v4
            s_waitcnt lgkmcnt(0)
            v_readfirstlane_b32 s63, v5
            s_cmp_gt_u32 s63, {j//4}
            s_cbranch_scc0 {L}
            {L}_ok:""")
            if j == 0:
                stamp(k, tag + "_flag")
        k(f"buffer_load_dwordx4 {vr(XR+4*(j%ring),4)}, v10, s[8:11], s39 offen offset:{1024*(j&3)} sc1")
        q.add(("x", j))
        if j % 4 == 3:
            k("s_add_u32 s39, s39, 4096")

    def wreads(j):
        off = wloc(j // 4) + (16 * (j % 4)) * 128
        hi = off >> 16
        return [f"ds_read_b64_tr_b16 {vr(WF+8*(j%4)+4*bl+2*rd,2)}, v{wb+2*hi+bl} offset:{(off & 0xffff) + 1024*rd}"
                for bl in range(2) for rd in range(2)]

    stamp(k, tag + "_b0pre")
    k("s_barrier")
    if before_x:
        before_x()
    nx = 0
    for j in range(XINIT):
        xload(j)
        nx += 1
    if pre:
        pre(q)
    stamp(k, tag + "_b0")
    for j in range(2):
        for r_ in wreads(j):
            k(r_)
    for j in range(64):
        if late and j in late:
            late[j](q)
        rd = wreads(j + 2) if j + 2 < 64 else []
        k(f"s_waitcnt vmcnt({min(63, q.cnt(('x', j)))}) lgkmcnt({4 if j < 63 else 0})")
        x, w = XR + 4 * (j % ring), WF + 8 * (j % 4)
        k(M32(ACC, w, x))
        if j == 63 or ((j + 2) % 4 == 0 and (j + 2) // 4 in groups[1:]):
            k("s_barrier")
        for r_ in rd[:2]:
            k(r_)
        for _ in range(2):
            if j >= fill_from and fill:
                k(fill.pop(0))
        k(M32(ACC + 16, w + 4, x))
        if extra:
            extra(j, w)
        for r_ in rd[2:]:
            k(r_)
        for _ in range(2):
            if nx < 64 and nx <= j + XDEPTH:
                xload(nx)
                nx += 1
        for _ in range(2):
            if j >= fill_from and fill:
                k(fill.pop(0))
    while fill:
        k(fill.pop(0))
    stamp(k, tag + "_loopend")


def phase_wo(k, tag, p_w, lin, oi, wt, sig_base, final):
    LD, END = k.label(tag + "_ld"), k.label(tag + "_end")
    tile_map(k, "4x8")
    srd_off(k, 8, P_WS, WS_O[oi], S * D * 2)
    srd(k, 12, p_w, D * D * 2)
    if final:
        srd(k, 24, P_OUT, S * D * 2)
    if lin == 0:
        srd(k, 24, P_X, S * D * 2)
    k(f"s_cmp_ge_u32 s3, 4\ns_cbranch_scc1 {LD}")
    k(f"""
    s_lshl_b32 s30, s4, 2
    s_add_u32 s30, s30, s3
    s_lshl_b32 s39, s30, 16
    s_lshl_b32 s31, s5, 12
    s_add_u32 s36, s39, s31
    s_add_u32 s37, s36, {hex(WS_X[lin] or 0)}
    v_lshlrev_b32 v10, 4, v1
    """)
    rm_addr = lines(f"""s_lshl_b32 s31, s30, 5
        v_add_u32 v9, s31, v2
        v_lshlrev_b32 v9, 11, v9
        v_lshl_add_u32 v9, v3, 4, v9
        s_lshl_b32 s31, s5, 7
        v_add_u32 v9, s31, v9""")
    ACC, RES, XR, WF = 32, 64, 96, 64
    if lin == 0:
        for l_ in rm_addr:
            k(l_)
    for q in range(4):
        if lin == 0:
            k(f"buffer_load_dwordx4 {vr(RES+4*q,4)}, v9, s[24:27], 0 offen offset:{32*q}")
        else:
            k(f"buffer_load_dwordx4 {vr(RES+4*q,4)}, v10, s[16:19], s37 offen offset:{1024*q} sc1")
    w_tr_base(k, 12, "0", 128, True)
    k("v_xor_b32 v13, 64, v12")
    cnt = new_cnt()
    zero_cnt(k, cnt)
    rdy = new_cnt()
    zero_cnt(k, rdy)
    k("s_waitcnt lgkmcnt(0)")

    def acc_init():
        k("s_waitcnt vmcnt(0)")
        if lin == 0:
            for q in range(4):
                a = RES + 4 * q
                k(f"v_permlane32_swap_b32 v{a}, v{a+2}\nv_permlane32_swap_b32 v{a+1}, v{a+3}")
        for i in range(16):
            k(f"v_lshlrev_b32 v{ACC+2*i}, 16, v{RES+i}\nv_and_b32 v{ACC+2*i+1}, 0xffff0000, v{RES+i}")
    if final:
        fill = list(rm_addr)
    else:
        fill = lines(f"""s_add_u32 s37, s36, {hex(WS_X[lin+1])}
        s_mov_b32 s35, {ONES2}
        v_mov_b32 v24, 0
        v_mov_b32 v25, 0
        s_lshl_b32 s38, s4, 14
        s_lshl_b32 s31, s5, 10
        s_add_u32 s38, s38, s31
        s_lshl_b32 s31, s3, 8
        s_add_u32 s38, s38, s31
        s_add_u32 s38, s38, {hex(WS_ST[lin+1])}
        v_lshlrev_b32 v9, 2, v1""")
    if p_w == P_WOA:
        wloc, groups, order = wloc_a, [0, 9], list(range(9, 16)) + [("bar0",), lambda q: rdy_poller(k, wt, rdy), ("bar", 15),
                                                          lambda q: (qkvb_early(k, 0), qkvb_early(k, 1))]
    else:
        wloc, groups, order = wloc_b, [0, 15], [15, ("bar0",), lambda q: rdy_poller(k, wt, rdy), ("bar", 15)]
    gemm2_compute(k, tag, ACC, XR, WF, 12, wloc, wt, filler=fill, groups=groups, rdy=rdy, before_x=acc_init)
    RES = 96
    for q in range(4):
        a = RES + 4 * q
        for j in range(4):
            ac = ACC + 8 * q + 2 * j
            k(f"v_cvt_pk_bf16_f32 v{a+j}, v{ac}, v{ac+1}")
        if final:
            k(f"v_permlane32_swap_b32 v{a}, v{a+2}\nv_permlane32_swap_b32 v{a+1}, v{a+3}")
            k(f"buffer_store_dwordx4 {vr(a,4)}, v9, s[24:27], 0 offen offset:{32*q}")
        else:
            k(f"buffer_store_dwordx4 {vr(a,4)}, v10, s[16:19], s37 offen offset:{1024*q} sc1")
    if not final:
        for i in range(16):
            k(f"v_dot2_f32_bf16 v24, v{RES+i}, s35, v24\nv_dot2_f32_bf16 v25, v{RES+i}, v{RES+i}, v25")
        k(f"""
        v_permlane32_swap_b32 v24, v25
        v_add_f32 v24, v24, v25
        buffer_store_dword v24, v9, s[16:19], s38 offen sc1
        """)
        stamp(k, tag + "_st")
        k("s_waitcnt vmcnt(0)")
        stamp(k, tag + "_drain")
        signal(k, sig_base, "s4", 4, cnt, "s5")
    k(f"s_branch {END}\n{LD}:")
    gemm2_loader(k, tag, wloc, order)
    k(f"s_barrier\n{END}:")
    if False:
        k("s_barrier")


QX_B = 147456
WKV_L = 81920
VT_B = 155648
CSP_L = VT_B + 2304
CSX_L = 131072


def wloc_q(st):
    if st < 3:
        return 57344 + 8192 * st
    if st < 10:
        return 8192 * (st - 3)
    if st == 10:
        return 147456
    if st < 15:
        return WKV_L + 16384 * (st - 11) + 8192
    return WKV_L


def qkvb_early(k, part):
    if part == 0:
        wpf_setup(k, P_WQ, 4, "s30")
        wpf_issue(k, [0, 1, 2], wloc_q, 4)
        return
    A_, B_ = k.label("qe"), k.label("qe")
    k(f"s_cmp_ge_u32 s5, 8\ns_cbranch_scc1 {A_}")
    k(f"""s_bitcmp1_b32 s5, 0
    s_cselect_b32 s46, s{P_WV}, s{P_WK}
    s_cselect_b32 s47, s{P_WV+1}, s{P_WK+1}""")
    srd(k, 20, 46, D * 32 * 2)
    k(f"""s_lshl_b32 s39, s30, 14
    s_add_u32 s31, s39, {WKV_L}""")
    for g in range(4):
        k(f"s_add_u32 m0, s31, {4096*g}")
        for jj in range(4):
            k(f"buffer_load_dwordx4 v8, s[20:23], s39 offen offset:{1024*jj} lds")
        k("s_add_u32 s39, s39, 4096")
    k(f"s_branch {B_}\n{A_}:")
    wpf_issue(k, [11, 12, 13, 14, 15], wloc_q, 4)
    k(f"{B_}:")


def phase_qkvb(k, tag, rep, lin, wt):
    LD, END, NOKV, SG = [k.label(tag + x) for x in ("_ld", "_end", "_nokv", "_sg")]
    first = rep == 0
    tile_map(k, "4x8")
    srd_off(k, 8, P_WS, WS_X[lin], S * D * 2)
    srd(k, 12, P_WQ, D * D * 2)
    k("s_lshr_b32 s48, s5, 1")
    rdy = new_cnt()
    k(f"s_cmp_ge_u32 s3, 4\ns_cbranch_scc1 {LD}")
    ACC, WF, XR = 32, 64, 96
    STT, CS, RSTD, SC, BOP = 224, 20, 18, 28, 240
    CA, ON = 224 - 16, 224 - 8
    k(f"""
    v_lshlrev_b32 v10, 4, v1
    s_lshl_b32 s39, s4, 2
    s_add_u32 s36, s39, s48
    s_add_u32 s39, s39, s3
    s_lshl_b32 s39, s39, 16
    s_lshl_b32 s36, s36, 16
    s_lshl_b32 s31, s3, 14
    s_add_u32 s36, s36, s31
    """)
    w_tr_base(k, 12, "0", 128, True)
    k("v_xor_b32 v13, 64, v12")
    w_tr_base(k, 30, "0", 64, False)
    k(f"""s_lshl_b32 s31, s3, 14
    s_add_u32 s31, s31, {WKV_L}
    v_add_u32 v30, s31, v30
    v_add_u32 v31, s31, v10""")
    zero_cnt(k, rdy)
    for i in range(32):
        k(f"v_mov_b32 v{ACC+i}, 0")
    if first:
        ones_pattern(k, ON, 4, 5)
        for i in range(8):
            k(f"v_mov_b32 v{CA+i}, 0")
    k("s_waitcnt lgkmcnt(0)")

    def extra(j, w):
        if first:
            L_ = k.label("cs")
            k(f"""s_cmp_eq_u32 s3, {j % 4}
            s_cbranch_scc0 {L_}
            {M16(CA, ON, w)}
            {M16(CA + 4, ON, w + 4)}
            {L_}:""")

    fill = ["s_waitcnt vmcnt(0)"] + ln_stats(STT, RSTD, BOP) + [
        f"v_mul_f32 v{SC}, {f32(LOG2E * DH**-0.5)}, v{RSTD}",
        f"v_mov_b32 v{SC+1}, v{SC}"] + lines(f"""s_lshl_b32 s34, s3, 11
        s_add_u32 s34, s34, {QX_B}
        v_add_u32 v11, s34, v10""")
    if not first:
        fill += cs_build(CS, 251) + cs_build(CS + 4, 252)

    XF, WP_, E_ = 128, 64, 192

    def prepass_a():
        L = k.label("pp")
        k(f"""s_cmp_ge_u32 s5, 8
        s_cbranch_scc1 {NOKV}_a
        s_lshl_b32 s31, s3, 2
        s_add_u32 s31, s31, 3
        {L}:
        ds_read_b32 v5, v4
        s_waitcnt lgkmcnt(0)
        v_readfirstlane_b32 s63, v5
        s_cmp_gt_u32 s63, s31
        s_cbranch_scc0 {L}""")
        for t in range(16):
            k(f"buffer_load_dwordx4 {vr(XF+4*t,4)}, v10, s[8:11], s36 offen offset:{1024*(t&3)} sc1")
            if t & 3 == 3:
                k("s_add_u32 s36, s36, 4096")
        k(f"{NOKV}_a:")

    def prepass_b(q):
        k(f"s_cmp_ge_u32 s5, 8\ns_cbranch_scc1 {NOKV}")

        def wr(t):
            for rd in range(2):
                k(f"ds_read_b64_tr_b16 {vr(WP_+4*(t%8)+2*rd,2)}, v30 offset:{(16*t+8*rd)*64}")
        for t in range(7):
            wr(t)
        for t in range(16):
            k(f"s_waitcnt vmcnt({15-t+XINIT}) lgkmcnt({2*min(6, 15-t)})")
            k(M32(E_, WP_ + 4 * (t % 8), XF + 4 * t, "0" if t == 0 else None))
            if first:
                k(M16(224, ON, WP_ + 4 * (t % 8), "0" if t == 0 else None))
            if t + 7 < 16:
                wr(t + 7)
        for qq in range(4):
            k(f"ds_write_b128 v31, {vr(E_+4*qq,4)} offset:{1024*qq}")
        if first:
            k(f"""s_lshl_b32 s31, s3, 8
            s_add_u32 s31, s31, {CSP_L}
            v_lshlrev_b32 v9, 2, v1
            v_add_u32 v9, s31, v9
            ds_write_b32 v9, v224""")
        k(f"s_waitcnt lgkmcnt(0)\n{NOKV}:\ns_barrier")

    gemm2_compute(k, tag, ACC, XR, WF, 12, wloc_q, wt, filler=fill, extra=extra, groups=[0, 11, 15], rdy=rdy,
                  before_x=prepass_a, pre=prepass_b, ring=28,
                  late={46: lambda q: stats_loads(k, STT, "s3", 9, WS_ST[lin], q)}, fill_from=58)
    if first:
        k(f"""v_lshlrev_b32 v9, 2, v1
        v_add_u32 v9, {CSX_L}, v9
        s_lshl_b32 s31, s3, 9
        v_add_u32 v4, s31, v9
        ds_write_b32 v4, v{CA}
        ds_write_b32 v4, v{CA+4} offset:256
        s_waitcnt lgkmcnt(0)
        s_barrier""")
        for w in range(4):
            for bl in range(2):
                k(f"ds_read_b32 v{144+4*bl+w}, v9 offset:{512*w+256*bl}")
        k("s_waitcnt lgkmcnt(0)")
        for bl in range(2):
            t_ = 144 + 4 * bl
            k(f"v_add_f32 v{t_}, v{t_}, v{t_+1}\nv_add_f32 v{t_+2}, v{t_+2}, v{t_+3}\nv_add_f32 v{t_}, v{t_}, v{t_+2}")
            for l_ in hilo(t_, 251 + bl, 4) + cs_build(CS + 4 * bl, 251 + bl):
                k(l_)
    k(M32(ACC + 16, CS + 4, BOP))
    k(M32(ACC, CS, BOP))
    pk_mul(k, ACC + 16, ACC + 16, SC, 16)
    for i in range(8):
        k(f"v_cvt_pk_bf16_f32 v{88+i}, v{ACC+16+2*i}, v{ACC+16+2*i+1}")
    for t in range(2):
        k(f"ds_write_b128 v11, {vr(88+4*t,4)} offset:{1024*t}")
    pk_mul(k, ACC, ACC, SC, 16)
    for i in range(8):
        k(f"v_cvt_pk_bf16_f32 v{180+i}, v{ACC+2*i}, v{ACC+2*i+1}")
    k(f"s_branch {END}\n{LD}:")

    E = 32

    def g0(q):
        k("s_waitcnt vmcnt(16)\ns_barrier")
        rdy_poller(k, wt, rdy)
        S6, L6 = k.label("s6"), k.label("l6")
        k(f"""s_cmp_lg_u32 s3, 6
        s_cbranch_scc1 {S6}
        s_setprio 3
        v_mov_b32 v4, {rdy}
        {L6}:
        ds_read_b32 v5, v4
        s_waitcnt lgkmcnt(0)
        v_readfirstlane_b32 s63, v5
        s_cmp_gt_u32 s63, 15
        s_cbranch_scc0 {L6}
        s_and_b32 s49, s48, 3""")
        stats_loads(k, STT, "s49", 9, WS_ST[lin])
        k(f"""s_lshl_b32 s54, s4, 2
        s_add_u32 s54, s54, s48
        s_lshl_b32 s54, s54, 12
        s_add_u32 s54, s54, {hex(WS_KV[rep])}
        v_mul_u32_u24 v26, 72, v2
        v_lshl_add_u32 v26, v3, 3, v26
        v_add_u32 v26, {VT_B}, v26
        v_and_b32 v24, 15, v1
        v_lshrrev_b32 v25, 2, v24
        v_lshl_add_u32 v25, v3, 2, v25
        v_mul_u32_u24 v25, 72, v25
        v_and_b32 v24, 3, v24
        v_lshl_add_u32 v25, v24, 3, v25
        v_bfe_u32 v24, v1, 4, 1
        v_lshl_add_u32 v25, v24, 5, v25
        v_add_u32 v25, {VT_B}, v25
        s_waitcnt vmcnt(0)""")
        for l_ in ln_stats(STT, RSTD, BOP):
            k(l_)
        k(f"v_mov_b32 v{RSTD+1}, v{RSTD}")
        if not first:
            for l_ in cs_build(CS, 248):
                k(l_)
        k(f"{S6}:\ns_waitcnt vmcnt(0)\ns_barrier")

    def w1114():
        for st in (11, 12, 13, 14):
            k(f"s_add_u32 m0, s35, {wloc_q(st)}\ns_mov_b32 s38, {st*64*2048}")
            for jj in range(2):
                k(f"buffer_load_dwordx4 v{12+jj}, s[12:15], s38 offen offset:{1024*jj} lds")

    def kvfin(q):
        SK, S2, W6 = k.label("kvs"), k.label("kvs"), k.label("kvs")
        k(f"""s_cmp_ge_u32 s5, 8
        s_cbranch_scc1 {SK}
        s_cmp_eq_u32 s3, 6
        s_cbranch_scc1 {W6}""")
        w1114()
        k(f"s_branch {SK}\n{W6}:")
        k(f"v_add_u32 v9, {WKV_L}, v8")
        for w in range(4):
            for qq in range(4):
                k(f"ds_read_b128 {vr(E+16*w+4*qq,4)}, v9 offset:{16384*w+1024*qq}")
        if first:
            k(f"v_lshlrev_b32 v9, 2, v1\nv_add_u32 v9, {CSP_L}, v9")
            for w in range(4):
                k(f"ds_read_b32 v{100+w}, v9 offset:{256*w}")
        k("s_waitcnt lgkmcnt(0)")
        for i in range(0, 16, 2):
            k(f"v_pk_add_f32 {vr(E+i,2)}, {vr(E+i,2)}, {vr(E+16+i,2)}")
            k(f"v_pk_add_f32 {vr(E+32+i,2)}, {vr(E+32+i,2)}, {vr(E+48+i,2)}")
            k(f"v_pk_add_f32 {vr(E+i,2)}, {vr(E+i,2)}, {vr(E+32+i,2)}")
        if first:
            k("v_add_f32 v100, v100, v101\nv_add_f32 v102, v102, v103\nv_add_f32 v100, v100, v102")
            for l_ in hilo(100, 248, 4) + cs_build(CS, 248):
                k(l_)
        k(M32(E, CS, BOP))
        pk_mul(k, E, E, RSTD, 16)
        for i in range(8):
            k(f"v_cvt_pk_bf16_f32 v{96+i}, v{E+2*i}, v{E+2*i+1}")
        k(f"s_bitcmp1_b32 s5, 0\ns_cbranch_scc0 {SG}")
        for i in range(4):
            k(f"ds_write_b64 v26, {vr(96+2*i,2)} offset:{16*i}")
        k("s_waitcnt lgkmcnt(0)")
        for t in range(2):
            for e in range(2):
                k(f"ds_read_b64_tr_b16 {vr(96+4*t+2*e,2)}, v25 offset:{(16*t+8*e)*72}")
        k(f"s_waitcnt lgkmcnt(0)\ns_add_u32 s54, s54, 2048\n{SG}:")
        for t in range(2):
            k(f"buffer_store_dwordx4 {vr(96+4*t,4)}, v8, s[16:19], s54 offen offset:{1024*t} sc1")
        k("s_waitcnt vmcnt(0)\ns_mov_b32 s61, s35")
        signal(k, flag_off(rep, F_KVB), "s4")
        k("s_mov_b32 s35, s61")
        stamp(k, tag + "_kvsig")
        w1114()
        k(f"""{SK}:
        s_setprio 0
        s_waitcnt vmcnt(0)
        s_barrier
        s_cmp_ge_u32 s5, 8
        s_cbranch_scc1 {S2}
        s_add_u32 m0, s35, {wloc_q(15)}
        s_mov_b32 s38, {15*64*2048}""")
        for jj in range(2):
            k(f"buffer_load_dwordx4 v{12+jj}, s[12:15], s38 offen offset:{1024*jj} lds")
        k(f"{S2}:")
        NPK = k.label("npk")
        k(f"s_cmp_lg_u32 s3, 7\ns_cbranch_scc1 {NPK}")
        wait_flag(k, flag_off(rep, F_KVB), None, 8, True)
        stamp(k, tag + "_kvflag")
        k(f"""{NPK}:
        s_waitcnt vmcnt(0)
        s_barrier
        s_lshl_b32 s31, s30, 13
        s_add_u32 s39, s31, {hex(WS_KV[rep])}""")
        for hf in range(2):
            k(f"s_add_u32 m0, s31, {4096*hf}")
            for qq in range(4):
                k(f"buffer_load_dwordx4 v8, s[16:19], s39 offen offset:{1024*qq} sc1 lds")
            k("s_add_u32 s39, s39, 4096")

    gemm2_loader(k, tag, wloc_q, list(range(3, 11)) + [g0, kvfin])
    k("s_barrier\n" * (2 if first else 1) + f"{END}:")


def phase_attn(k, tag, rep, oi):
    name = k.label(tag)
    Q, NEG, SA, SB, P, O, L, ONE, KF, VF = 8, 16, 32, 48, 64, 80, 96, 100, 104, 120
    k(f"""
    s_lshr_b32 s36, s3, 2
    s_and_b32 s37, s3, 3
    s_lshl_b32 s38, s5, 1
    s_add_u32 s38, s38, s36
    s_lshl_b32 s39, s4, 2
    s_add_u32 s39, s39, s37
    v_lshlrev_b32 v128, 4, v1
    """)
    cnt = new_cnt()
    zero_cnt(k, cnt)
    k(f"""
    v_mov_b32 v4, v128
    s_lshl_b32 s30, s3, 12
    s_add_u32 s31, s30, {hex(WS_KV[rep] + 32768)}
    """)

    def dma():
        for q in range(4):
            k(f"buffer_load_dwordx4 v4, s[16:19], s31 offen offset:{1024*q} sc1 lds")
        k("s_add_u32 s31, s31, 32768")

    for c in range(2):
        k(f"s_add_u32 m0, s30, {32768*(c+1)}")
        dma()
    ones_pattern(k, ONE, 5, 6)
    for i in range(16):
        k(f"v_mov_b32 v{O+i}, 0")
    for i in range(4):
        k(f"v_mov_b32 v{L+i}, 0")
    for i in range(8):
        k(f"v_mov_b32 v{P+i}, 0")
    k(f"v_mov_b32 v129, v4\ns_waitcnt vmcnt(8) lgkmcnt(0)")
    stamp(k, tag + "_e2")
    k(f"""s_barrier
    s_cmp_ge_u32 s3, 4
    s_cbranch_scc1 {name}_qld
    """)
    for i in range(8):
        k(f"v_mov_b32 v{Q+i}, v{180+i}")
    k(f"""s_branch {name}_go
    {name}_qld:
    s_lshl_b32 s34, s37, 11
    s_add_u32 s34, s34, {QX_B}
    v_add_u32 v5, s34, v128
    ds_read_b128 {vr(Q,4)}, v5
    ds_read_b128 {vr(Q+4,4)}, v5 offset:1024
    {name}_go:""")
    stamp(k, tag + "_b0")
    K1, K2, V1, V2 = KF, KF + 4, VF, VF + 4
    k(f"""ds_read_b128 {vr(K1,4)}, v129
    ds_read_b128 {vr(K2,4)}, v129 offset:1024
    s_waitcnt lgkmcnt(0)
    """)
    k(M32(SA, K1, Q, "0"))
    k(M32(SA, K2, Q + 4))
    k(f"v_max3_f32 v5, v{SA}, v{SA+1}, v{SA+2}")
    for i in range(3, 15, 2):
        k(f"v_max3_f32 v5, v5, v{SA+i}, v{SA+i+1}")
    k(f"""v_max_f32 v5, v5, v{SA+15}
    v_mov_b32 v6, v5
    v_permlane32_swap_b32 v5, v6
    v_max_f32 v5, v5, v6
    """)
    for i in range(16):
        k(f"v_sub_f32 v{NEG+i}, 0, v5")
    for i in range(16):
        k(f"v_sub_f32 v{SA+i}, v{SA+i}, v5")
    if "at_prio" in sys.argv:
        k(f"s_cmp_lt_u32 s3, 4\ns_cbranch_scc1 {name}_pr\ns_setprio 1\n{name}_pr:")
    if rep == 0 and "warmA1" in sys.argv:
        k(f"s_cmp_lt_u32 s3, 4\ns_cbranch_scc1 {name}_nw")
        wqkv_warm(k, "s37")
        k(f"{name}_nw:")
    wpf_setup(k, P_WOB, 8, "s3")
    k(f"""s_mov_b32 s92, s24
    s_mov_b32 s93, s25
    s_mov_b32 s94, s26
    s_mov_b32 s95, 0x20000
    v_mov_b32 v130, v241
    s_add_u32 s96, s60, 131072
    s_mov_b32 s97, {12*131072}
    s_movk_i32 s98, 8192
    s_mov_b32 s99, 0x20000""")
    k(f"""ds_read_b128 {vr(V2,4)}, v129 offset:3072
    ds_read_b128 {vr(K1,4)}, v129 offset:4096
    ds_read_b128 {vr(K2,4)}, v129 offset:5120
    ds_read_b128 {vr(V1,4)}, v129 offset:2048
    s_mov_b32 s32, 0
    v_mov_b32 v5, v129
    v_add_u32 v6, 32768, v4
    s_mov_b32 s33, 0x18000
    {name}_loop:""")

    def ex(cur, a, b):
        for i in range(a, b):
            k(f"v_exp_f32 v{cur+i}, v{cur+i}")

    def cv(cur, a, b):
        for i in range(a, b):
            k(f"v_cvt_pk_bf16_f32 v{P+i}, v{cur+2*i}, v{cur+2*i+1}")

    def rd(dst, tile, part):
        if "at_nord" in sys.argv:
            return
        bb, oo = (5, tile * 4096) if tile < 8 else (6, (tile - 8) * 4096)
        k(f"ds_read_b128 {vr(dst,4)}, v{bb} offset:{oo+1024*part}")

    def slot():
        k("""s_mov_b32 m0, s96
        s_add_u32 s96, s96, s98
        buffer_load_dwordx4 v130, s[92:95], s97 offen sc1 lds
        s_add_u32 s97, s97, s99""")

    for j in range(8):
        cur, nxt = (SA, SB) if j % 2 == 0 else (SB, SA)
        k("s_waitcnt lgkmcnt(3)")
        k(M32(O, V2, P + 4))
        rd(V2, j, 3)
        ex(cur, 0, 4)
        k(M16(L, ONE, P + 4))
        ex(cur, 4, 6)
        if j == 6:
            k(f"""s_waitcnt vmcnt(4)
            s_barrier
            s_cmp_ge_u32 s32, 5
            s_cbranch_scc1 {name}_wm
            s_mov_b32 s92, s16
            s_mov_b32 s93, s17
            s_mov_b32 s94, s18
            v_mov_b32 v130, v4
            s_add_u32 s96, s30, s33
            s_mov_b32 s97, s31
            s_add_u32 s31, s31, 32768
            s_movk_i32 s98, 1024
            s_movk_i32 s99, 1024
            s_branch {name}_dd
            {name}_wm:
            s_mov_b32 s92, s24
            s_mov_b32 s93, s25
            s_mov_b32 s94, s26
            v_mov_b32 v130, v241
            s_sub_u32 s97, s32, 5
            s_lshl_b32 s96, s97, 15
            s_add_u32 s96, s96, s60
            s_lshl_b32 s97, s97, 19
            s_movk_i32 s98, 8192
            s_mov_b32 s99, 0x20000""")
            if rep == 0 and "warmF" in sys.argv:
                k(f"""s_cmp_lg_u32 s32, 5
                s_cbranch_scc1 {name}_dd
                s_cmp_lt_u32 s3, 4
                s_cbranch_scc1 {name}_dd""")
                warm(k, P_WQKV, "8x4", "s37")
            k(f"""{name}_dd:""")
        if j % 2 == 0:
            k(f"s_setprio {3 - ((j - 6) % 8) // 2}")
        k("s_waitcnt lgkmcnt(3)")
        k(M32(nxt, K1, Q, vr(NEG, 16)))
        rd(K1, j + 2, 0)
        ex(cur, 6, 8)
        cv(cur, 0, 4)
        k("s_waitcnt lgkmcnt(3)")
        k(M32(nxt, K2, Q + 4))
        rd(K2, j + 2, 1)
        ex(cur, 8, 12)
        if j in (6, 7, 0, 1):
            slot()
        k("s_waitcnt lgkmcnt(3)")
        k(M32(O, V1, P))
        rd(V1, j + 1, 2)
        ex(cur, 12, 16)
        k(M16(L, ONE, P))
        cv(cur, 4, 8)
        if j == 7:
            k(f"""
            v_mov_b32 v5, v6
            s_add_u32 s33, s33, 0x8000
            s_and_b32 s33, s33, 0x1ffff
            s_add_u32 s34, s33, 0x10000
            s_and_b32 s34, s34, 0x1ffff
            v_add_u32 v6, s34, v4
            s_add_u32 s32, s32, 1
            s_cmp_lt_u32 s32, 8
            s_cbranch_scc1 {name}_loop
            s_waitcnt lgkmcnt(0)
            s_barrier
            """)
    k(M32(O, V2, P + 4))
    k(M16(L, ONE, P + 4))
    slot()
    slot()
    wpf_issue(k, [14], wloc_b, 8)
    stamp(k, tag + "_loopend")
    k("s_setprio 0")
    k(f"v_max3_f32 v5, abs(v{O}), abs(v{O+1}), abs(v{O+2})")
    for i in range(3, 15, 2):
        k(f"v_max3_f32 v5, v5, abs(v{O+i}), abs(v{O+i+1})")
    k(f"""v_max3_f32 v5, v5, abs(v{O+15}), v{L}
    v_mov_b32 v6, 0
    """)
    for i in range(16):
        k(f"v_fma_f32 v6, v{O+i}, 0, v6")
    k(f"""v_fma_f32 v6, v{L}, 0, v6
    v_add_f32 v5, v5, v6
    s_mov_b32 s34, {f32(2.0**100 if 'forceslow' not in sys.argv else 0.0)}
    v_cmp_nlt_f32 vcc, v5, s34
    s_cbranch_vccz {name}_fin
    """)
    for i in range(16):
        k(f"v_mov_b32 v{O+i}, 0")
    for i in range(4):
        k(f"v_mov_b32 v{L+i}, 0")
    k(f"""v_mov_b32 v7, 0xff800000
    s_mov_b32 s31, {hex(WS_KV[rep])}
    s_mov_b32 s32, 0
    {name}_sloop:
    buffer_load_dwordx4 {vr(KF,4)}, v4, s[16:19], s31 offen sc1
    buffer_load_dwordx4 {vr(KF+4,4)}, v4, s[16:19], s31 offen offset:1024 sc1
    buffer_load_dwordx4 {vr(VF,4)}, v4, s[16:19], s31 offen offset:2048 sc1
    buffer_load_dwordx4 {vr(VF+4,4)}, v4, s[16:19], s31 offen offset:3072 sc1
    s_waitcnt vmcnt(0)
    """)
    k(M32(SA, KF, Q, "0"))
    k(M32(SA, KF + 4, Q + 4))
    k(f"v_max3_f32 v5, v{SA}, v{SA+1}, v{SA+2}")
    for i in range(3, 15, 2):
        k(f"v_max3_f32 v5, v5, v{SA+i}, v{SA+i+1}")
    k(f"""v_max_f32 v5, v5, v{SA+15}
    v_mov_b32 v6, v5
    v_permlane32_swap_b32 v5, v6
    v_max3_f32 v5, v5, v6, v7
    v_sub_f32 v6, v7, v5
    v_exp_f32 v6, v6
    v_mov_b32 v7, v5
    """)
    for i in range(16):
        k(f"v_sub_f32 v{SA+i}, v{SA+i}, v5")
    for i in range(16):
        k(f"v_exp_f32 v{SA+i}, v{SA+i}")
    for i in range(16):
        k(f"v_mul_f32 v{O+i}, v{O+i}, v6")
    for i in range(4):
        k(f"v_mul_f32 v{L+i}, v{L+i}, v6")
    for i in range(8):
        k(f"v_cvt_pk_bf16_f32 v{P+i}, v{SA+2*i}, v{SA+2*i+1}")
    k(M32(O, VF, P))
    k(M16(L, ONE, P))
    k(M32(O, VF + 4, P + 4))
    k(M16(L, ONE, P + 4))
    k(f"""s_add_u32 s31, s31, 4096
    s_add_u32 s32, s32, 1
    s_cmp_lt_u32 s32, 64
    s_cbranch_scc1 {name}_sloop
    {name}_fin:
    v_rcp_f32 v6, v{L}
    s_lshl_b32 s34, s39, 16
    s_lshl_b32 s35, s38, 11
    s_add_u32 s34, s34, s35
    s_add_u32 s34, s34, {hex(WS_O[oi])}
    v_mov_b32 v7, v6
    """)
    pk_mul(k, O, O, 6, 16)
    for i in range(8):
        k(f"v_cvt_pk_bf16_f32 v{P+i}, v{O+2*i}, v{O+2*i+1}")
    for t in range(2):
        k(f"buffer_store_dwordx4 {vr(P+4*t,4)}, v4, s[16:19], s34 offen offset:{1024*t} sc1")
    stamp(k, tag + "_st")
    k("s_waitcnt vmcnt(0)")
    stamp(k, tag + "_drain")
    signal(k, flag_off(rep, F_OB), "s4", 8, cnt, "s5" if STAGED else None)


def prep_jobs(k):
    def j_zero(q):
        k(f"""s_lshl_b32 s56, s2, 2
        s_add_u32 s56, s56, s30
        s_mul_i32 s56, s56, 48
        s_add_u32 s56, s56, {hex(WS_FL)}
        v_min_u32 v25, 11, v1
        v_lshlrev_b32 v25, 2, v25
        v_mov_b32 v26, 0
        buffer_store_dword v26, v25, s[16:19], s56 offen sc1""")
        q.add("jst")

    def j_wait(q):
        k(f"s_waitcnt vmcnt({q.cnt('jst')})")
        stamp(k, "job_drained")

    def j_sig(q):
        srd(k, 24, P_DBG, 256)
        k(f"""s_and_b32 s56, s2, 1
        s_lshl_b32 s56, s56, 7
        s_cmp_eq_u32 s3, 4
        s_cselect_b32 s56, s56, 0x7ffff000
        v_mov_b32 v4, 1
        v_mov_b32 v5, 0
        s_mov_b64 exec, 1
        buffer_atomic_add v4, v5, s[24:27], s56 offen sc1
        s_mov_b64 exec, -1""")
        q.add("jsig")

    def j_poll(q):
        L = k.label("ipoll")
        stamp(k, "job_prepoll")
        k(f"""s_cmp_lg_u32 s3, 4
        s_cbranch_scc1 {L}_ok
        v_and_b32 v4, 1, v1
        v_lshlrev_b32 v4, 7, v4
        s_mov_b32 s53, 0
        {L}:
        buffer_load_dword v5, v4, s[24:27], 0 offen sc1
        s_waitcnt vmcnt(0)
        v_cmp_gt_u32 vcc, 128, v5
        s_cbranch_vccz {L}_ok
        s_sleep 4
        s_add_u32 s53, s53, 1
        s_cmp_lt_u32 s53, 0x40000
        s_cbranch_scc1 {L}
        {L}_ok:""")
        stamp(k, "job_polled")

    return {0: j_zero, 3: j_wait, 5: j_sig, 9: j_poll}


def phase_qkva(k, tag, rep, lin, oi, wt):
    R, STG = 4, 40960
    LD, J0, J1, J2, NP = [k.label(tag + x) for x in ("_ld", "_j0", "_j1", "_j2", "_np")]
    tile_map(k, "4x8" if "qa48" in sys.argv else ("2x16" if "qa216" in sys.argv else "8x4"))
    first = lin == 0
    if first:
        srd(k, 8, P_X, S * D * 2)
    else:
        srd_off(k, 8, P_WS, WS_X[lin], S * D * 2)
    srd(k, 12, P_WQKV, D * 3 * D * 2)
    srd(k, 20, P_WPHI, H * DH * DH * 2)
    k(f"""
    s_bfe_u32 s48, s3, 0x10001
    s_and_b32 s49, s3, 1
    s_lshl_b32 s50, s5, 1
    s_add_u32 s50, s50, s49
    s_lshl_b32 s51, s48, 1
    s_lshr_b32 s31, s3, 2
    s_add_u32 s51, s51, s31
    """)
    STT, CS, WP = 176, 208, 220
    QXL = 51200
    KVL = 69632
    cnt_col, cnt_o, rdy_c = new_cnt(), new_cnt(), new_cnt()
    RSTD = [168, 170]
    LC = 172
    BOP = [240, 244]
    addr_setup = lines(f"""
    s_lshl_b32 s35, s51, 5
    v_add_u32 v238, s35, v2
    v_mul_u32_u24 v238, 200, v238
    v_lshl_add_u32 v238, v3, 3, v238
    s_mul_i32 s35, s49, 25600
    v_add_u32 v238, s35, v238
    s_and_b32 s35, s3, 3
    s_lshl_b32 s35, s35, 12
    s_add_u32 s35, s35, {QXL}
    v_lshlrev_b32 v239, 4, v1
    v_add_u32 v239, s35, v239
    """)
    wp_pack = [f"v_lshl_or_b32 v{WP+i}, v{WP+2*i+1}, 16, v{WP+2*i}" for i in range(8)]
    k(f"s_cmp_ge_u32 s3, 4\ns_cbranch_scc1 {LD}")
    LCL = QXL + 16384
    STL, CSL = 81920, 83968
    wphi_loads(k, WP, "s50")
    if first:
        k("s_lshl_b32 s35, s48, 6")
        x_addr(k, 12, "s35")
        k("s_lshl_b32 s35, s49, 6")
        w_tr_base(k, 16, "s35", 128, True, hs=3)
    else:
        k(f"""v_lshlrev_b32 v12, 4, v1
        s_lshl_b32 s35, s48, 13
        v_add_u32 v12, s35, v12
        s_lshl_b32 s35, s49, 6""")
        w_tr_base(k, 13, "s35", 128, True)
    ACC = 32
    for i in range(96):
        k(f"v_mov_b32 v{ACC+i}, 0")

    def acc(p, b):
        return ACC + 32 * p + 16 * b

    def mf(fr, t):
        return [M32(acc(p, b), fr + 8 + 4 * p, fr + 4 * b) for p in range(3) for b in range(2)]

    def st_l(kk=k):
        stats_loads(kk, STT, "s51", 10, WS_ST[lin])
        kk("s_add_u32 s31, s51, 1")
        stats_loads(kk, STT + 16, "s31", 10, WS_ST[lin])

    SL = 0
    tail = lines(f"""v_lshlrev_b32 v237, 2, v1
    s_lshl_b32 s35, s51, 9
    v_add_u32 v236, s35, v237
    ds_read_b32 v{RSTD[0]}, v236 offset:{SL}
    ds_read_b32 v{BOP[0]}, v236 offset:{SL+256}
    ds_read_b32 v{RSTD[1]}, v236 offset:{SL+512}
    ds_read_b32 v{BOP[1]}, v236 offset:{SL+768}""")
    if first:
        tail += ["s_mul_i32 s35, s49, 768", "v_add_u32 v236, s35, v237"]
        tail += [f"ds_read_b32 v{248+p}, v236 offset:{SL+2048+256*p}" for p in range(3)]
    tail += ["s_waitcnt vmcnt(0)"] + wp_pack + addr_setup + ["s_waitcnt lgkmcnt(0)"]
    for b in range(2):
        tail += [f"v_mov_b32 v{RSTD[b]+1}, v{RSTD[b]}"] + [f"v_mov_b32 v{BOP[b]+i}, v{BOP[b]}" for i in (1, 2, 3)]
    tail += [f"v_mul_f32 v{LC}, {f32(LOG2E)}, v{RSTD[0]}", f"v_mov_b32 v{LC+1}, v{LC}"]
    for p in range(3):
        tail += cs_build(CS + 4 * p, 248 + p)
    wl = [(1, 16384, 128), (1, 16384 + 8192, 128), (1, 16384 + 16384, 128)]
    if first:
        def touch2():
            if "notouch2" in sys.argv:
                return
            k(f"""s_lshl_b32 s34, s2, 2
            s_add_u32 s34, s34, s30
            s_lshl_b32 s37, s34, 11
            v_lshlrev_b32 v10, 4, v1""")
            for pw in (P_WOA, P_WQ, P_WOB):
                srd(k, 24, pw, D * D * 2)
                for i in range(2):
                    k(f"buffer_load_dwordx4 v[244:247], v10, s[24:27], s37 offen offset:{1024*i}")
            for pw in (P_WK, P_WV):
                srd(k, 24, pw, D * 32 * 2)
                k(f"buffer_load_dwordx4 v[244:247], v10, s[24:27], s37 offen")
                k(f"buffer_load_dwordx4 v[244:247], v10, s[24:27], s37 offen offset:1024")

        CA, SX, SQ, ON, TT = 176, 184, 188, 192, 196
        ones_pattern(k, ON, 4, 5)
        for i in range(176, 192):
            k(f"v_mov_b32 v{i}, 0")

        def mf0(fr, t):
            o = mf(fr, t)
            L1, L2, L3, L4 = [k.label("st") for _ in range(4)]

            def xs(b):
                r_ = M16(SX, ON, fr + 4 * b) + "\n"
                for i in range(4):
                    r_ += f"v_lshlrev_b32 v{TT+2*i}, 16, v{fr+4*b+i}\nv_and_b32 v{TT+2*i+1}, 0xffff0000, v{fr+4*b+i}\n"
                for i in range(8):
                    r_ += f"v_fmac_f32 v{SQ+(i&3)}, v{TT+i}, v{TT+i}\n"
                return r_
            o[4] += f"""
            s_cmp_eq_u32 s49, 0
            s_cbranch_scc0 {L1}
            {xs(0)}
            s_branch {L2}
            {L1}:
            {xs(1)}
            {L2}:"""
            o[5] += f"""
            s_cmp_eq_u32 s48, 0
            s_cbranch_scc0 {L3}
            {M16(CA, ON, fr + 8)}
            {M16(CA + 4, ON, fr + 12)}
            s_branch {L4}
            {L3}:
            {M16(CA, ON, fr + 16)}
            {L4}:"""
            return o

        def publish():
            k(f"""v_add_f32 v{SQ}, v{SQ}, v{SQ+1}
            v_add_f32 v{SQ+2}, v{SQ+2}, v{SQ+3}
            v_add_f32 v{SQ}, v{SQ}, v{SQ+2}
            v_mov_b32 v{SQ+1}, v{SQ}
            s_add_u32 s34, s4, s5
            s_and_b32 s34, s34, 15
            v_permlane32_swap_b32 v{SQ}, v{SQ+1}
            s_lshl_b32 s35, s4, 14
            s_lshl_b32 s36, s34, 10
            s_add_u32 s35, s35, s36
            s_lshl_b32 s36, s3, 8
            s_add_u32 s35, s35, s36
            s_add_u32 s35, s35, {hex(WS_ST[0])}
            v_add_f32 v{SQ}, v{SQ}, v{SQ+1}
            v_cndmask_b32 v{SQ}, v{SX}, v{SQ}, s[40:41]
            v_lshlrev_b32 v10, 2, v1
            buffer_store_dword v{SQ}, v10, s[16:19], s35 offen sc1
            s_mul_i32 s35, s50, 6144
            s_lshl_b32 s36, s34, 7
            s_add_u32 s35, s35, s36
            s_lshl_b32 s36, s48, 12
            s_add_u32 s35, s35, s36
            s_add_u32 s35, s35, {hex(WS_CSA)}
            s_cmp_eq_u32 s48, 0
            s_cselect_b32 s36, s35, 0x7ffff000
            v_lshlrev_b32 v10, 2, v2
            buffer_store_dword v{CA}, v10, s[16:19], s35 offen sc1
            buffer_store_dword v{CA+4}, v10, s[16:19], s36 offen offset:2048 sc1""")
            if "warmA0" in sys.argv:
                wqkv_warm(k, "s3")

        gemm_compute(k, R, STG, 1, [12, 13, 14, 15, 16], [0, 4096], wl, 128, mf, 20, 17, tag, nbuf=2, per=2,
                     filler=tail, e2=False, rm=True, pre_m=2,
                     at_iter=[(3, lambda: k("s_waitcnt vmcnt(0)"))], mf_first=mf0, after_first=publish)
    else:
        gemm_compute(k, R, STG, 1, [12, 13], [0, 4096], wl, 128, mf, 20, 20, tag, nbuf=2, per=2,
                     filler=tail, e2=False, pre_m=2)
    for p, b in ((1, 1), (0, 1), (1, 0), (2, 0), (2, 1), (0, 0)):
        k(M32(acc(p, b), CS + 4 * p, BOP[b]))
    k(f"""v_lshlrev_b32 v4, 3, v1
    v_mov_b32 v6, 0
    v_mov_b32 v7, 0
    ds_write_b64 v4, v[6:7] offset:{KVL+8192-65536+65536 if KVL+8192 < 65536 else 0}""" if False else "")
    k(f"""v_lshlrev_b32 v4, 3, v1
    v_add_u32 v4, {KVL+8192}, v4
    v_mov_b32 v6, 0
    v_mov_b32 v7, 0
    ds_write_b64 v4, v[6:7]""")
    zero_cnt(k, cnt_col)
    zero_cnt(k, cnt_o)
    zero_cnt(k, rdy_c)
    for p, d_ in ((1, 128), (0, 136)):
        for i in range(8):
            k(f"v_cvt_pk_bf16_f32 v{d_+i}, v{acc(p,1)+2*i}, v{acc(p,1)+2*i+1}")
        for t in range(2):
            k(f"ds_write_b128 v239, {vr(d_+4*t,4)} offset:{(d_-128)*256+1024*t}")
    for i in range(8):
        k(f"v_cvt_pk_bf16_f32 v{144+i}, v{acc(1,0)+2*i}, v{acc(1,0)+2*i+1}")
    k("s_waitcnt lgkmcnt(0)\ns_barrier")
    stamp(k, tag + "_ba")
    k(M32(acc(1, 0), WP, 144, "0"))
    k(M32(acc(1, 0), WP + 4, 148))
    for b in range(2):
        pk_mul(k, acc(2, b), acc(2, b), RSTD[b], 16)
        for i in range(8):
            k(f"v_cvt_pk_bf16_f32 v{128+8*b+i}, v{acc(2,b)+2*i}, v{acc(2,b)+2*i+1}")
        for i in range(4):
            k(f"ds_write_b64 v238, {vr(128+8*b+2*i,2)} offset:{6400*b+128+16*i}")
    for i in range(8):
        k(f"v_cvt_pk_bf16_f32 v{160+i}, v{acc(0,0)+2*i}, v{acc(0,0)+2*i+1}")
    KRAW = acc(1, 0)
    k(f"s_branch {J0}\n{LD}:")

    def l2pf(q):
        if "l2pf" not in sys.argv:
            return
        if not first:
            stage_poll(k, 15)
        if first:
            k(f"""s_and_b32 s56, s5, 3
            s_lshl_b32 s56, s56, 2
            s_add_u32 s56, s56, s30
            s_lshl_b32 s56, s56, 14
            s_lshl_b32 s57, s4, 18
            s_add_u32 s56, s56, s57""")
        else:
            k(f"""s_and_b32 s56, s5, 3
            s_lshl_b32 s56, s56, 2
            s_add_u32 s56, s56, s30
            s_lshl_b32 s56, s56, 14
            s_lshl_b32 s57, s4, 18
            s_add_u32 s56, s56, s57""")
        k(f"""v_lshlrev_b32 v240, 7, v1
        buffer_load_dword v244, v240, s[8:11], s56 offen
        s_add_u32 s56, s56, 8192
        buffer_load_dword v244, v240, s[8:11], s56 offen
        s_and_b32 s56, s4, 7
        s_lshl_b32 s56, s56, 2
        s_add_u32 s56, s56, s30
        s_mul_i32 s56, s56, {32*6144}
        s_lshl_b32 s57, s5, 7
        s_add_u32 s56, s56, s57
        v_and_b32 v240, 31, v1
        v_mul_u32_u24 v240, 6144, v240
        v_lshl_add_u32 v240, v3, 11, v240
        buffer_load_dword v244, v240, s[12:15], s56 offen
        s_add_u32 s56, s56, 4096
        buffer_load_dword v244, v240, s[12:15], s56 offen""")
        q.add("pf", 4)

    def ls_load(q):
        if not first:
            stage_poll(k, 15)
        stats_loads(k, STT, "s30", 10, WS_ST[lin], q)
        if first:
            k(f"""v_lshlrev_b32 v9, 2, v2
            v_lshl_add_u32 v9, v3, 10, v9
            s_mul_i32 s54, s50, 6144
            s_lshl_b32 s55, s48, 12
            s_add_u32 s54, s54, s55
            s_add_u32 s54, s54, {hex(WS_CSA)}""")
            for p in range(2):
                for i in range(8):
                    k(f"buffer_load_dword v{32+8*p+i}, v9, s[16:19], s54 offen offset:{2048*p+128*i} sc1")
                    q.add("stats")

    def ls_work(q):
        k(f"s_setprio 2\ns_waitcnt vmcnt({q.cnt('stats')})")
        for l_ in ln_stats(STT, 64, 68):
            k(l_)
        k(f"""v_lshlrev_b32 v237, 2, v1
        s_lshl_b32 s54, s30, 9
        v_add_u32 v236, s54, v237
        ds_write_b32 v236, v64 offset:{SL}
        ds_write_b32 v236, v68 offset:{SL+256}""")
        if first:
            SK = k.label("lsk")
            k(f"""s_mul_i32 s54, s49, 768
            s_lshl_b32 s55, s48, 9
            s_add_u32 s54, s54, s55
            v_add_u32 v236, s54, v237""")
            for p in range(2):
                c_ = 32 + 8 * p
                if p == 1:
                    k(f"s_cmp_lg_u32 s48, 0\ns_cbranch_scc1 {SK}")
                for st_ in (4, 2, 1):
                    for i in range(st_):
                        k(f"v_add_f32 v{c_+i}, v{c_+i}, v{c_+i+st_}")
                k(f"v_mov_b32 v{c_+1}, v{c_}\nv_permlane32_swap_b32 v{c_}, v{c_+1}\nv_add_f32 v{c_}, v{c_}, v{c_+1}")
                for l_ in hilo(c_, c_ + 2, c_ + 1):
                    k(l_)
                k(f"ds_write_b32 v236, v{c_+2} offset:{SL+2048+256*p}")
            k(f"{SK}:")
        k("s_waitcnt lgkmcnt(0)\ns_setprio 0")

    if first:
        mid_ = prep_jobs(k)
        mid_.update({10: ls_load, 13: ls_work, 14: lambda q: (touch2(), q.add('t', 10))})
        gemm_loader(k, 3, 6144, R, STG, False, False, tag, None, pre=lambda: wphi_loads(k, WP, "s50"),
                    mid=mid_, rm=True)
    else:
        gemm_loader(k, 3, 6144, R, STG, False, False, tag, wt, pre=lambda: wphi_loads(k, WP, "s50"), staged=STAGED,
                    mid={9: ls_load, 13: ls_work})
    for l_ in addr_setup + wp_pack:
        k(l_)
    k(f"""s_lshl_b32 s35, s51, 9
    v_add_u32 v236, s35, v237
    ds_read_b32 v{LC}, v236 offset:{SL}
    s_waitcnt lgkmcnt(0)
    v_mul_f32 v{LC}, {f32(LOG2E)}, v{LC}
    v_mov_b32 v{LC+1}, v{LC}""")
    wpf_setup(k, P_WOA, 4, "s30")
    k("s_barrier\ns_barrier")
    k(f"""ds_read_b128 {vr(144,4)}, v239
    ds_read_b128 {vr(148,4)}, v239 offset:1024
    ds_read_b128 {vr(160,4)}, v239 offset:2048
    ds_read_b128 {vr(164,4)}, v239 offset:3072
    s_waitcnt lgkmcnt(2)""")
    k(M32(KRAW, WP, 144, "0"))
    k(M32(KRAW, WP + 4, 148))
    k(f"{J0}:")
    feat_map(k, KRAW, LC, 176, 144)
    for s_ in range(2):
        for i in range(4):
            k(f"ds_write_b64 v238, {vr(144+8*s_+2*i,2)} offset:{64*s_+16*i}")
    QRAW = 96
    k("s_waitcnt lgkmcnt(8)")
    k(M32(QRAW, WP, 160, "0"))
    k(M32(QRAW, WP + 4, 164))
    k(f"""
    v_and_b32 v4, 15, v1
    v_lshrrev_b32 v5, 2, v4
    v_lshl_add_u32 v5, v5, 3, v3
    v_mul_u32_u24 v5, 200, v5
    v_and_b32 v6, 3, v4
    v_lshl_add_u32 v5, v6, 3, v5
    v_bfe_u32 v7, v1, 4, 1
    v_lshl_add_u32 v5, v7, 5, v5
    s_mul_i32 s35, s49, 25600
    v_add_u32 v14, s35, v5
    s_lshl_b32 s35, s48, 6
    v_add_u32 v15, s35, v14
    """)
    ones_pattern(k, 24, 28, 29)
    k(f"""
    s_lshl_b32 s36, s50, 16
    s_lshl_b32 s35, s4, 12
    s_add_u32 s36, s36, s35
    s_lshl_b32 s35, s48, 11
    s_add_u32 s36, s36, s35
    s_add_u32 s36, s36, {hex(WS_KVP[rep])}
    s_lshl_b32 s39, s50, 12
    s_lshl_b32 s35, s4, 8
    s_add_u32 s39, s39, s35
    s_lshl_b32 s35, s48, 7
    s_add_u32 s39, s39, s35
    s_add_u32 s39, s39, {hex(WS_ZP[rep])}
    v_lshlrev_b32 v11, 2, v2
    v_lshlrev_b32 v10, 4, v1
    s_waitcnt lgkmcnt(0)
    s_barrier
    """)
    stamp(k, tag + "_bb")
    PHQ = 144
    k(f"s_cmp_ge_u32 s3, 4\ns_cbranch_scc1 {J1}")
    KVA, ZA = 32, 48
    FR = [176 + 8 * i for i in range(4)]

    def trr(s_):
        blk, t = s_ >> 1, s_ & 1
        f = FR[s_ % 4]
        for rd in range(2):
            off = (32 * blk + 4 * t + 2 * rd) * 200
            k(f"ds_read_b64_tr_b16 {vr(f+2*rd,2)}, v15 offset:{off}")
            k(f"ds_read_b64_tr_b16 {vr(f+4+2*rd,2)}, v14 offset:{off+128}")

    for s_ in range(3):
        trr(s_)
    for s_ in range(8):
        rem = min(7, s_ + 2) - s_
        k(f"s_waitcnt lgkmcnt({4*rem})")
        f = FR[s_ % 4]
        k(M32(KVA, f, f + 4, "0" if s_ == 0 else None))
        k(M16(ZA, 24, f, "0" if s_ == 0 else None))
        if s_ + 3 < 8:
            trr(s_ + 3)
    k(f"buffer_store_dword v{ZA}, v11, s[16:19], s39 offen sc1")
    for i in range(8):
        k(f"v_cvt_pk_bf16_f32 v{56+i}, v{KVA+2*i}, v{KVA+2*i+1}")
    for q in range(2):
        k(f"buffer_store_dwordx4 {vr(56+4*q,4)}, v10, s[16:19], s36 offen offset:{1024*q} sc1")
    stamp(k, tag + "_kvst")
    feat_map(k, QRAW, LC, 176, PHQ)
    k("s_waitcnt vmcnt(0)")
    stamp(k, tag + "_kvdrain")
    signal(k, flag_off(rep, F_COL), "s5", 4, cnt_col, "s4")
    k(f"s_branch {NP}\n{J1}:")
    wpf_issue(k, range(9), wloc_a, 4)
    feat_map(k, QRAW, LC, 176, PHQ)
    rdy_poller(k, (flag_off(rep, F_COL), "s5"), rdy_c)
    k(f"{NP}:")
    k(f"""
    s_lshr_b32 s36, s3, 2
    s_and_b32 s37, s3, 3
    s_lshl_b32 s38, s5, 1
    s_add_u32 s38, s38, s36
    v_lshlrev_b32 v11, 2, v1
    s_lshl_b32 s34, s38, 16
    s_lshl_b32 s35, s37, 10
    s_add_u32 s34, s34, s35
    s_add_u32 s34, s34, {hex(WS_KVP[rep])}
    s_lshl_b32 s39, s38, 12
    s_add_u32 s39, s39, s35
    s_add_u32 s39, s39, {hex(WS_ZP[rep])}
    v_mov_b32 v4, {rdy_c}
    s_mov_b32 s63, 0
    """)
    for rt in range(16):
        L = k.label("cp")
        k(f"""s_cmp_gt_u32 s63, {rt}
        s_cbranch_scc1 {L}_ok
        {L}:
        ds_read_b32 v5, v4
        s_waitcnt lgkmcnt(0)
        v_readfirstlane_b32 s63, v5
        s_cmp_gt_u32 s63, {rt}
        s_cbranch_scc0 {L}
        {L}_ok:""")
        if rt == 15:
            stamp(k, tag + "_e2a")
            for q in range(4):
                k(f"buffer_load_dword v{24+q}, v11, s[16:19], s39 offen offset:{256*q} sc1")
        k(f"buffer_load_dwordx4 {vr(48+4*rt,4)}, v10, s[16:19], s34 offen sc1")
        k("s_add_u32 s34, s34, 4096")
    for i in range(8):
        k(f"v_mov_b32 v{32+i}, 0")
    k(f"""s_mov_b32 s52, 0x3f80
    s_mov_b32 s53, 0x3f800000
    s_lshl_b32 s35, s36, 8
    s_add_u32 s35, s35, {KVL+8192}
    v_add_u32 v13, s35, v11
    s_lshl_b32 s35, s3, 10
    s_add_u32 s35, s35, {KVL}
    v_add_u32 v12, s35, v10""")
    for rt in range(15):
        k(f"s_waitcnt vmcnt({15-rt+4})")
        for i in range(4):
            k(f"v_dot2_f32_bf16 v{32+2*i}, v{48+4*rt+i}, s52, v{32+2*i}")
            k(f"v_dot2_f32_bf16 v{33+2*i}, v{48+4*rt+i}, s53, v{33+2*i}")
    k(f"""s_waitcnt vmcnt(1)
    v_add_f32 v24, v24, v25
    v_add_f32 v26, v26, v27
    v_add_f32 v24, v24, v26
    ds_add_f32 v13, v24""")
    for rt in range(15, 16):
        k(f"s_waitcnt vmcnt({15-rt})")
        for i in range(4):
            k(f"v_dot2_f32_bf16 v{32+2*i}, v{48+4*rt+i}, s52, v{32+2*i}")
            k(f"v_dot2_f32_bf16 v{33+2*i}, v{48+4*rt+i}, s53, v{33+2*i}")
    for i in range(4):
        k(f"v_cvt_pk_bf16_f32 v{40+i}, v{32+2*i}, v{33+2*i}")
    KV, ZF, ZT = 32, 48, 64
    k(f"""
    ds_write_b128 v12, v[40:43]
    s_lshl_b32 s35, s49, 12
    s_add_u32 s35, s35, {KVL}
    v_add_u32 v12, s35, v10
    s_lshl_b32 s35, s49, 8
    s_add_u32 s35, s35, {KVL+8192}
    v_lshlrev_b32 v13, 4, v3
    v_add_u32 v13, s35, v13
    s_lshl_b32 s36, s4, 2
    s_add_u32 s36, s36, s51
    s_lshl_b32 s36, s36, 16
    s_lshl_b32 s35, s50, 11
    s_add_u32 s36, s36, s35
    s_add_u32 s36, s36, {hex(WS_O[oi])}
    s_waitcnt lgkmcnt(0)
    s_barrier
    """)
    stamp(k, tag + "_bc")
    for s_ in range(4):
        k(f"ds_read_b128 {vr(KV+4*s_,4)}, v12 offset:{1024*s_}")
    for se in range(8):
        k(f"ds_read_b128 {vr(ZT+4*se,4)}, v13 offset:{32*se}")
    NUM, DEN = 176, 96
    k("s_waitcnt lgkmcnt(8)")
    for s_ in range(4):
        k(M32(NUM, KV + 4 * s_, PHQ + 4 * s_, "0" if s_ == 0 else None))
    k("s_waitcnt lgkmcnt(0)\ns_barrier")
    for i in range(16):
        k(f"v_cvt_pk_bf16_f32 v{ZF+i}, v{ZT+2*i}, v{ZT+2*i+1}")
    for s_ in range(4):
        k(M32(DEN, ZF + 4 * s_, PHQ + 4 * s_, "0" if s_ == 0 else None))
    k(f"v_add_f32 v{DEN}, {f32(1e-6)}, v{DEN}\nv_rcp_f32 v{DEN}, v{DEN}\nv_mov_b32 v{DEN+1}, v{DEN}")
    pk_mul(k, NUM, NUM, DEN, 16)
    for i in range(8):
        k(f"v_cvt_pk_bf16_f32 v{112+i}, v{NUM+2*i}, v{NUM+2*i+1}")
    for t in range(2):
        k(f"buffer_store_dwordx4 {vr(112+4*t,4)}, v10, s[16:19], s36 offen offset:{1024*t} sc1")
    stamp(k, tag + "_st")
    k("s_waitcnt vmcnt(0)")
    stamp(k, tag + "_drain")
    signal(k, flag_off(rep, F_OA), "s4", 8, cnt_o, "s5" if STAGED else None)


def gen_mega():
    k = Kern("interleave_layers__linear_kernel_hedgehog__grouped_kv_mqa__prompt_kernel")
    k(f"""
    s_cmp_ge_u32 s2, 256
    s_cbranch_scc1 mega_exit
    s_load_dwordx16 s[64:79], s[0:1], 0
    s_load_dwordx8 s[80:87], s[0:1], 64
    v_lshrrev_b32 v1, 6, v0
    s_nop 0
    v_readfirstlane_b32 s3, v1
    v_and_b32 v1, 63, v0
    v_and_b32 v2, 31, v1
    v_lshrrev_b32 v3, 5, v1
    v_cmp_eq_u32 s[40:41], 1, v3
    s_waitcnt lgkmcnt(0)
    """)
    if PROF:
        k("v_mov_b32 v255, 0\nv_mov_b32 v254, 0\ns_memrealtime s[88:89]\ns_waitcnt lgkmcnt(0)\nv_writelane_b32 v255, s88, 0")
        stamp(k, "start")
    srd(k, 16, P_WS, WS_END)
    for rep in range(2):
        lin = 2 * rep
        phase_qkva(k, f"qa{rep}", rep, lin, 2 * rep, (flag_off(0, F_XB), "s4", 16) if rep else None)
        phase_wo(k, f"wa{rep}", P_WOA, lin, 2 * rep, (flag_off(rep, F_OA), "s4", 16), flag_off(rep, F_XA), False)
        phase_qkvb(k, f"qb{rep}", rep, lin + 1, (flag_off(rep, F_XA), "s4", 16))
        phase_attn(k, f"at{rep}", rep, 2 * rep + 1)
        phase_wo(k, f"wb{rep}", P_WOB, lin + 1, 2 * rep + 1, (flag_off(rep, F_OB), "s4", 16), flag_off(rep, F_XB),
                 rep == 1)
    stamp(k, "end")
    if PROF:
        k(f"""s_memrealtime s[88:89]
        s_waitcnt lgkmcnt(0)
        v_writelane_b32 v255, s88, 1
        s_add_u32 s84, s{P_WS}, {hex(WS_PROF)}
        s_addc_u32 s85, s{P_WS+1}, 0
        s_and_b32 s85, s85, 0xffff
        s_mov_b32 s86, 0x100000
        s_mov_b32 s87, 0x20000
        s_lshl_b32 s88, s2, 3
        s_add_u32 s88, s88, s3
        s_lshl_b32 s88, s88, 9
        v_lshlrev_b32 v0, 2, v1
        buffer_store_dword v255, v0, s[84:87], s88 offen
        buffer_store_dword v254, v0, s[84:87], s88 offen offset:256""")
    k("mega_exit:\ns_endpgm")
    return k, (256, 512, 163840)


def main():
    ks = [gen_mega()]
    hdr = open("interleave_layers__linear_kernel_hedgehog__grouped_kv_mqa__prompt.s.ref").read()
    hdr = "".join(l + "\n" for l in hdr.split("\n") if l.startswith(";") and "@launch" not in l and "Override" not in l and "grid=ceil" not in l)
    out = hdr
    for kern, (g, b, l) in ks:
        if "list" in sys.argv:
            out += f"; @launch kernel={kern.name} grid=({g},1,1) block=({b},1,1) lds={l}\n"
        else:
            out += f"; @launch grid=({g},1,1) block=({b},1,1) lds={l}\n"
    if PROF:
        out += "; STAMPS " + " ".join(f"{n}={i}" for n, i in STAMPS.items()) + "\n"
    out += '.amdgcn_target "amdgcn-amd-amdhsa--gfx950"\n.text\n'
    for kern, geo in ks:
        out += kern.text()
    out += '.section .rodata,"a"\n'
    for kern, geo in ks:
        out += kern.desc()
    sys.stdout.write(out)


if __name__ == "__main__":
    main()
```

```python
import sys, struct, math
from asmlib import Kern, vr, sr

S, D, H, DH = 2048, 1024, 32, 32
KA_X, KA_WQKV, KA_WPHI, KA_WOA, KA_BX, KA_WQ, KA_WK, KA_WV, KA_WOB, KA_OUT, KA_DBG, KA_WS = [8 * i for i in range(12)]
P_X, P_WQKV, P_WPHI, P_WOA, P_BX, P_WQ, P_WK, P_WV, P_WOB, P_OUT, P_DBG, P_WS = [64 + 2 * i for i in range(12)]
MB = 1 << 20
WS_X = [None, 0 * MB, 4 * MB, 8 * MB]
WS_O = [12 * MB, 16 * MB, 20 * MB, 24 * MB]
WS_KVP = [28 * MB, 32 * MB]
WS_KV = [36 * MB, 36 * MB + 0x40000]
WS_ZP = [37 * MB, 37 * MB + 0x20000]
WS_ST = [38 * MB + i * 0x40000 for i in range(4)]
WS_CSA = 39 * MB
WS_CSB = 39 * MB + 0x40000
WS_FL = 40 * MB
WS_END = 48 * MB
WS_PROF = 64 * MB
LOG2E = 1.4426950408889634
ONES2 = "0x3f803f80"
PROF = "prof" in sys.argv
X_NOLOAD = "noload" in sys.argv
X_NOMFMA = "nomfma" in sys.argv
NST = 16
STAGED = "nostaged" not in sys.argv
F_COL, F_OA, F_XA, F_KVB, F_OB, F_XB = range(6)


def flag_off(rep, grp):
    return WS_FL + (rep * 6 + grp) * 4096


def f32(x):
    return "0x%08x" % struct.unpack("<I", struct.pack("<f", x))[0]


def srd(k, d, ptr, nbytes):
    k(f"""s_mov_b32 s{d}, s{ptr}
    s_and_b32 s{d+1}, s{ptr+1}, 0xffff
    s_mov_b32 s{d+2}, {hex(nbytes)}
    s_mov_b32 s{d+3}, 0x20000""")


def srd_off(k, d, ptr, off, nbytes):
    k(f"""s_add_u32 s{d}, s{ptr}, {hex(off)}
    s_addc_u32 s{d+1}, s{ptr+1}, 0
    s_and_b32 s{d+1}, s{d+1}, 0xffff
    s_mov_b32 s{d+2}, {hex(nbytes)}
    s_mov_b32 s{d+3}, 0x20000""")


STAMPS = {}


def stamp(k, name):
    if not PROF:
        return
    idx = STAMPS.setdefault(name, len(STAMPS) + 2)
    assert idx < 128
    ins = "s_memtime" if "cyc" in sys.argv else "s_memrealtime"
    k(f"{ins} s[88:89]\ns_waitcnt lgkmcnt(0)\nv_writelane_b32 v{255 - idx // 64}, s88, {idx % 64}")


def M32(d, a, b, c=None):
    c = vr(d, 16) if c is None else c
    return f"v_mfma_f32_32x32x16_bf16 {vr(d,16)}, {vr(a,4)}, {vr(b,4)}, {c}"


def M16(d, a, b, c=None):
    c = vr(d, 4) if c is None else c
    return f"v_mfma_f32_16x16x32_bf16 {vr(d,4)}, {vr(a,4)}, {vr(b,4)}, {c}"


def gen_prep():
    k = Kern("prep_kernel")
    NWG = 258 + 64
    k(f"""
    s_cmp_ge_u32 s2, {NWG}
    s_cbranch_scc1 prep_end
    s_load_dwordx4 s[4:7], s[0:1], {KA_X}
    s_load_dwordx4 s[8:11], s[0:1], {KA_WQ}
    s_load_dwordx2 s[12:13], s[0:1], {KA_WV}
    s_load_dwordx2 s[14:15], s[0:1], {KA_WS}
    s_load_dwordx2 s[36:37], s[0:1], {KA_WOA}
    s_load_dwordx2 s[38:39], s[0:1], {KA_WOB}
    v_lshrrev_b32 v1, 6, v0
    v_and_b32 v2, 63, v0
    v_readfirstlane_b32 s3, v1
    s_waitcnt lgkmcnt(0)
    """)
    srd(k, 16, 14, WS_END)
    k("""s_cmp_ge_u32 s2, 258
    s_cbranch_scc1 prep_touch
    s_cmp_ge_u32 s2, 128
    s_cbranch_scc1 prep_cols""")
    srd(k, 20, 4, S * D * 2)
    k(f"""
    s_lshl_b32 s24, s2, 4
    s_lshl_b32 s25, s3, 2
    s_add_u32 s24, s24, s25
    s_lshl_b32 s25, s24, 11
    v_lshlrev_b32 v3, 4, v2
    s_mov_b32 s26, {ONES2}
    """)
    for i in range(4):
        k(f"buffer_load_dwordx4 {vr(8+8*i,4)}, v3, s[20:23], s25 offen offset:0")
        k(f"buffer_load_dwordx4 {vr(12+8*i,4)}, v3, s[20:23], s25 offen offset:1024")
        k(f"s_add_u32 s25, s25, 2048")
    k(f"""
    s_cmp_ge_u32 s2, 12
    s_cbranch_scc1 prep_nz
    v_mov_b32 v44, 0
    v_mov_b32 v45, 0
    v_mov_b32 v46, 0
    v_mov_b32 v47, 0
    v_lshlrev_b32 v4, 4, v0
    s_lshl_b32 s25, s2, 12
    s_add_u32 s25, s25, {hex(WS_FL)}
    buffer_store_dwordx4 v[44:47], v4, s[16:19], s25 offen
    prep_nz:
    v_and_b32 v4, 1, v2
    v_lshlrev_b32 v4, 7, v4
    v_lshrrev_b32 v5, 2, v2
    v_lshl_add_u32 v4, v5, 10, v4
    s_lshr_b32 s25, s24, 7
    s_lshl_b32 s25, s25, 14
    s_bfe_u32 s27, s24, 0x20005
    s_lshl_b32 s27, s27, 8
    s_add_u32 s25, s25, s27
    s_and_b32 s27, s24, 31
    s_lshl_b32 s28, s27, 2
    s_add_u32 s25, s25, s28
    s_add_u32 s25, s25, {hex(WS_ST[0])}
    v_lshrrev_b32 v6, 1, v2
    v_lshlrev_b32 v6, 10, v6
    v_and_b32 v5, 1, v2
    v_lshl_add_u32 v6, v5, 9, v6
    s_lshr_b32 s29, s24, 5
    s_lshl_b32 s29, s29, 16
    s_lshl_b32 s28, s27, 4
    s_add_u32 s29, s29, s28
    s_add_u32 s29, s29, {hex(WS_X[0])}
    s_add_u32 s30, s29, 32768
    v_cmp_eq_u32 vcc, 1, v5
    s_waitcnt vmcnt(0)
    """)
    for i in range(4):
        k("v_mov_b32 v40, 0\nv_mov_b32 v41, 0")
        for j in range(8):
            k(f"v_dot2_f32_bf16 v40, v{8+8*i+j}, s26, v40")
            k(f"v_dot2_f32_bf16 v41, v{8+8*i+j}, v{8+8*i+j}, v41")
        k("""v_cndmask_b32 v42, v40, v41, vcc
        v_cndmask_b32 v43, v41, v40, vcc
        v_add_f32_dpp v42, v43, v42 quad_perm:[1,0,3,2] row_mask:0xf bank_mask:0xf
        v_add_f32_dpp v48, v42, v42 quad_perm:[2,3,0,1] row_mask:0xf bank_mask:0xf
        """)
        k(f"buffer_store_dword v48, v4, s[16:19], s25 offen offset:{4*i}")
        for hf in range(2):
            a_ = 8 + 8 * i + 4 * hf
            o_ = 52 + 8 * i + 4 * hf
            k(f"""v_cndmask_b32 v50, v{a_+2}, v{a_}, vcc
            v_cndmask_b32 v51, v{a_+3}, v{a_+1}, vcc
            v_mov_b32_dpp v50, v50 quad_perm:[1,0,3,2] row_mask:0xf bank_mask:0xf
            v_mov_b32_dpp v51, v51 quad_perm:[1,0,3,2] row_mask:0xf bank_mask:0xf
            v_cndmask_b32 v{o_}, v{a_}, v50, vcc
            v_cndmask_b32 v{o_+1}, v{a_+1}, v51, vcc
            v_cndmask_b32 v{o_+2}, v50, v{a_+2}, vcc
            v_cndmask_b32 v{o_+3}, v51, v{a_+3}, vcc
            buffer_store_dwordx4 {vr(o_,4)}, v6, s[16:19], s{29+hf} offen offset:{16*i}""")
    k("s_endpgm")
    k(f"""prep_touch:
    s_sub_u32 s24, s2, 258
    s_cmp_ge_u32 s24, 32
    s_cselect_b32 s32, s38, s36
    s_cselect_b32 s33, s39, s37
    s_and_b32 s24, s24, 31
    s_lshl_b32 s24, s24, 16
    v_lshlrev_b32 v3, 4, v0
    """)
    srd(k, 20, 32, D * D * 2)
    for i in range(16):
        k(f"buffer_load_dwordx4 {vr(16+4*i,4)}, v3, s[20:23], s24 offen")
        k("s_add_u32 s24, s24, 4096")
    k("s_waitcnt vmcnt(0)\ns_endpgm")
    k("prep_cols:")
    k(f"""
    s_sub_u32 s24, s2, 128
    s_and_b32 s25, s24, 3
    s_lshr_b32 s26, s24, 2
    s_cmp_ge_u32 s2, 256
    s_cbranch_scc1 prep_small
    s_cmp_ge_u32 s2, 224
    s_cbranch_scc1 prep_wq
    """)
    srd(k, 20, 6, D * 3 * D * 2)
    k(f"""s_mov_b32 s27, 6144
    s_lshl_b32 s28, s26, 11
    s_add_u32 s28, s28, {hex(WS_CSA)}
    s_branch prep_big
    prep_wq:""")
    srd(k, 20, 8, D * D * 2)
    k(f"""s_mov_b32 s27, 2048
    s_sub_u32 s26, s26, 24
    s_lshl_b32 s28, s26, 11
    s_add_u32 s28, s28, {hex(WS_CSB)}
    prep_big:
    s_lshl_b32 s29, s25, 8
    s_lshl_b32 s30, s3, 6
    s_add_u32 s29, s29, s30
    s_mul_i32 s29, s29, s27
    s_lshl_b32 s30, s26, 8
    s_add_u32 s29, s29, s30
    s_lshl_b32 s30, s25, 2
    s_add_u32 s28, s28, s30
    v_lshlrev_b32 v6, 4, v0
    s_mov_b32 s31, 0
    s_branch prep_sum
    prep_small:
    s_cmp_eq_u32 s2, 257
    s_cselect_b32 s32, s12, s10
    s_cselect_b32 s33, s13, s11
    s_cselect_b32 s28, 512, 0
    s_add_u32 s28, s28, {hex(WS_CSB + 1024*16)}
    """)
    srd(k, 20, 32, D * 32 * 2)
    k(f"""s_mov_b32 s27, 256
    s_lshl_b32 s29, s3, 14
    v_and_b32 v6, 31, v0
    v_lshlrev_b32 v6, 4, v6
    v_lshrrev_b32 v7, 5, v0
    v_lshl_add_u32 v6, v7, 2, v6
    s_mov_b32 s31, 1
    prep_sum:
    v_lshrrev_b32 v3, 4, v2
    v_mul_lo_u32 v3, v3, s27
    v_and_b32 v4, 15, v2
    v_lshl_add_u32 v3, v4, 4, v3
    s_lshl_b32 s30, s27, 2
    """)
    for i in range(16):
        k(f"buffer_load_dwordx4 {vr(16+4*i,4)}, v3, s[20:23], s29 offen")
        k("s_add_u32 s29, s29, s30")
    k("s_mov_b32 s34, 0x3f80\ns_mov_b32 s35, 0x3f800000")
    for j in range(8):
        k(f"v_mov_b32 v{8+j}, 0")
    for i in range(16):
        k(f"s_waitcnt vmcnt({15-i})")
        for j in range(4):
            k(f"v_dot2_f32_bf16 v{8+2*j}, v{16+4*i+j}, s34, v{8+2*j}")
            k(f"v_dot2_f32_bf16 v{9+2*j}, v{16+4*i+j}, s35, v{9+2*j}")
    k(f"""
    v_lshlrev_b32 v3, 5, v0
    ds_write_b128 v3, v[8:11]
    ds_write_b128 v3, v[12:15] offset:16
    s_waitcnt lgkmcnt(0)
    s_barrier
    s_cmp_ge_u32 s3, 2
    s_cbranch_scc1 prep_end
    s_cmp_eq_u32 s31, 1
    s_cbranch_scc1 prep_red_small
    v_lshlrev_b32 v3, 2, v0
    """)
    for g in range(16):
        k(f"ds_read_b32 v{16+g}, v3 offset:{g*512}")
    k(f"""s_branch prep_red
    prep_red_small:
    v_and_b32 v3, 31, v0
    v_lshlrev_b32 v3, 2, v3
    v_lshrrev_b32 v4, 5, v0
    v_lshl_add_u32 v3, v4, 11, v3
    """)
    for g in range(16):
        k(f"ds_read_b32 v{16+g}, v3 offset:{(g>>2)*512 + (g&3)*128}")
    k("prep_red:\ns_waitcnt lgkmcnt(0)")
    for st in (8, 4, 2, 1):
        for g in range(st):
            k(f"v_add_f32 v{16+g}, v{16+g}, v{16+g+st}")
    k("""
    v_cvt_pk_bf16_f32 v17, v16, v16
    v_lshlrev_b32 v18, 16, v17
    v_sub_f32 v18, v16, v18
    v_cvt_pk_bf16_f32 v17, v16, v18
    buffer_store_dword v17, v6, s[16:19], s28 offen
    prep_end:
    s_endpgm
    """)
    return k, (NWG, 256, 8192)


def tile_map(k, mode):
    if mode == "4x8":
        k("""s_and_b32 s6, s2, 7
        s_lshr_b32 s7, s2, 3
        s_lshr_b32 s4, s6, 1
        s_lshl_b32 s4, s4, 2
        s_lshr_b32 s5, s7, 3
        s_add_u32 s4, s4, s5
        s_and_b32 s5, s6, 1
        s_lshl_b32 s5, s5, 3
        s_and_b32 s7, s7, 7
        s_add_u32 s5, s5, s7""")
    elif mode == "2x16":
        k("""s_and_b32 s6, s2, 7
        s_lshr_b32 s7, s2, 3
        s_lshl_b32 s4, s6, 1
        s_lshr_b32 s5, s7, 4
        s_add_u32 s4, s4, s5
        s_and_b32 s5, s7, 15""")
    elif mode == "8x4":
        k("""s_and_b32 s6, s2, 7
        s_lshr_b32 s7, s2, 3
        s_lshr_b32 s4, s6, 2
        s_lshl_b32 s4, s4, 3
        s_lshr_b32 s5, s7, 2
        s_add_u32 s4, s4, s5
        s_and_b32 s5, s6, 3
        s_lshl_b32 s5, s5, 2
        s_and_b32 s7, s7, 3
        s_add_u32 s5, s5, s7""")


def lines(txt):
    return [l.strip() for l in txt.split("\n") if l.strip()]


def ln_stats(tmp, out_rstd, out_bop, single=False):
    t = tmp
    o = []
    for g in range(0, 8, 2):
        o.append(f"v_pk_add_f32 {vr(t+g,2)}, {vr(t+g,2)}, {vr(t+g+8,2)}")
    for g in range(0, 4, 2):
        o.append(f"v_pk_add_f32 {vr(t+g,2)}, {vr(t+g,2)}, {vr(t+g+4,2)}")
    o.append(f"v_pk_add_f32 {vr(t,2)}, {vr(t,2)}, {vr(t+2,2)}")
    o.append(f"v_add_f32 v{t}, v{t}, v{t+1}")
    if single:
        o = []
    o += lines(f"""
    v_mul_f32 v{t}, {f32(1.0/D)}, v{t}
    v_mov_b32 v{t+1}, v{t}
    v_permlane32_swap_b32 v{t}, v{t+1}
    v_fma_f32 v{t+1}, -v{t}, v{t}, v{t+1}
    v_max_f32 v{t+1}, 0, v{t+1}
    v_add_f32 v{t+1}, {f32(1e-5)}, v{t+1}
    v_rsq_f32 v{out_rstd}, v{t+1}
    """)
    if out_bop is not None:
        o += lines(f"""
        v_sub_f32 v{t}, 0, v{t}
        v_cvt_pk_bf16_f32 v{t+2}, v{t}, v{t}
        v_lshlrev_b32 v{t+3}, 16, v{t+2}
        v_sub_f32 v{t+3}, v{t}, v{t+3}
        v_cvt_pk_bf16_f32 v{t+3}, v{t+3}, v{t+3}
        v_cndmask_b32 v{out_bop}, v{t+2}, v{t+3}, s[40:41]
        v_mov_b32 v{out_bop+1}, v{out_bop}
        v_mov_b32 v{out_bop+2}, v{out_bop}
        v_mov_b32 v{out_bop+3}, v{out_bop}
        """)
    return o


def pk_mul(k, dst, src, sc, n):
    for i in range(0, n, 2):
        k(f"v_pk_mul_f32 {vr(dst+i,2)}, {vr(src+i,2)}, {vr(sc,2)}")


def feat_map(k, src, cvec, tmp, outp):
    t = tmp
    a, b, c, d = t + 32, t + 34, t + 36, t + 38
    k(f"v_max3_f32 v{a}, v{src}, v{src+1}, v{src+2}\nv_min3_f32 v{b}, v{src}, v{src+1}, v{src+2}")
    for i in range(3, 15, 2):
        k(f"v_max3_f32 v{a}, v{a}, v{src+i}, v{src+i+1}\nv_min3_f32 v{b}, v{b}, v{src+i}, v{src+i+1}")
    k(f"""v_max_f32 v{a}, v{a}, v{src+15}
    v_min_f32 v{b}, v{b}, v{src+15}
    v_mov_b32 v{c}, v{a}
    v_mov_b32 v{d}, v{b}
    v_permlane32_swap_b32 v{a}, v{c}
    v_permlane32_swap_b32 v{b}, v{d}
    v_max_f32 v{a}, v{a}, v{c}
    v_min_f32 v{b}, v{b}, v{d}
    v_mul_f32 v{a}, v{a}, v{cvec}
    v_mul_f32 v{b}, v{b}, v{cvec}
    v_mov_b32 v{a+1}, v{a}
    v_mov_b32 v{b+1}, v{b}
    """)
    for i in range(0, 16, 2):
        k(f"v_pk_fma_f32 {vr(t+i,2)}, {vr(src+i,2)}, {vr(cvec,2)}, {vr(a,2)} neg_lo:[0,0,1] neg_hi:[0,0,1]")
        k(f"v_pk_fma_f32 {vr(t+16+i,2)}, {vr(src+i,2)}, {vr(cvec,2)}, {vr(b,2)} neg_lo:[1,0,0] neg_hi:[1,0,0]")
    for i in range(32):
        k(f"v_exp_f32 v{t+i}, v{t+i}")
    k(f"v_pk_add_f32 {vr(a,2)}, {vr(t,2)}, {vr(t+2,2)}\nv_pk_add_f32 {vr(b,2)}, {vr(t+16,2)}, {vr(t+18,2)}")
    for i in range(4, 16, 2):
        k(f"v_pk_add_f32 {vr(a,2)}, {vr(a,2)}, {vr(t+i,2)}\nv_pk_add_f32 {vr(b,2)}, {vr(b,2)}, {vr(t+16+i,2)}")
    k(f"""v_add_f32 v{a}, v{a}, v{a+1}
    v_add_f32 v{b}, v{b}, v{b+1}
    v_mov_b32 v{c}, v{a}
    v_mov_b32 v{d}, v{b}
    v_permlane32_swap_b32 v{a}, v{c}
    v_permlane32_swap_b32 v{b}, v{d}
    v_add_f32 v{a}, v{a}, v{c}
    v_add_f32 v{b}, v{b}, v{d}
    v_rcp_f32 v{a}, v{a}
    v_rcp_f32 v{b}, v{b}
    v_mov_b32 v{a+1}, v{a}
    v_mov_b32 v{b+1}, v{b}
    """)
    pk_mul(k, t, t, a, 16)
    pk_mul(k, t + 16, t + 16, b, 16)
    for i in range(16):
        k(f"v_cvt_pk_bf16_f32 v{outp+i}, v{t+2*i}, v{t+2*i+1}")


def ones_pattern(k, dst, t0, t1):
    k(f"""v_bfe_u32 v{t0}, v1, 2, 1
    v_bfe_u32 v{t1}, v1, 4, 1
    v_cmp_eq_u32 vcc, v{t0}, v{t1}
    v_mov_b32 v{t0}, {ONES2}
    v_cndmask_b32 v{dst}, 0, v{t0}, vcc
    v_mov_b32 v{dst+1}, v{dst}
    v_mov_b32 v{dst+2}, v{dst}
    v_mov_b32 v{dst+3}, v{dst}""")


def wphi_loads(k, WP, headsreg):
    k(f"""v_lshlrev_b32 v10, 1, v2
    v_lshl_add_u32 v10, v3, 8, v10
    s_lshl_b32 s34, {headsreg}, 11""")
    for t in range(2):
        for e in range(2):
            for j in range(4):
                k(f"buffer_load_ushort v{WP+8*t+4*e+j}, v10, s[20:23], s34 offen offset:{(16*t+8*e+j)*64}")


CNT = 163840 - 64
_cnt = [0]


def new_cnt():
    _cnt[0] = (_cnt[0] + 1) % 16
    return CNT + 4 * _cnt[0]


def zero_cnt(k, addr):
    k(f"v_mov_b32 v4, {addr}\nv_mov_b32 v5, 0\nds_write_b32 v4, v5")


def signal(k, base, idx_sreg, nw=1, cnt=None, word=None):
    L = k.label("sig")
    k(f"""s_lshl_b32 s34, {idx_sreg}, 8
    s_add_u32 s34, s34, {hex(base)}
    v_mov_b32 v4, 1
    v_mov_b32 v5, 0
    s_mov_b64 exec, 1""")
    if nw > 1:
        k(f"""v_mov_b32 v6, {cnt}
        ds_add_rtn_u32 v7, v6, v4
        s_waitcnt lgkmcnt(0)
        v_readfirstlane_b32 s35, v7
        s_cmp_eq_u32 s35, {nw-1}
        s_cbranch_scc0 {L}""")
    if word:
        k(f"""s_lshl_b32 s35, {word}, 2
        s_add_u32 s34, s34, s35
        buffer_store_dword v4, v5, s[16:19], s34 offen sc1""")
    else:
        k("buffer_atomic_add v4, v5, s[16:19], s34 offen sc1")
    k(f"""{L}:
    s_mov_b64 exec, -1""")


def wait_flag(k, base, idx_sreg, target, all16=False, sa=52, sb=53):
    L = k.label("poll")
    if all16:
        k(f"""v_and_b32 v4, 15, v1
        v_lshlrev_b32 v4, 8, v4
        s_mov_b32 s{sa}, {hex(base)}""")
    else:
        k(f"""v_mov_b32 v4, 0
        s_lshl_b32 s{sa}, {idx_sreg}, 8
        s_add_u32 s{sa}, s{sa}, {hex(base)}""")
    if True:
        k(f"""s_mov_b32 s{sb}, 0
        {L}:
        buffer_load_dword v5, v4, s[16:19], s{sa} offen sc1
        s_waitcnt vmcnt(0)
        v_cmp_gt_u32 vcc, {target}, v5
        s_cbranch_vccz {L}_ok
        s_add_u32 s{sb}, s{sb}, 1
        s_cmp_lt_u32 s{sb}, 0x40000
        s_cbranch_scc1 {L}
        {L}_ok:""")
        return
    k(f"""s_mov_b32 s{sb}, 0
    buffer_load_dword v5, v4, s[16:19], s{sa} offen sc1
    s_sleep 2
    buffer_load_dword v6, v4, s[16:19], s{sa} offen sc1
    s_sleep 2
    {L}:""")
    for a_, b_ in ((7, 5), (5, 6), (6, 7)):
        k(f"""buffer_load_dword v{a_}, v4, s[16:19], s{sa} offen sc1
        s_waitcnt vmcnt(2)
        v_cmp_gt_u32 vcc, {target}, v{b_}
        s_cbranch_vccz {L}_ok""")
    k(f"""s_add_u32 s{sb}, s{sb}, 1
    s_cmp_lt_u32 s{sb}, 0x20000
    s_cbranch_scc1 {L}
    {L}_ok:
    s_waitcnt vmcnt(0)""")


class VQ:
    def __init__(self):
        self.q = []

    def add(self, tag, n=1):
        self.q += [tag] * n

    def cnt(self, tag):
        last = max(i for i, t in enumerate(self.q) if t == tag)
        return len(self.q) - 1 - last


def gemm_loader(k, nseg, wstride, R, stage_bytes, extra, relaxed, tag, wt, pre=None, mid=None, npre=None,
                preflag=None, first=1, lims=None, rm=False, staged=False):
    if pre:
        pre()
    k(f"""
    s_sub_u32 s30, s3, 4
    v_lshrrev_b32 v6, 3, v1
    v_and_b32 v7, 7, v1
    s_lshl_b32 s31, s30, 4
    s_mov_b32 s33, {wstride}
    v_lshrrev_b32 v5, 1, v6
    v_and_b32 v5, 1, v5
    v_lshlrev_b32 v5, 2, v5
    v_xor_b32 v5, v5, v7
    v_lshlrev_b32 v5, 4, v5
    s_lshl_b32 s32, s5, 7
    v_add_u32 v5, s32, v5
    """)
    for jj in range(2):
        k(f"""
        v_add_u32 v4, {8*jj}, v6
        v_add_u32 v4, s31, v4
        v_mul_lo_u32 v4, v4, s33
        v_add_u32 v{12+jj}, v4, v5
        """)
        if jj:
            k(f"v_subrev_u32 v{12+jj}, {1024*jj}, v{12+jj}")
    for p in range(1, nseg):
        for jj in range(2):
            k(f"v_add_u32 v{12+2*p+jj}, {2048*p}, v{12+jj}")
    k("v_lshlrev_b32 v8, 4, v1")
    if extra:
        k(f"""s_lshl_b32 s31, s30, 10
        v_add_u32 v20, s31, v8""")
    k(f"""
    s_lshl_b32 s34, s30, 12
    s_lshl_b32 s35, s30, 11
    s_add_u32 s35, s35, 16384
    s_lshl_b32 s36, s30, 10
    s_add_u32 s36, s36, {16384 + nseg*8192}
    s_lshl_b32 s37, s4, 2
    s_add_u32 s37, s37, s30
    s_lshl_b32 s37, s37, 16
    s_mov_b32 s38, 0
    s_mov_b32 s39, 0
    """)
    if rm:
        k(f"""s_lshl_b32 s31, s4, 7
        s_lshl_b32 s32, s30, 5
        s_add_u32 s31, s31, s32
        s_add_u32 s61, s4, s5
        s_and_b32 s61, s61, 15
        s_mov_b32 s62, s61
        s_lshl_b32 s37, s61, 7
        s_mul_i32 s38, s61, {64*wstride}""")
        for jj in range(4):
            k(f"""
            v_add_u32 v4, {8*jj}, v6
            v_lshrrev_b32 v5, 1, v4
            v_and_b32 v5, 7, v5
            v_xor_b32 v5, v5, v7
            v_add_u32 v4, s31, v4
            v_lshlrev_b32 v4, 11, v4
            v_lshl_add_u32 v{20+jj}, v5, 4, v4
            """)
            if jj:
                k(f"v_subrev_u32 v{20+jj}, {1024*jj}, v{20+jj}")
    q = VQ()

    def issueW(st):
        slot = (st % R) * stage_bytes
        for p in range(nseg):
            k(f"s_add_u32 m0, s35, {slot + p*8192}")
            for jj in range(2):
                if not (X_NOLOAD and st >= R):
                    k(f"buffer_load_dwordx4 v{12+2*p+jj}, s[12:15], s38 offen offset:{1024*jj} lds")
                q.add(("s", st))
        if extra:
            k(f"s_add_u32 m0, s36, {slot}")
            k(f"buffer_load_dwordx4 v20, s[20:23], s39 offen lds")
            q.add(("s", st))
            k("s_add_u32 s39, s39, 4096")
        if rm:
            k(f"s_cmp_le_u32 s61, {st}\ns_cselect_b32 s62, {st+1}, {st}\ns_mul_i32 s38, s62, {64*wstride}")
        else:
            k(f"s_add_u32 s38, s38, {64*wstride}")

    def issueX(st):
        slot = (st % R) * stage_bytes
        if staged:
            L = k.label("sp")
            k(f"""s_cmp_gt_u32 s63, {st}
            s_cbranch_scc1 {L}_ok
            s_mov_b32 s53, 0
            {L}:
            buffer_load_dword v5, v4, s[16:19], s52 offen sc1
            s_waitcnt vmcnt(0)
            v_cmp_ne_u32 vcc, 1, v5
            s_or_b32 s63, vcc_lo, 0x10000
            s_ff1_i32_b32 s63, s63
            s_cmp_gt_u32 s63, {st}
            s_cbranch_scc1 {L}_ok
            s_add_u32 s53, s53, 1
            s_cmp_lt_u32 s53, 0x40000
            s_cbranch_scc1 {L}
            {L}_ok:""")
            if st == 0:
                stamp(k, tag + "_flag")
        k(f"s_add_u32 m0, s34, {slot}")
        for jj in range(4):
            if X_NOLOAD and st >= R:
                pass
            elif rm:
                k(f"buffer_load_dwordx4 v{20+jj}, s[8:11], s37 offen offset:{1024*jj} lds")
            else:
                k(f"buffer_load_dwordx4 v8, s[8:11], s37 offen offset:{1024*jj} sc1 lds")
            q.add(("s", st))
        if rm:
            k(f"s_cmp_le_u32 s61, {st}\ns_cselect_b32 s62, {st+1}, {st}\ns_lshl_b32 s37, s62, 7")
        else:
            k("s_add_u32 s37, s37, 4096")

    if wt:
        P_ = R if R * stage_bytes <= CNT else R - 1
        if npre is not None:
            P_ = npre
        for st in range(P_):
            issueW(st)
        if preflag:
            preflag(q)
        if staged:
            k(f"""v_and_b32 v4, 15, v1
            v_lshlrev_b32 v4, 2, v4
            s_lshl_b32 s52, {wt[1]}, 8
            s_add_u32 s52, s52, {hex(wt[0])}
            s_mov_b32 s63, 0""")
        else:
            NPL = k.label("np")
            k(f"s_cmp_lg_u32 s3, 4\ns_cbranch_scc1 {NPL}")
            wait_flag(k, *wt)
            k(f"{NPL}:\ns_waitcnt vmcnt(0)\ns_barrier")
            stamp(k, tag + "_flag")
        xi, wi = 0, P_
    else:
        xi, wi = 0, 0
    D_ = R - 2 if relaxed else R - 1

    def upto(lim):
        nonlocal xi, wi
        while xi <= lim or wi <= lim:
            if xi <= lim:
                issueX(xi)
                xi += 1
            if wi <= lim and wi < xi:
                issueW(wi)
                wi += 1

    upto(first)
    for i in range(NST):
        k(f"s_waitcnt vmcnt({q.cnt(('s', i))})")
        k("s_barrier")
        lim = min(NST - 1, max(R - 1, i + D_))
        if lims and i in lims:
            lim = lims[i]
        upto(lim)
        if mid and i in mid:
            mid[i](q)


def gemm_compute(k, R, stage_bytes, A, bases, xoffs, waddr_list, frag_base, mfmas, nfragregs, ab, tag, nbuf=4,
                 per=None, filler=None, fper=3, after_b0=None, e2=True, after_e2=None, rm=False, late=None, pre_m=0, at_iter=None, mf_first=None, after_first=None):
    loopname = k.label(tag + "_loop")

    def upd():
        for i, b in enumerate(bases):
            k(f"v_add_u32 v{ab+i}, s32, v{b}")

    def reads(t):
        out = []
        fr = frag_base + (t % nbuf) * nfragregs
        for i, xo in enumerate(xoffs):
            if rm:
                out.append(f"ds_read_b128 {vr(fr+4*i,4)}, v{ab+t} offset:{xo}")
            else:
                out.append(f"ds_read_b128 {vr(fr+4*i,4)}, v{ab} offset:{xo + 1024*t}")
        fr += 4 * len(xoffs)
        for i, (wi, wo, rb) in enumerate(waddr_list):
            for rd in range(2):
                if rm:
                    out.append(f"ds_read_b64_tr_b16 {vr(fr+4*i+2*rd,2)}, v{ab+wi+3} offset:{wo + (16*t+4*rd)*rb}")
                else:
                    out.append(f"ds_read_b64_tr_b16 {vr(fr+4*i+2*rd,2)}, v{ab+wi} offset:{wo + (16*t+8*rd)*rb}")
        return out

    n = len(reads(0))

    def stage(last, fill, mfmas=mfmas):
        for t in range(4):
            nxt = t + A
            rd = []
            if nxt < 4:
                rd = reads(nxt)
            elif not last:
                rd = reads(nxt - 4)
            young = sum(1 for u in range(t + 1, t + A) if (u < 4 or not last)) * n
            k(f"s_waitcnt lgkmcnt({min(young,15)})")
            ms = mfmas(frag_base + (t % nbuf) * nfragregs, t)
            if X_NOMFMA:
                ms, rd = ms[:1], []
            p = per or max(1, -(-len(rd) // max(1, len(ms) - 1)))
            if nxt == 4 and not last:
                k(f"""s_add_u32 s32, s32, {stage_bytes}
                s_cmp_eq_u32 s32, {R*stage_bytes}
                s_cselect_b32 s32, 0, s32""")
                for m in ms[:pre_m]:
                    k(m)
                ms = ms[pre_m:]
                upd()
                k("s_barrier")
                if pre_m:
                    p = -(-len(rd) // max(1, len(ms) - 1 if len(ms) > 1 else 1))
                    for r_ in rd[:p]:
                        k(r_)
                    rd = rd[p:]
            if last and t == 3:
                k(ms[0])
                ms = ms[1:]
                k("s_barrier")
            for i, m in enumerate(ms):
                k(m)
                rr = rd[i * p:(i + 1) * p]
                for r_ in rr:
                    k(r_)
                for _ in range(max(0, fper + 2 - len(rr))):
                    if fill:
                        k(fill.pop(0))
            for r_ in rd[len(ms) * p:]:
                k(r_)
        while fill:
            k(fill.pop(0))

    k(f"s_mov_b32 s32, 0\ns_mov_b32 s33, 0")
    stamp(k, tag + "_b0pre")
    if e2:
        k("s_barrier")
    if after_e2:
        after_e2()
    k("s_barrier")
    stamp(k, tag + "_b0")
    upd()
    for t in range(A):
        for r_ in reads(t):
            k(r_)
    if after_b0:
        after_b0()
    nloop = min(late) if late else NST - 1
    if mf_first:
        stage(False, [], mf_first)
        k("s_mov_b32 s33, 1")
        after_first()
    k(f"{loopname}:")
    stage(False, [])
    for it_, fn_ in (at_iter or []):
        SKP = k.label("skip")
        k(f"s_cmp_eq_u32 s33, {it_}\ns_cbranch_scc0 {SKP}")
        fn_()
        k(f"{SKP}:")
    k(f"""s_add_u32 s33, s33, 1
    s_cmp_lt_u32 s33, {nloop}
    s_cbranch_scc1 {loopname}""")
    for st in range(nloop, NST - 1):
        stage(False, list(late.get(st, [])))
    stage(True, list(filler or []))
    stamp(k, tag + "_loopend")


def x_addr(k, dst, rowsreg):
    k(f"""
    v_add_u32 v4, {rowsreg}, v2
    v_bfe_u32 v5, v4, 1, 3
    v_lshlrev_b32 v4, 7, v4
    """)
    for t in range(4):
        k(f"""v_add_u32 v6, {2*t}, v3
        v_xor_b32 v6, v6, v5
        v_lshl_add_u32 v{dst+t}, v6, 4, v4""")


def hilo(src, dst, tmp):
    return lines(f"""v_cvt_pk_bf16_f32 v{tmp}, v{src}, v{src}
    v_lshlrev_b32 v{tmp}, 16, v{tmp}
    v_sub_f32 v{tmp}, v{src}, v{tmp}
    v_cvt_pk_bf16_f32 v{dst}, v{src}, v{tmp}""")


def cs_build(dst, src):
    return [f"v_mov_b32 v{dst}, v{src}"] + [f"v_mov_b32 v{dst+i}, 0" for i in (1, 2, 3)]


def wqkv_warm(k, widx):
    srd(k, 24, P_WQKV, D * 3 * D * 2)
    k(f"""s_bfe_u32 s56, s2, 0x30005
    s_lshl_b32 s56, s56, 2
    s_add_u32 s56, s56, {widx}
    s_mul_i32 s56, s56, {32*6144}
    s_and_b32 s57, s2, 3
    s_lshl_b32 s57, s57, 2
    s_bfe_u32 s58, s2, 0x20003
    s_add_u32 s57, s57, s58
    s_lshl_b32 s57, s57, 7
    s_add_u32 s56, s56, s57
    v_mul_u32_u24 v246, 6144, v2
    v_lshl_add_u32 v247, v3, 11, v246
    buffer_load_dword v245, v247, s[24:27], s56 offen
    s_add_u32 s56, s56, 4096
    buffer_load_dword v245, v246, s[24:27], s56 offen""")


def warm(k, ptr, mode, widx):
    if "nowarm" in sys.argv:
        return
    nseg, stride = (3, 6144) if mode == "8x4" else (1, 2048)
    srd(k, 20, ptr, D * stride)
    if mode == "4x8":
        k(f"""s_bfe_u32 s56, s2, 0x20006
        s_lshl_b32 s56, s56, 2
        s_add_u32 s56, s56, {widx}
        s_lshl_b32 s56, s56, 6
        s_and_b32 s57, s2, 1
        s_lshl_b32 s57, s57, 3
        s_bfe_u32 s58, s2, 0x30003
        s_add_u32 s57, s57, s58""")
        n = 8
    else:
        k(f"""s_bfe_u32 s56, s2, 0x30005
        s_lshl_b32 s56, s56, 2
        s_add_u32 s56, s56, {widx}
        s_lshl_b32 s56, s56, 5
        s_and_b32 s57, s2, 3
        s_lshl_b32 s57, s57, 2
        s_bfe_u32 s58, s2, 0x20003
        s_add_u32 s57, s57, s58""")
        n = 4
    k(f"""s_mul_i32 s56, s56, {stride}
    s_lshl_b32 s57, s57, 7
    s_add_u32 s56, s56, s57
    v_lshrrev_b32 v239, 3, v1
    v_mul_u32_u24 v239, {stride}, v239
    v_and_b32 v238, 7, v1
    v_lshl_add_u32 v239, v238, 4, v239""")
    for i in range(n):
        for p in range(nseg):
            if p < 2:
                k(f"buffer_load_dwordx4 v[244:247], v239, s[20:23], s56 offen offset:{2048*p}")
            else:
                k(f"s_add_u32 s57, s56, 4096\nbuffer_load_dwordx4 v[244:247], v239, s[20:23], s57 offen")
        k(f"s_add_u32 s56, s56, {8*stride}")


class Cap:
    def __init__(self):
        self.l = []

    def __call__(self, t):
        self.l += lines(t)


def w_tr_base(k, dst, col0, rb, swz, hs=2):
    k(f"""
    v_and_b32 v4, 15, v1
    v_lshrrev_b32 v5, 2, v4
    v_lshl_add_u32 v5, v3, {hs}, v5
    v_mul_u32_u24 v5, {rb}, v5
    v_and_b32 v6, 3, v4
    v_lshlrev_b32 v6, 3, v6
    v_bfe_u32 v7, v1, 4, 1
    v_lshl_add_u32 v6, v7, 5, v6
    v_add_u32 v6, {col0}, v6
    """)
    if swz:
        k(f"""v_bfe_u32 v7, v1, 3, 1
        v_lshlrev_b32 v7, 6, v7
        v_xor_b32 v6, v6, v7""")
    k(f"v_add_u32 v{dst}, v5, v6")


def stats_loads(k, dst, w32_sreg, tmpv, st_off, q=None):
    k(f"""v_lshlrev_b32 v{tmpv}, 2, v1
    s_lshl_b32 s54, s4, 14
    s_lshl_b32 s55, {w32_sreg}, 8
    s_add_u32 s54, s54, s55
    s_add_u32 s54, s54, {hex(st_off)}""")
    for c in range(16):
        k(f"buffer_load_dword v{dst+c}, v{tmpv}, s[16:19], s54 offen offset:{1024*(c&3)} sc1")
        if q is not None:
            q.add("stats")
        if c & 3 == 3 and c < 15:
            k("s_add_u32 s54, s54, 4096")


XINIT = int(dict(a.split('=') for a in sys.argv if '=' in a).get('xinit', 8))
XDEPTH = int(dict(a.split('=') for a in sys.argv if '=' in a).get('xdepth', 20))
WGRP = [0, 4, 10]


def stage_poll(k, st):
    L = k.label("sp")
    k(f"""s_cmp_gt_u32 s63, {st}
    s_cbranch_scc1 {L}_ok
    s_mov_b32 s53, 0
    {L}:
    buffer_load_dword v5, v4, s[16:19], s52 offen sc1
    s_waitcnt vmcnt(0)
    v_cmp_ne_u32 vcc, 1, v5
    s_or_b32 s63, vcc_lo, 0x10000
    s_ff1_i32_b32 s63, s63
    s_cmp_gt_u32 s63, {st}
    s_cbranch_scc1 {L}_ok
    s_add_u32 s53, s53, 1
    s_cmp_lt_u32 s53, 0x40000
    s_cbranch_scc1 {L}
    {L}_ok:""")


def wpf_setup(k, ptr, nw, widx):
    srd(k, 24, ptr, D * D * 2)
    sh = 3 if nw == 8 else 4
    k(f"""s_and_b32 s57, s2, 1
    s_lshl_b32 s57, s57, 3
    s_bfe_u32 s58, s2, 0x30003
    s_add_u32 s57, s57, s58
    s_lshl_b32 s57, s57, 7
    v_lshrrev_b32 v241, 3, v1
    v_bfe_u32 v242, v241, 1, 1
    v_lshlrev_b32 v242, 2, v242
    v_and_b32 v243, 7, v1
    v_xor_b32 v242, v242, v243
    v_lshlrev_b32 v242, 4, v242
    s_lshl_b32 s58, {widx}, {sh}
    v_add_u32 v241, s58, v241
    v_lshl_add_u32 v241, v241, 11, v242
    v_add_u32 v241, s57, v241
    v_add_u32 v242, {8*2048-1024}, v241
    s_lshl_b32 s60, {widx}, {sh+7}""")


def wpf_issue(k, stages, wloc, nw, q=None):
    for st in stages:
        k(f"s_add_u32 m0, s60, {wloc(st)}\ns_mov_b32 s59, {st*64*2048}")
        k("buffer_load_dwordx4 v241, s[24:27], s59 offen lds")
        if nw == 4:
            k("buffer_load_dwordx4 v242, s[24:27], s59 offen offset:1024 lds")
        if q is not None:
            q.add("wpf", 8 // nw)


ORD_A = [0, 1, 2, 4, 5, 6, 7, 8, 9, 10, 12, 13, 14, 15, 3, 11]


def wloc_a(st):
    p = ORD_A.index(st)
    return 81920 + 8192 * p if p < 9 else 8192 * (p - 9)


def wloc_b(st):
    return 8192 * st if st < 12 else (131072 + 8192 * (st - 12) if st < 15 else 98304)


def gemm2_loader(k, tag, wloc, order=None, hooks=None):
    k(f"""
    s_sub_u32 s30, s3, 4
    v_lshrrev_b32 v6, 3, v1
    v_and_b32 v7, 7, v1
    s_lshl_b32 s31, s30, 4
    v_lshrrev_b32 v5, 1, v6
    v_and_b32 v5, 1, v5
    v_lshlrev_b32 v5, 2, v5
    v_xor_b32 v5, v5, v7
    v_lshlrev_b32 v5, 4, v5
    s_lshl_b32 s32, s5, 7
    v_add_u32 v5, s32, v5
    v_add_u32 v4, s31, v6
    v_lshl_add_u32 v12, v4, 11, v5
    v_add_u32 v13, {8*2048-1024}, v12
    v_lshlrev_b32 v8, 4, v1
    s_lshl_b32 s35, s30, 11
    """)
    q = VQ()
    if order is None:
        order = list(range(16)) + [("bar", g) for g in (3, 9, 15)]
    for o in order:
        if callable(o):
            o(q)
        elif o == ("bar0",):
            k("s_barrier")
        elif isinstance(o, tuple):
            k(f"s_waitcnt vmcnt({q.cnt(('s', o[1]))})\ns_barrier")
        else:
            k(f"s_add_u32 m0, s35, {wloc(o)}\ns_mov_b32 s38, {o*64*2048}")
            for jj in range(2):
                k(f"buffer_load_dwordx4 v{12+jj}, s[12:15], s38 offen offset:{1024*jj} lds")
                q.add(("s", o))


def rdy_poller(k, wt, rdy, perm=False, until=16, wave=7):
    L = k.label("rp")
    k(f"""s_cmp_lg_u32 s3, {wave}
    s_cbranch_scc1 {L}_ok
    v_and_b32 v4, 15, v1""")
    if perm:
        lo = sum(ORD_A[i] << (4 * i) for i in range(8))
        hi = sum(ORD_A[8 + i] << (4 * i) for i in range(8))
        k(f"""v_mov_b32 v5, {hex(lo)}
        v_mov_b32 v6, {hex(hi)}
        v_cmp_lt_u32 vcc, 7, v4
        v_cndmask_b32 v5, v5, v6, vcc
        v_and_b32 v4, 7, v4
        v_lshlrev_b32 v4, 2, v4
        v_bfe_u32 v4, v5, v4, 4""")
    k(f"""v_lshlrev_b32 v4, 2, v4
    s_lshl_b32 s52, {wt[1]}, 8
    s_add_u32 s52, s52, {hex(wt[0])}
    s_mov_b32 s53, 0
    v_mov_b32 v6, {rdy}
    {L}:
    buffer_load_dword v5, v4, s[16:19], s52 offen sc1
    s_waitcnt vmcnt(0)
    v_cmp_ne_u32 vcc, 1, v5
    s_or_b32 s63, vcc_lo, 0x10000
    s_ff1_i32_b32 s63, s63
    s_add_u32 s53, s53, 1
    s_cmp_lt_u32 s53, 0x40000
    s_cselect_b32 s63, s63, 16
    v_mov_b32 v7, s63
    ds_write_b32 v6, v7
    s_cmp_lt_u32 s63, {until}
    s_cbranch_scc1 {L}
    {L}_ok:""")


def gemm2_compute(k, tag, ACC, XR, WF, wb, wloc, wt, filler=None, extra=None, late=None, groups=WGRP, pre=None, rdy=None,
                  before_x=None, ring=32, fill_from=48, kord=None, cpoll=2, cpoll_first=False):
    q = VQ()
    kord = kord or list(range(16))
    fill = list(filler or [])
    k(f"""v_add_u32 v{wb+2}, 0x10000, v{wb}
    v_add_u32 v{wb+3}, 0x10000, v{wb+1}
    v_add_u32 v{wb+4}, 0x20000, v{wb}
    v_add_u32 v{wb+5}, 0x20000, v{wb+1}""")
    if wt:
        k(f"v_mov_b32 v4, {rdy}\ns_mov_b32 s63, 0")

    def xload(j):
        if j % 4 == 0 and wt:
            L = k.label("lp")
            k(f"""s_cmp_gt_u32 s63, {j//4}
            s_cbranch_scc1 {L}_ok
            {L}:
            ds_read_b32 v5, v4
            s_waitcnt lgkmcnt(0)
            v_readfirstlane_b32 s63, v5
            s_cmp_gt_u32 s63, {j//4}
            s_cbranch_scc0 {L}
            {L}_ok:""")
            if j == 0:
                stamp(k, tag + "_flag")
        k(f"buffer_load_dwordx4 {vr(XR+4*(j%ring),4)}, v10, s[8:11], s39 offen offset:{1024*(j&3)} sc1")
        q.add(("x", j))
        if j % 4 == 3 and j < 63:
            d_ = (kord[j // 4 + 1] - kord[j // 4]) * 4096
            k(f"s_add_u32 s39, s39, {d_}" if d_ > 0 else f"s_sub_u32 s39, s39, {-d_}")

    def wreads(j):
        off = wloc(kord[j // 4]) + (16 * (j % 4)) * 128
        hi = off >> 16
        return [f"ds_read_b64_tr_b16 {vr(WF+8*(j%4)+4*bl+2*rd,2)}, v{wb+2*hi+bl} offset:{(off & 0xffff) + 1024*rd}"
                for bl in range(2) for rd in range(2)]

    stamp(k, tag + "_b0pre")
    k("s_barrier")
    if before_x and not cpoll_first:
        before_x()
    if wt and "cpoll" in sys.argv:
        rdy_poller(k, wt, rdy, kord != list(range(16)), cpoll, wave=3)
        k(f"v_mov_b32 v4, {rdy}")
    if before_x and cpoll_first:
        before_x()
    nx = 0
    for j in range(XINIT):
        xload(j)
        nx += 1
    if pre:
        pre(q)
    stamp(k, tag + "_b0")
    for j in range(2):
        for r_ in wreads(j):
            k(r_)
    for j in range(64):
        if late and j in late:
            late[j](q)
        rd = wreads(j + 2) if j + 2 < 64 else []
        k(f"s_waitcnt vmcnt({min(63, q.cnt(('x', j)))}) lgkmcnt({4 if j < 63 else 0})")
        x, w = XR + 4 * (j % ring), WF + 8 * (j % 4)
        k(M32(ACC, w, x))
        if j == 63 or ((j + 2) % 4 == 0 and (j + 2) // 4 in groups[1:]):
            k("s_barrier")
        for r_ in rd[:2]:
            k(r_)
        for _ in range(2):
            if j >= fill_from and fill:
                k(fill.pop(0))
        k(M32(ACC + 16, w + 4, x))
        if extra:
            extra(j, w)
        for r_ in rd[2:]:
            k(r_)
        for _ in range(2):
            if nx < 64 and nx <= j + XDEPTH:
                xload(nx)
                nx += 1
        for _ in range(2):
            if j >= fill_from and fill:
                k(fill.pop(0))
    while fill:
        k(fill.pop(0))
    stamp(k, tag + "_loopend")


def phase_wo(k, tag, p_w, lin, oi, wt, sig_base, final):
    LD, END = k.label(tag + "_ld"), k.label(tag + "_end")
    tile_map(k, "4x8")
    srd_off(k, 8, P_WS, WS_O[oi], S * D * 2)
    srd(k, 12, p_w, D * D * 2)
    if final:
        srd(k, 24, P_OUT, S * D * 2)
    if lin == 0:
        srd(k, 24, P_X, S * D * 2)
    k(f"s_cmp_ge_u32 s3, 4\ns_cbranch_scc1 {LD}")
    k(f"""
    s_lshl_b32 s30, s4, 2
    s_add_u32 s30, s30, s3
    s_lshl_b32 s39, s30, 16
    s_lshl_b32 s31, s5, 12
    s_add_u32 s36, s39, s31
    s_add_u32 s37, s36, {hex(WS_X[lin] or 0)}
    v_lshlrev_b32 v10, 4, v1
    """)
    rm_addr = lines(f"""s_lshl_b32 s31, s30, 5
        v_add_u32 v9, s31, v2
        v_lshlrev_b32 v9, 11, v9
        v_lshl_add_u32 v9, v3, 4, v9
        s_lshl_b32 s31, s5, 7
        v_add_u32 v9, s31, v9""")
    ACC, RES, XR, WF = 32, 64, 96, 64
    if lin == 0:
        for l_ in rm_addr:
            k(l_)
    for q in range(4):
        if lin == 0:
            k(f"buffer_load_dwordx4 {vr(RES+4*q,4)}, v9, s[24:27], 0 offen offset:{32*q}")
        else:
            k(f"buffer_load_dwordx4 {vr(RES+4*q,4)}, v10, s[16:19], s37 offen offset:{1024*q} sc1")
    w_tr_base(k, 12, "0", 128, True)
    k("v_xor_b32 v13, 64, v12")
    cnt = new_cnt()
    zero_cnt(k, cnt)
    rdy = new_cnt()
    zero_cnt(k, rdy)
    k("s_waitcnt lgkmcnt(0)")

    def acc_init():
        k("s_waitcnt vmcnt(0)")
        if lin == 0:
            for q in range(4):
                a = RES + 4 * q
                k(f"v_permlane32_swap_b32 v{a}, v{a+2}\nv_permlane32_swap_b32 v{a+1}, v{a+3}")
        for i in range(16):
            k(f"v_lshlrev_b32 v{ACC+2*i}, 16, v{RES+i}\nv_and_b32 v{ACC+2*i+1}, 0xffff0000, v{RES+i}")
    if final:
        fill = list(rm_addr)
    else:
        fill = lines(f"""s_add_u32 s37, s36, {hex(WS_X[lin+1])}
        s_mov_b32 s35, {ONES2}
        v_mov_b32 v24, 0
        v_mov_b32 v25, 0
        s_lshl_b32 s38, s4, 14
        s_lshl_b32 s31, s5, 10
        s_add_u32 s38, s38, s31
        s_lshl_b32 s31, s3, 8
        s_add_u32 s38, s38, s31
        s_add_u32 s38, s38, {hex(WS_ST[lin+1])}
        v_lshlrev_b32 v9, 2, v1""")
    if p_w == P_WOA:
        wloc, groups, order = wloc_a, [0, 9], ORD_A[9:] + [("bar0",), lambda q: rdy_poller(k, wt, rdy, True, 14), ("bar", 11),
                                                          lambda q: rdy_poller(k, wt, rdy, True),
                                                          lambda q: (qkvb_early(k, 0), qkvb_early(k, 1))]
    else:
        wloc, groups, order = wloc_b, [0, 15], [15, ("bar0",), lambda q: rdy_poller(k, wt, rdy), ("bar", 15)]
    gemm2_compute(k, tag, ACC, XR, WF, 12, wloc, wt, filler=fill, groups=groups, rdy=rdy, before_x=acc_init,
                  kord=ORD_A if p_w == P_WOA else None)
    RES = 96
    for q in range(4):
        a = RES + 4 * q
        for j in range(4):
            ac = ACC + 8 * q + 2 * j
            k(f"v_cvt_pk_bf16_f32 v{a+j}, v{ac}, v{ac+1}")
        if final:
            k(f"v_permlane32_swap_b32 v{a}, v{a+2}\nv_permlane32_swap_b32 v{a+1}, v{a+3}")
            k(f"buffer_store_dwordx4 {vr(a,4)}, v9, s[24:27], 0 offen offset:{32*q}")
        else:
            k(f"buffer_store_dwordx4 {vr(a,4)}, v10, s[16:19], s37 offen offset:{1024*q} sc1")
    if not final:
        for i in range(16):
            k(f"v_dot2_f32_bf16 v24, v{RES+i}, s35, v24\nv_dot2_f32_bf16 v25, v{RES+i}, v{RES+i}, v25")
        k(f"""
        v_permlane32_swap_b32 v24, v25
        v_add_f32 v24, v24, v25
        buffer_store_dword v24, v9, s[16:19], s38 offen sc1
        """)
        stamp(k, tag + "_st")
        k("s_waitcnt vmcnt(0)")
        stamp(k, tag + "_drain")
        signal(k, sig_base, "s4", 4, cnt, "s5")
    k(f"s_branch {END}\n{LD}:")
    gemm2_loader(k, tag, wloc, order)
    k(f"s_barrier\n{END}:")
    if False:
        k("s_barrier")


QX_B = 147456
WKV_L = 81920
VT_B = 155648
CSP_L = VT_B + 2304
CSX_L = 131072


def wloc_q(st):
    if st < 3:
        return 57344 + 8192 * st
    if st < 10:
        return 8192 * (st - 3)
    if st == 10:
        return 147456
    if st < 15:
        return WKV_L + 16384 * (st - 11) + 8192
    return WKV_L


def qkvb_early(k, part):
    if part == 0:
        wpf_setup(k, P_WQ, 4, "s30")
        wpf_issue(k, [0, 1, 2], wloc_q, 4)
        return
    A_, B_ = k.label("qe"), k.label("qe")
    k(f"s_cmp_ge_u32 s5, 8\ns_cbranch_scc1 {A_}")
    k(f"""s_bitcmp1_b32 s5, 0
    s_cselect_b32 s46, s{P_WV}, s{P_WK}
    s_cselect_b32 s47, s{P_WV+1}, s{P_WK+1}""")
    srd(k, 20, 46, D * 32 * 2)
    k(f"""s_lshl_b32 s39, s30, 14
    s_add_u32 s31, s39, {WKV_L}""")
    for g in range(4):
        k(f"s_add_u32 m0, s31, {4096*g}")
        for jj in range(4):
            k(f"buffer_load_dwordx4 v8, s[20:23], s39 offen offset:{1024*jj} lds")
        k("s_add_u32 s39, s39, 4096")
    k(f"s_branch {B_}\n{A_}:")
    wpf_issue(k, [11, 12, 13, 14, 15], wloc_q, 4)
    k(f"{B_}:")


def phase_qkvb(k, tag, rep, lin, wt):
    LD, END, NOKV, SG = [k.label(tag + x) for x in ("_ld", "_end", "_nokv", "_sg")]
    first = rep == 0
    tile_map(k, "4x8")
    srd_off(k, 8, P_WS, WS_X[lin], S * D * 2)
    srd(k, 12, P_WQ, D * D * 2)
    k("s_lshr_b32 s48, s5, 1")
    rdy = new_cnt()
    k(f"s_cmp_ge_u32 s3, 4\ns_cbranch_scc1 {LD}")
    ACC, WF, XR = 32, 64, 96
    STT, CS, RSTD, SC, BOP = 224, 20, 18, 28, 240
    CA, ON = 224 - 16, 224 - 8
    k(f"""
    v_lshlrev_b32 v10, 4, v1
    s_lshl_b32 s39, s4, 2
    s_add_u32 s36, s39, s48
    s_add_u32 s39, s39, s3
    s_lshl_b32 s39, s39, 16
    s_lshl_b32 s36, s36, 16
    s_lshl_b32 s31, s3, 14
    s_add_u32 s36, s36, s31
    """)
    w_tr_base(k, 12, "0", 128, True)
    k("v_xor_b32 v13, 64, v12")
    w_tr_base(k, 30, "0", 64, False)
    k(f"""s_lshl_b32 s31, s3, 14
    s_add_u32 s31, s31, {WKV_L}
    v_add_u32 v30, s31, v30
    v_add_u32 v31, s31, v10""")
    zero_cnt(k, rdy)
    for i in range(32):
        k(f"v_mov_b32 v{ACC+i}, 0")
    if first:
        ones_pattern(k, ON, 4, 5)
        for i in range(8):
            k(f"v_mov_b32 v{CA+i}, 0")
    k("s_waitcnt lgkmcnt(0)")

    def extra(j, w):
        if first:
            L_ = k.label("cs")
            k(f"""s_cmp_eq_u32 s3, {j % 4}
            s_cbranch_scc0 {L_}
            {M16(CA, ON, w)}
            {M16(CA + 4, ON, w + 4)}
            {L_}:""")

    fill = ["s_waitcnt vmcnt(0)"] + ln_stats(STT, RSTD, BOP) + [
        f"v_mul_f32 v{SC}, {f32(LOG2E * DH**-0.5)}, v{RSTD}",
        f"v_mov_b32 v{SC+1}, v{SC}"] + lines(f"""s_lshl_b32 s34, s3, 11
        s_add_u32 s34, s34, {QX_B}
        v_add_u32 v11, s34, v10""")
    if not first:
        fill += cs_build(CS, 251) + cs_build(CS + 4, 252)

    XF, WP_, E_ = 128, 64, 192

    def prepass_a():
        L = k.label("pp")
        k(f"""s_cmp_ge_u32 s5, 8
        s_cbranch_scc1 {NOKV}_a
        s_lshl_b32 s31, s3, 2
        s_add_u32 s31, s31, 3
        {L}:
        ds_read_b32 v5, v4
        s_waitcnt lgkmcnt(0)
        v_readfirstlane_b32 s63, v5
        s_cmp_gt_u32 s63, s31
        s_cbranch_scc0 {L}""")
        for t in range(16):
            k(f"buffer_load_dwordx4 {vr(XF+4*t,4)}, v10, s[8:11], s36 offen offset:{1024*(t&3)} sc1")
            if t & 3 == 3:
                k("s_add_u32 s36, s36, 4096")
        k(f"{NOKV}_a:")

    def prepass_b(q):
        k(f"s_cmp_ge_u32 s5, 8\ns_cbranch_scc1 {NOKV}")

        def wr(t):
            for rd in range(2):
                k(f"ds_read_b64_tr_b16 {vr(WP_+4*(t%8)+2*rd,2)}, v30 offset:{(16*t+8*rd)*64}")
        for t in range(7):
            wr(t)
        for t in range(16):
            k(f"s_waitcnt vmcnt({15-t+XINIT}) lgkmcnt({2*min(6, 15-t)})")
            k(M32(E_, WP_ + 4 * (t % 8), XF + 4 * t, "0" if t == 0 else None))
            if first:
                k(M16(224, ON, WP_ + 4 * (t % 8), "0" if t == 0 else None))
            if t + 7 < 16:
                wr(t + 7)
        for qq in range(4):
            k(f"ds_write_b128 v31, {vr(E_+4*qq,4)} offset:{1024*qq}")
        if first:
            k(f"""s_lshl_b32 s31, s3, 8
            s_add_u32 s31, s31, {CSP_L}
            v_lshlrev_b32 v9, 2, v1
            v_add_u32 v9, s31, v9
            ds_write_b32 v9, v224""")
        k(f"s_waitcnt lgkmcnt(0)\n{NOKV}:\ns_barrier")

    gemm2_compute(k, tag, ACC, XR, WF, 12, wloc_q, wt, filler=fill, extra=extra, groups=[0, 11, 15], rdy=rdy,
                  before_x=prepass_a, pre=prepass_b, ring=28, cpoll=16, cpoll_first=True,
                  late={46: lambda q: stats_loads(k, STT, "s3", 9, WS_ST[lin], q)}, fill_from=58)
    if first:
        k(f"""v_lshlrev_b32 v9, 2, v1
        v_add_u32 v9, {CSX_L}, v9
        s_lshl_b32 s31, s3, 9
        v_add_u32 v4, s31, v9
        ds_write_b32 v4, v{CA}
        ds_write_b32 v4, v{CA+4} offset:256
        s_waitcnt lgkmcnt(0)
        s_barrier""")
        for w in range(4):
            for bl in range(2):
                k(f"ds_read_b32 v{144+4*bl+w}, v9 offset:{512*w+256*bl}")
        k("s_waitcnt lgkmcnt(0)")
        for bl in range(2):
            t_ = 144 + 4 * bl
            k(f"v_add_f32 v{t_}, v{t_}, v{t_+1}\nv_add_f32 v{t_+2}, v{t_+2}, v{t_+3}\nv_add_f32 v{t_}, v{t_}, v{t_+2}")
            for l_ in hilo(t_, 251 + bl, 4) + cs_build(CS + 4 * bl, 251 + bl):
                k(l_)
    k(M32(ACC + 16, CS + 4, BOP))
    k(M32(ACC, CS, BOP))
    pk_mul(k, ACC + 16, ACC + 16, SC, 16)
    for i in range(8):
        k(f"v_cvt_pk_bf16_f32 v{88+i}, v{ACC+16+2*i}, v{ACC+16+2*i+1}")
    for t in range(2):
        k(f"ds_write_b128 v11, {vr(88+4*t,4)} offset:{1024*t}")
    pk_mul(k, ACC, ACC, SC, 16)
    for i in range(8):
        k(f"v_cvt_pk_bf16_f32 v{180+i}, v{ACC+2*i}, v{ACC+2*i+1}")
    k(f"s_branch {END}\n{LD}:")

    E = 32

    def g0(q):
        k("s_waitcnt vmcnt(16)\ns_barrier")
        rdy_poller(k, wt, rdy)
        S6, L6 = k.label("s6"), k.label("l6")
        k(f"""s_cmp_lg_u32 s3, 6
        s_cbranch_scc1 {S6}
        s_setprio 3
        v_mov_b32 v4, {rdy}
        {L6}:
        ds_read_b32 v5, v4
        s_waitcnt lgkmcnt(0)
        v_readfirstlane_b32 s63, v5
        s_cmp_gt_u32 s63, 15
        s_cbranch_scc0 {L6}
        s_and_b32 s49, s48, 3""")
        stats_loads(k, STT, "s49", 9, WS_ST[lin])
        k(f"""s_lshl_b32 s54, s4, 2
        s_add_u32 s54, s54, s48
        s_lshl_b32 s54, s54, 12
        s_add_u32 s54, s54, {hex(WS_KV[rep])}
        v_mul_u32_u24 v26, 72, v2
        v_lshl_add_u32 v26, v3, 3, v26
        v_add_u32 v26, {VT_B}, v26
        v_and_b32 v24, 15, v1
        v_lshrrev_b32 v25, 2, v24
        v_lshl_add_u32 v25, v3, 2, v25
        v_mul_u32_u24 v25, 72, v25
        v_and_b32 v24, 3, v24
        v_lshl_add_u32 v25, v24, 3, v25
        v_bfe_u32 v24, v1, 4, 1
        v_lshl_add_u32 v25, v24, 5, v25
        v_add_u32 v25, {VT_B}, v25
        s_waitcnt vmcnt(0)""")
        for l_ in ln_stats(STT, RSTD, BOP):
            k(l_)
        k(f"v_mov_b32 v{RSTD+1}, v{RSTD}")
        if not first:
            for l_ in cs_build(CS, 248):
                k(l_)
        k(f"{S6}:\ns_waitcnt vmcnt(0)\ns_barrier")

    def w1114():
        for st in (11, 12, 13, 14):
            k(f"s_add_u32 m0, s35, {wloc_q(st)}\ns_mov_b32 s38, {st*64*2048}")
            for jj in range(2):
                k(f"buffer_load_dwordx4 v{12+jj}, s[12:15], s38 offen offset:{1024*jj} lds")

    def kvfin(q):
        SK, S2, W6 = k.label("kvs"), k.label("kvs"), k.label("kvs")
        k(f"""s_cmp_ge_u32 s5, 8
        s_cbranch_scc1 {SK}
        s_cmp_eq_u32 s3, 6
        s_cbranch_scc1 {W6}""")
        w1114()
        k(f"s_branch {SK}\n{W6}:")
        k(f"v_add_u32 v9, {WKV_L}, v8")
        for w in range(4):
            for qq in range(4):
                k(f"ds_read_b128 {vr(E+16*w+4*qq,4)}, v9 offset:{16384*w+1024*qq}")
        if first:
            k(f"v_lshlrev_b32 v9, 2, v1\nv_add_u32 v9, {CSP_L}, v9")
            for w in range(4):
                k(f"ds_read_b32 v{100+w}, v9 offset:{256*w}")
        k("s_waitcnt lgkmcnt(0)")
        for i in range(0, 16, 2):
            k(f"v_pk_add_f32 {vr(E+i,2)}, {vr(E+i,2)}, {vr(E+16+i,2)}")
            k(f"v_pk_add_f32 {vr(E+32+i,2)}, {vr(E+32+i,2)}, {vr(E+48+i,2)}")
            k(f"v_pk_add_f32 {vr(E+i,2)}, {vr(E+i,2)}, {vr(E+32+i,2)}")
        if first:
            k("v_add_f32 v100, v100, v101\nv_add_f32 v102, v102, v103\nv_add_f32 v100, v100, v102")
            for l_ in hilo(100, 248, 4) + cs_build(CS, 248):
                k(l_)
        k(M32(E, CS, BOP))
        pk_mul(k, E, E, RSTD, 16)
        for i in range(8):
            k(f"v_cvt_pk_bf16_f32 v{96+i}, v{E+2*i}, v{E+2*i+1}")
        k(f"s_bitcmp1_b32 s5, 0\ns_cbranch_scc0 {SG}")
        for i in range(4):
            k(f"ds_write_b64 v26, {vr(96+2*i,2)} offset:{16*i}")
        k("s_waitcnt lgkmcnt(0)")
        for t in range(2):
            for e in range(2):
                k(f"ds_read_b64_tr_b16 {vr(96+4*t+2*e,2)}, v25 offset:{(16*t+8*e)*72}")
        k(f"s_waitcnt lgkmcnt(0)\ns_add_u32 s54, s54, 2048\n{SG}:")
        for t in range(2):
            k(f"buffer_store_dwordx4 {vr(96+4*t,4)}, v8, s[16:19], s54 offen offset:{1024*t} sc1")
        k("s_waitcnt vmcnt(0)\ns_mov_b32 s61, s35")
        signal(k, flag_off(rep, F_KVB), "s4")
        k("s_mov_b32 s35, s61")
        stamp(k, tag + "_kvsig")
        w1114()
        k(f"""{SK}:
        s_setprio 0
        s_waitcnt vmcnt(0)
        s_barrier
        s_cmp_ge_u32 s5, 8
        s_cbranch_scc1 {S2}
        s_add_u32 m0, s35, {wloc_q(15)}
        s_mov_b32 s38, {15*64*2048}""")
        for jj in range(2):
            k(f"buffer_load_dwordx4 v{12+jj}, s[12:15], s38 offen offset:{1024*jj} lds")
        k(f"{S2}:")
        NPK = k.label("npk")
        k(f"s_cmp_lg_u32 s3, 7\ns_cbranch_scc1 {NPK}")
        wait_flag(k, flag_off(rep, F_KVB), None, 8, True)
        stamp(k, tag + "_kvflag")
        k(f"""{NPK}:
        s_waitcnt vmcnt(0)
        s_barrier
        s_lshl_b32 s31, s30, 13
        s_add_u32 s39, s31, {hex(WS_KV[rep])}""")
        for hf in range(2):
            k(f"s_add_u32 m0, s31, {4096*hf}")
            for qq in range(4):
                k(f"buffer_load_dwordx4 v8, s[16:19], s39 offen offset:{1024*qq} sc1 lds")
            k("s_add_u32 s39, s39, 4096")

    gemm2_loader(k, tag, wloc_q, list(range(3, 11)) + [g0, kvfin])
    k("s_barrier\n" * (2 if first else 1) + f"{END}:")


def phase_attn(k, tag, rep, oi):
    name = k.label(tag)
    Q, NEG, SA, SB, P, O, L, ONE, KF, VF = 8, 16, 32, 48, 64, 80, 96, 100, 104, 120
    k(f"""
    s_lshr_b32 s36, s3, 2
    s_and_b32 s37, s3, 3
    s_lshl_b32 s38, s5, 1
    s_add_u32 s38, s38, s36
    s_lshl_b32 s39, s4, 2
    s_add_u32 s39, s39, s37
    v_lshlrev_b32 v128, 4, v1
    """)
    cnt = new_cnt()
    zero_cnt(k, cnt)
    k(f"""
    v_mov_b32 v4, v128
    s_lshl_b32 s30, s3, 12
    s_add_u32 s31, s30, {hex(WS_KV[rep] + 32768)}
    """)

    def dma():
        for q in range(4):
            k(f"buffer_load_dwordx4 v4, s[16:19], s31 offen offset:{1024*q} sc1 lds")
        k("s_add_u32 s31, s31, 32768")

    for c in range(2):
        k(f"s_add_u32 m0, s30, {32768*(c+1)}")
        dma()
    ones_pattern(k, ONE, 5, 6)
    for i in range(16):
        k(f"v_mov_b32 v{O+i}, 0")
    for i in range(4):
        k(f"v_mov_b32 v{L+i}, 0")
    for i in range(8):
        k(f"v_mov_b32 v{P+i}, 0")
    k(f"v_mov_b32 v129, v4\ns_waitcnt vmcnt(8) lgkmcnt(0)")
    stamp(k, tag + "_e2")
    k(f"""s_barrier
    s_cmp_ge_u32 s3, 4
    s_cbranch_scc1 {name}_qld
    """)
    for i in range(8):
        k(f"v_mov_b32 v{Q+i}, v{180+i}")
    k(f"""s_branch {name}_go
    {name}_qld:
    s_lshl_b32 s34, s37, 11
    s_add_u32 s34, s34, {QX_B}
    v_add_u32 v5, s34, v128
    ds_read_b128 {vr(Q,4)}, v5
    ds_read_b128 {vr(Q+4,4)}, v5 offset:1024
    {name}_go:""")
    stamp(k, tag + "_b0")
    K1, K2, V1, V2 = KF, KF + 4, VF, VF + 4
    k(f"""ds_read_b128 {vr(K1,4)}, v129
    ds_read_b128 {vr(K2,4)}, v129 offset:1024
    s_waitcnt lgkmcnt(0)
    """)
    k(M32(SA, K1, Q, "0"))
    k(M32(SA, K2, Q + 4))
    k(f"v_max3_f32 v5, v{SA}, v{SA+1}, v{SA+2}")
    for i in range(3, 15, 2):
        k(f"v_max3_f32 v5, v5, v{SA+i}, v{SA+i+1}")
    k(f"""v_max_f32 v5, v5, v{SA+15}
    v_mov_b32 v6, v5
    v_permlane32_swap_b32 v5, v6
    v_max_f32 v5, v5, v6
    """)
    for i in range(16):
        k(f"v_sub_f32 v{NEG+i}, 0, v5")
    for i in range(16):
        k(f"v_sub_f32 v{SA+i}, v{SA+i}, v5")
    if "at_prio" in sys.argv:
        k(f"s_cmp_lt_u32 s3, 4\ns_cbranch_scc1 {name}_pr\ns_setprio 1\n{name}_pr:")
    if rep == 0 and "warmA1" in sys.argv:
        k(f"s_cmp_lt_u32 s3, 4\ns_cbranch_scc1 {name}_nw")
        wqkv_warm(k, "s37")
        k(f"{name}_nw:")
    wpf_setup(k, P_WOB, 8, "s3")
    k(f"""s_mov_b32 s92, s24
    s_mov_b32 s93, s25
    s_mov_b32 s94, s26
    s_mov_b32 s95, 0x20000
    v_mov_b32 v130, v241
    s_add_u32 s96, s60, 131072
    s_mov_b32 s97, {12*131072}
    s_movk_i32 s98, 8192
    s_mov_b32 s99, 0x20000""")
    k(f"""ds_read_b128 {vr(V2,4)}, v129 offset:3072
    ds_read_b128 {vr(K1,4)}, v129 offset:4096
    ds_read_b128 {vr(K2,4)}, v129 offset:5120
    ds_read_b128 {vr(V1,4)}, v129 offset:2048
    s_mov_b32 s32, 0
    v_mov_b32 v5, v129
    v_add_u32 v6, 32768, v4
    s_mov_b32 s33, 0x18000
    {name}_loop:""")

    def ex(cur, a, b):
        for i in range(a, b):
            k(f"v_exp_f32 v{cur+i}, v{cur+i}")

    def cv(cur, a, b):
        for i in range(a, b):
            k(f"v_cvt_pk_bf16_f32 v{P+i}, v{cur+2*i}, v{cur+2*i+1}")

    def rd(dst, tile, part):
        if "at_nord" in sys.argv:
            return
        bb, oo = (5, tile * 4096) if tile < 8 else (6, (tile - 8) * 4096)
        k(f"ds_read_b128 {vr(dst,4)}, v{bb} offset:{oo+1024*part}")

    def slot():
        k("""s_mov_b32 m0, s96
        s_add_u32 s96, s96, s98
        buffer_load_dwordx4 v130, s[92:95], s97 offen sc1 lds
        s_add_u32 s97, s97, s99""")

    for j in range(8):
        cur, nxt = (SA, SB) if j % 2 == 0 else (SB, SA)
        k("s_waitcnt lgkmcnt(3)")
        k(M32(O, V2, P + 4))
        rd(V2, j, 3)
        ex(cur, 0, 4)
        k(M16(L, ONE, P + 4))
        ex(cur, 4, 6)
        if j == 6:
            k(f"""s_waitcnt vmcnt(4)
            s_barrier
            s_cmp_ge_u32 s32, 5
            s_cbranch_scc1 {name}_wm
            s_mov_b32 s92, s16
            s_mov_b32 s93, s17
            s_mov_b32 s94, s18
            v_mov_b32 v130, v4
            s_add_u32 s96, s30, s33
            s_mov_b32 s97, s31
            s_add_u32 s31, s31, 32768
            s_movk_i32 s98, 1024
            s_movk_i32 s99, 1024
            s_branch {name}_dd
            {name}_wm:
            s_mov_b32 s92, s24
            s_mov_b32 s93, s25
            s_mov_b32 s94, s26
            v_mov_b32 v130, v241
            s_sub_u32 s97, s32, 5
            s_lshl_b32 s96, s97, 15
            s_add_u32 s96, s96, s60
            s_lshl_b32 s97, s97, 19
            s_movk_i32 s98, 8192
            s_mov_b32 s99, 0x20000""")
            if rep == 0 and "warmF" in sys.argv:
                k(f"""s_cmp_lg_u32 s32, 5
                s_cbranch_scc1 {name}_dd
                s_cmp_lt_u32 s3, 4
                s_cbranch_scc1 {name}_dd""")
                warm(k, P_WQKV, "8x4", "s37")
            k(f"""{name}_dd:""")
        if j % 2 == 0:
            k(f"s_setprio {3 - ((j - 6) % 8) // 2}")
        k("s_waitcnt lgkmcnt(3)")
        k(M32(nxt, K1, Q, vr(NEG, 16)))
        rd(K1, j + 2, 0)
        ex(cur, 6, 8)
        cv(cur, 0, 4)
        k("s_waitcnt lgkmcnt(3)")
        k(M32(nxt, K2, Q + 4))
        rd(K2, j + 2, 1)
        ex(cur, 8, 12)
        if j in (6, 7, 0, 1):
            slot()
        k("s_waitcnt lgkmcnt(3)")
        k(M32(O, V1, P))
        rd(V1, j + 1, 2)
        ex(cur, 12, 16)
        k(M16(L, ONE, P))
        cv(cur, 4, 8)
        if j == 7:
            k(f"""
            v_mov_b32 v5, v6
            s_add_u32 s33, s33, 0x8000
            s_and_b32 s33, s33, 0x1ffff
            s_add_u32 s34, s33, 0x10000
            s_and_b32 s34, s34, 0x1ffff
            v_add_u32 v6, s34, v4
            s_add_u32 s32, s32, 1
            s_cmp_lt_u32 s32, 8
            s_cbranch_scc1 {name}_loop
            s_waitcnt lgkmcnt(0)
            s_barrier
            """)
    k(M32(O, V2, P + 4))
    k(M16(L, ONE, P + 4))
    slot()
    slot()
    wpf_issue(k, [14], wloc_b, 8)
    stamp(k, tag + "_loopend")
    k("s_setprio 0")
    k(f"v_max3_f32 v5, abs(v{O}), abs(v{O+1}), abs(v{O+2})")
    for i in range(3, 15, 2):
        k(f"v_max3_f32 v5, v5, abs(v{O+i}), abs(v{O+i+1})")
    k(f"""v_max3_f32 v5, v5, abs(v{O+15}), v{L}
    v_mov_b32 v6, 0
    """)
    for i in range(16):
        k(f"v_fma_f32 v6, v{O+i}, 0, v6")
    k(f"""v_fma_f32 v6, v{L}, 0, v6
    v_add_f32 v5, v5, v6
    s_mov_b32 s34, {f32(2.0**100 if 'forceslow' not in sys.argv else 0.0)}
    v_cmp_nlt_f32 vcc, v5, s34
    s_cbranch_vccz {name}_fin
    """)
    for i in range(16):
        k(f"v_mov_b32 v{O+i}, 0")
    for i in range(4):
        k(f"v_mov_b32 v{L+i}, 0")
    k(f"""v_mov_b32 v7, 0xff800000
    s_mov_b32 s31, {hex(WS_KV[rep])}
    s_mov_b32 s32, 0
    {name}_sloop:
    buffer_load_dwordx4 {vr(KF,4)}, v4, s[16:19], s31 offen sc1
    buffer_load_dwordx4 {vr(KF+4,4)}, v4, s[16:19], s31 offen offset:1024 sc1
    buffer_load_dwordx4 {vr(VF,4)}, v4, s[16:19], s31 offen offset:2048 sc1
    buffer_load_dwordx4 {vr(VF+4,4)}, v4, s[16:19], s31 offen offset:3072 sc1
    s_waitcnt vmcnt(0)
    """)
    k(M32(SA, KF, Q, "0"))
    k(M32(SA, KF + 4, Q + 4))
    k(f"v_max3_f32 v5, v{SA}, v{SA+1}, v{SA+2}")
    for i in range(3, 15, 2):
        k(f"v_max3_f32 v5, v5, v{SA+i}, v{SA+i+1}")
    k(f"""v_max_f32 v5, v5, v{SA+15}
    v_mov_b32 v6, v5
    v_permlane32_swap_b32 v5, v6
    v_max3_f32 v5, v5, v6, v7
    v_sub_f32 v6, v7, v5
    v_exp_f32 v6, v6
    v_mov_b32 v7, v5
    """)
    for i in range(16):
        k(f"v_sub_f32 v{SA+i}, v{SA+i}, v5")
    for i in range(16):
        k(f"v_exp_f32 v{SA+i}, v{SA+i}")
    for i in range(16):
        k(f"v_mul_f32 v{O+i}, v{O+i}, v6")
    for i in range(4):
        k(f"v_mul_f32 v{L+i}, v{L+i}, v6")
    for i in range(8):
        k(f"v_cvt_pk_bf16_f32 v{P+i}, v{SA+2*i}, v{SA+2*i+1}")
    k(M32(O, VF, P))
    k(M16(L, ONE, P))
    k(M32(O, VF + 4, P + 4))
    k(M16(L, ONE, P + 4))
    k(f"""s_add_u32 s31, s31, 4096
    s_add_u32 s32, s32, 1
    s_cmp_lt_u32 s32, 64
    s_cbranch_scc1 {name}_sloop
    {name}_fin:
    v_rcp_f32 v6, v{L}
    s_lshl_b32 s34, s39, 16
    s_lshl_b32 s35, s38, 11
    s_add_u32 s34, s34, s35
    s_add_u32 s34, s34, {hex(WS_O[oi])}
    v_mov_b32 v7, v6
    """)
    pk_mul(k, O, O, 6, 16)
    for i in range(8):
        k(f"v_cvt_pk_bf16_f32 v{P+i}, v{O+2*i}, v{O+2*i+1}")
    for t in range(2):
        k(f"buffer_store_dwordx4 {vr(P+4*t,4)}, v4, s[16:19], s34 offen offset:{1024*t} sc1")
    stamp(k, tag + "_st")
    k("s_waitcnt vmcnt(0)")
    stamp(k, tag + "_drain")
    signal(k, flag_off(rep, F_OB), "s4", 8, cnt, "s5" if STAGED else None)


def prep_jobs(k):
    def j_zero(q):
        k(f"""s_lshl_b32 s56, s2, 2
        s_add_u32 s56, s56, s30
        s_mul_i32 s56, s56, 48
        s_add_u32 s56, s56, {hex(WS_FL)}
        v_min_u32 v25, 11, v1
        v_lshlrev_b32 v25, 2, v25
        v_mov_b32 v26, 0
        buffer_store_dword v26, v25, s[16:19], s56 offen sc1""")
        q.add("jst")

    def j_wait(q):
        k(f"s_waitcnt vmcnt({q.cnt('jst')})")
        stamp(k, "job_drained")

    def j_sig(q):
        srd(k, 24, P_DBG, 256)
        k(f"""s_and_b32 s56, s2, 1
        s_lshl_b32 s56, s56, 7
        s_cmp_eq_u32 s3, 4
        s_cselect_b32 s56, s56, 0x7ffff000
        v_mov_b32 v4, 1
        v_mov_b32 v5, 0
        s_mov_b64 exec, 1
        buffer_atomic_add v4, v5, s[24:27], s56 offen sc1
        s_mov_b64 exec, -1""")
        q.add("jsig")

    def j_poll(q):
        L = k.label("ipoll")
        stamp(k, "job_prepoll")
        k(f"""s_cmp_lg_u32 s3, 4
        s_cbranch_scc1 {L}_ok
        v_and_b32 v4, 1, v1
        v_lshlrev_b32 v4, 7, v4
        s_mov_b32 s53, 0
        {L}:
        buffer_load_dword v5, v4, s[24:27], 0 offen sc1
        s_waitcnt vmcnt(0)
        v_cmp_gt_u32 vcc, 128, v5
        s_cbranch_vccz {L}_ok
        s_sleep 4
        s_add_u32 s53, s53, 1
        s_cmp_lt_u32 s53, 0x40000
        s_cbranch_scc1 {L}
        {L}_ok:""")
        stamp(k, "job_polled")

    return {0: j_zero, 3: j_wait, 5: j_sig, 9: j_poll}


def phase_qkva(k, tag, rep, lin, oi, wt):
    R, STG = 4, 40960
    LD, J0, J1, J2, NP = [k.label(tag + x) for x in ("_ld", "_j0", "_j1", "_j2", "_np")]
    tile_map(k, "4x8" if "qa48" in sys.argv else ("2x16" if "qa216" in sys.argv else "8x4"))
    first = lin == 0
    if first:
        srd(k, 8, P_X, S * D * 2)
    else:
        srd_off(k, 8, P_WS, WS_X[lin], S * D * 2)
    srd(k, 12, P_WQKV, D * 3 * D * 2)
    srd(k, 20, P_WPHI, H * DH * DH * 2)
    k(f"""
    s_bfe_u32 s48, s3, 0x10001
    s_and_b32 s49, s3, 1
    s_lshl_b32 s50, s5, 1
    s_add_u32 s50, s50, s49
    s_lshl_b32 s51, s48, 1
    s_lshr_b32 s31, s3, 2
    s_add_u32 s51, s51, s31
    """)
    STT, CS, WP = 176, 208, 220
    QXL = 51200
    KVL = 69632
    cnt_col, cnt_o, rdy_c = new_cnt(), new_cnt(), new_cnt()
    RSTD = [168, 170]
    LC = 172
    BOP = [240, 244]
    addr_setup = lines(f"""
    s_lshl_b32 s35, s51, 5
    v_add_u32 v238, s35, v2
    v_mul_u32_u24 v238, 200, v238
    v_lshl_add_u32 v238, v3, 3, v238
    s_mul_i32 s35, s49, 25600
    v_add_u32 v238, s35, v238
    s_and_b32 s35, s3, 3
    s_lshl_b32 s35, s35, 12
    s_add_u32 s35, s35, {QXL}
    v_lshlrev_b32 v239, 4, v1
    v_add_u32 v239, s35, v239
    """)
    wp_pack = [f"v_lshl_or_b32 v{WP+i}, v{WP+2*i+1}, 16, v{WP+2*i}" for i in range(8)]
    k(f"s_cmp_ge_u32 s3, 4\ns_cbranch_scc1 {LD}")
    LCL = QXL + 16384
    STL, CSL = 81920, 83968
    wphi_loads(k, WP, "s50")
    if first:
        k("s_lshl_b32 s35, s48, 6")
        x_addr(k, 12, "s35")
        k("s_lshl_b32 s35, s49, 6")
        w_tr_base(k, 16, "s35", 128, True, hs=3)
    else:
        k(f"""v_lshlrev_b32 v12, 4, v1
        s_lshl_b32 s35, s48, 13
        v_add_u32 v12, s35, v12
        s_lshl_b32 s35, s49, 6""")
        w_tr_base(k, 13, "s35", 128, True)
    ACC = 32
    for i in range(96):
        k(f"v_mov_b32 v{ACC+i}, 0")

    def acc(p, b):
        return ACC + 32 * p + 16 * b

    def mf(fr, t):
        return [M32(acc(p, b), fr + 8 + 4 * p, fr + 4 * b) for p in range(3) for b in range(2)]

    def st_l(kk=k):
        stats_loads(kk, STT, "s51", 10, WS_ST[lin])
        kk("s_add_u32 s31, s51, 1")
        stats_loads(kk, STT + 16, "s31", 10, WS_ST[lin])

    SL = 0
    tail = lines(f"""v_lshlrev_b32 v237, 2, v1
    s_lshl_b32 s35, s51, 9
    v_add_u32 v236, s35, v237
    ds_read_b32 v{RSTD[0]}, v236 offset:{SL}
    ds_read_b32 v{BOP[0]}, v236 offset:{SL+256}
    ds_read_b32 v{RSTD[1]}, v236 offset:{SL+512}
    ds_read_b32 v{BOP[1]}, v236 offset:{SL+768}""")
    if first:
        tail += ["s_mul_i32 s35, s49, 768", "v_add_u32 v236, s35, v237"]
        tail += [f"ds_read_b32 v{248+p}, v236 offset:{SL+2048+256*p}" for p in range(3)]
    tail += ["s_waitcnt vmcnt(0)"] + wp_pack + addr_setup + ["s_waitcnt lgkmcnt(0)"]
    for b in range(2):
        tail += [f"v_mov_b32 v{RSTD[b]+1}, v{RSTD[b]}"] + [f"v_mov_b32 v{BOP[b]+i}, v{BOP[b]}" for i in (1, 2, 3)]
    tail += [f"v_mul_f32 v{LC}, {f32(LOG2E)}, v{RSTD[0]}", f"v_mov_b32 v{LC+1}, v{LC}"]
    for p in range(3):
        tail += cs_build(CS + 4 * p, 248 + p)
    wl = [(1, 16384, 128), (1, 16384 + 8192, 128), (1, 16384 + 16384, 128)]
    if first:
        def touch2():
            if "notouch2" in sys.argv:
                return
            k(f"""s_lshl_b32 s34, s2, 2
            s_add_u32 s34, s34, s30
            s_lshl_b32 s37, s34, 11
            v_lshlrev_b32 v10, 4, v1""")
            for pw in (P_WOA, P_WQ, P_WOB):
                srd(k, 24, pw, D * D * 2)
                for i in range(2):
                    k(f"buffer_load_dwordx4 v[244:247], v10, s[24:27], s37 offen offset:{1024*i}")
            for pw in (P_WK, P_WV):
                srd(k, 24, pw, D * 32 * 2)
                k(f"buffer_load_dwordx4 v[244:247], v10, s[24:27], s37 offen")
                k(f"buffer_load_dwordx4 v[244:247], v10, s[24:27], s37 offen offset:1024")

        CA, SX, SQ, ON, TT = 176, 184, 188, 192, 196
        ones_pattern(k, ON, 4, 5)
        for i in range(176, 192):
            k(f"v_mov_b32 v{i}, 0")

        def mf0(fr, t):
            o = mf(fr, t)
            L1, L2, L3, L4 = [k.label("st") for _ in range(4)]

            def xs(b):
                r_ = M16(SX, ON, fr + 4 * b) + "\n"
                for i in range(4):
                    r_ += f"v_lshlrev_b32 v{TT+2*i}, 16, v{fr+4*b+i}\nv_and_b32 v{TT+2*i+1}, 0xffff0000, v{fr+4*b+i}\n"
                for i in range(8):
                    r_ += f"v_fmac_f32 v{SQ+(i&3)}, v{TT+i}, v{TT+i}\n"
                return r_
            o[4] += f"""
            s_cmp_eq_u32 s49, 0
            s_cbranch_scc0 {L1}
            {xs(0)}
            s_branch {L2}
            {L1}:
            {xs(1)}
            {L2}:"""
            o[5] += f"""
            s_cmp_eq_u32 s48, 0
            s_cbranch_scc0 {L3}
            {M16(CA, ON, fr + 8)}
            {M16(CA + 4, ON, fr + 12)}
            s_branch {L4}
            {L3}:
            {M16(CA, ON, fr + 16)}
            {L4}:"""
            return o

        def publish():
            k(f"""v_add_f32 v{SQ}, v{SQ}, v{SQ+1}
            v_add_f32 v{SQ+2}, v{SQ+2}, v{SQ+3}
            v_add_f32 v{SQ}, v{SQ}, v{SQ+2}
            v_mov_b32 v{SQ+1}, v{SQ}
            s_add_u32 s34, s4, s5
            s_and_b32 s34, s34, 15
            v_permlane32_swap_b32 v{SQ}, v{SQ+1}
            s_lshl_b32 s35, s4, 14
            s_lshl_b32 s36, s34, 10
            s_add_u32 s35, s35, s36
            s_lshl_b32 s36, s3, 8
            s_add_u32 s35, s35, s36
            s_add_u32 s35, s35, {hex(WS_ST[0])}
            v_add_f32 v{SQ}, v{SQ}, v{SQ+1}
            v_cndmask_b32 v{SQ}, v{SX}, v{SQ}, s[40:41]
            v_lshlrev_b32 v10, 2, v1
            buffer_store_dword v{SQ}, v10, s[16:19], s35 offen sc1
            s_mul_i32 s35, s50, 6144
            s_lshl_b32 s36, s34, 7
            s_add_u32 s35, s35, s36
            s_lshl_b32 s36, s48, 12
            s_add_u32 s35, s35, s36
            s_add_u32 s35, s35, {hex(WS_CSA)}
            s_cmp_eq_u32 s48, 0
            s_cselect_b32 s36, s35, 0x7ffff000
            v_lshlrev_b32 v10, 2, v2
            buffer_store_dword v{CA}, v10, s[16:19], s35 offen sc1
            buffer_store_dword v{CA+4}, v10, s[16:19], s36 offen offset:2048 sc1""")
            if "warmA0" in sys.argv:
                wqkv_warm(k, "s3")

        gemm_compute(k, R, STG, 1, [12, 13, 14, 15, 16], [0, 4096], wl, 128, mf, 20, 17, tag, nbuf=2, per=2,
                     filler=tail, e2=False, rm=True, pre_m=2,
                     at_iter=[(3, lambda: k("s_waitcnt vmcnt(0)"))], mf_first=mf0, after_first=publish)
    else:
        gemm_compute(k, R, STG, 1, [12, 13], [0, 4096], wl, 128, mf, 20, 20, tag, nbuf=2, per=2,
                     filler=tail, e2=False, pre_m=2)
    for p, b in ((1, 1), (0, 1), (1, 0), (2, 0), (2, 1), (0, 0)):
        k(M32(acc(p, b), CS + 4 * p, BOP[b]))
    k(f"""v_lshlrev_b32 v4, 3, v1
    v_mov_b32 v6, 0
    v_mov_b32 v7, 0
    ds_write_b64 v4, v[6:7] offset:{KVL+8192-65536+65536 if KVL+8192 < 65536 else 0}""" if False else "")
    k(f"""v_lshlrev_b32 v4, 3, v1
    v_add_u32 v4, {KVL+8192}, v4
    v_mov_b32 v6, 0
    v_mov_b32 v7, 0
    ds_write_b64 v4, v[6:7]""")
    zero_cnt(k, cnt_col)
    zero_cnt(k, cnt_o)
    zero_cnt(k, rdy_c)
    for p, d_ in ((1, 128), (0, 136)):
        for i in range(8):
            k(f"v_cvt_pk_bf16_f32 v{d_+i}, v{acc(p,1)+2*i}, v{acc(p,1)+2*i+1}")
        for t in range(2):
            k(f"ds_write_b128 v239, {vr(d_+4*t,4)} offset:{(d_-128)*256+1024*t}")
    for i in range(8):
        k(f"v_cvt_pk_bf16_f32 v{144+i}, v{acc(1,0)+2*i}, v{acc(1,0)+2*i+1}")
    k("s_waitcnt lgkmcnt(0)\ns_barrier")
    stamp(k, tag + "_ba")
    k(M32(acc(1, 0), WP, 144, "0"))
    k(M32(acc(1, 0), WP + 4, 148))
    for b in range(2):
        pk_mul(k, acc(2, b), acc(2, b), RSTD[b], 16)
        for i in range(8):
            k(f"v_cvt_pk_bf16_f32 v{128+8*b+i}, v{acc(2,b)+2*i}, v{acc(2,b)+2*i+1}")
        for i in range(4):
            k(f"ds_write_b64 v238, {vr(128+8*b+2*i,2)} offset:{6400*b+128+16*i}")
    for i in range(8):
        k(f"v_cvt_pk_bf16_f32 v{160+i}, v{acc(0,0)+2*i}, v{acc(0,0)+2*i+1}")
    KRAW = acc(1, 0)
    k(f"s_branch {J0}\n{LD}:")

    def l2pf(q):
        if "l2pf" not in sys.argv:
            return
        if not first:
            stage_poll(k, 15)
        if first:
            k(f"""s_and_b32 s56, s5, 3
            s_lshl_b32 s56, s56, 2
            s_add_u32 s56, s56, s30
            s_lshl_b32 s56, s56, 14
            s_lshl_b32 s57, s4, 18
            s_add_u32 s56, s56, s57""")
        else:
            k(f"""s_and_b32 s56, s5, 3
            s_lshl_b32 s56, s56, 2
            s_add_u32 s56, s56, s30
            s_lshl_b32 s56, s56, 14
            s_lshl_b32 s57, s4, 18
            s_add_u32 s56, s56, s57""")
        k(f"""v_lshlrev_b32 v240, 7, v1
        buffer_load_dword v244, v240, s[8:11], s56 offen
        s_add_u32 s56, s56, 8192
        buffer_load_dword v244, v240, s[8:11], s56 offen
        s_and_b32 s56, s4, 7
        s_lshl_b32 s56, s56, 2
        s_add_u32 s56, s56, s30
        s_mul_i32 s56, s56, {32*6144}
        s_lshl_b32 s57, s5, 7
        s_add_u32 s56, s56, s57
        v_and_b32 v240, 31, v1
        v_mul_u32_u24 v240, 6144, v240
        v_lshl_add_u32 v240, v3, 11, v240
        buffer_load_dword v244, v240, s[12:15], s56 offen
        s_add_u32 s56, s56, 4096
        buffer_load_dword v244, v240, s[12:15], s56 offen""")
        q.add("pf", 4)

    def ls_load(q):
        if not first:
            stage_poll(k, 15)
        stats_loads(k, STT, "s30", 10, WS_ST[lin], q)
        if first:
            k(f"""v_lshlrev_b32 v9, 2, v2
            v_lshl_add_u32 v9, v3, 10, v9
            s_mul_i32 s54, s50, 6144
            s_lshl_b32 s55, s48, 12
            s_add_u32 s54, s54, s55
            s_add_u32 s54, s54, {hex(WS_CSA)}""")
            for p in range(2):
                for i in range(8):
                    k(f"buffer_load_dword v{32+8*p+i}, v9, s[16:19], s54 offen offset:{2048*p+128*i} sc1")
                    q.add("stats")

    def ls_work(q):
        k(f"s_setprio 2\ns_waitcnt vmcnt({q.cnt('stats')})")
        for l_ in ln_stats(STT, 64, 68):
            k(l_)
        k(f"""v_lshlrev_b32 v237, 2, v1
        s_lshl_b32 s54, s30, 9
        v_add_u32 v236, s54, v237
        ds_write_b32 v236, v64 offset:{SL}
        ds_write_b32 v236, v68 offset:{SL+256}""")
        if first:
            SK = k.label("lsk")
            k(f"""s_mul_i32 s54, s49, 768
            s_lshl_b32 s55, s48, 9
            s_add_u32 s54, s54, s55
            v_add_u32 v236, s54, v237""")
            for p in range(2):
                c_ = 32 + 8 * p
                if p == 1:
                    k(f"s_cmp_lg_u32 s48, 0\ns_cbranch_scc1 {SK}")
                for st_ in (4, 2, 1):
                    for i in range(st_):
                        k(f"v_add_f32 v{c_+i}, v{c_+i}, v{c_+i+st_}")
                k(f"v_mov_b32 v{c_+1}, v{c_}\nv_permlane32_swap_b32 v{c_}, v{c_+1}\nv_add_f32 v{c_}, v{c_}, v{c_+1}")
                for l_ in hilo(c_, c_ + 2, c_ + 1):
                    k(l_)
                k(f"ds_write_b32 v236, v{c_+2} offset:{SL+2048+256*p}")
            k(f"{SK}:")
        k("s_waitcnt lgkmcnt(0)\ns_setprio 0")

    if first:
        mid_ = prep_jobs(k)
        mid_.update({10: ls_load, 13: ls_work, 14: lambda q: (touch2(), q.add('t', 10))})
        gemm_loader(k, 3, 6144, R, STG, False, False, tag, None, pre=lambda: wphi_loads(k, WP, "s50"),
                    mid=mid_, rm=True)
    else:
        gemm_loader(k, 3, 6144, R, STG, False, False, tag, wt, pre=lambda: wphi_loads(k, WP, "s50"), staged=STAGED,
                    mid={9: ls_load, 13: ls_work})
    for l_ in addr_setup + wp_pack:
        k(l_)
    k(f"""s_lshl_b32 s35, s51, 9
    v_add_u32 v236, s35, v237
    ds_read_b32 v{LC}, v236 offset:{SL}
    s_waitcnt lgkmcnt(0)
    v_mul_f32 v{LC}, {f32(LOG2E)}, v{LC}
    v_mov_b32 v{LC+1}, v{LC}""")
    wpf_setup(k, P_WOA, 4, "s30")
    k("s_barrier\ns_barrier")
    k(f"""ds_read_b128 {vr(144,4)}, v239
    ds_read_b128 {vr(148,4)}, v239 offset:1024
    ds_read_b128 {vr(160,4)}, v239 offset:2048
    ds_read_b128 {vr(164,4)}, v239 offset:3072
    s_waitcnt lgkmcnt(2)""")
    k(M32(KRAW, WP, 144, "0"))
    k(M32(KRAW, WP + 4, 148))
    k(f"{J0}:")
    feat_map(k, KRAW, LC, 176, 144)
    for s_ in range(2):
        for i in range(4):
            k(f"ds_write_b64 v238, {vr(144+8*s_+2*i,2)} offset:{64*s_+16*i}")
    QRAW = 96
    k("s_waitcnt lgkmcnt(8)")
    k(M32(QRAW, WP, 160, "0"))
    k(M32(QRAW, WP + 4, 164))
    k(f"""
    v_and_b32 v4, 15, v1
    v_lshrrev_b32 v5, 2, v4
    v_lshl_add_u32 v5, v5, 3, v3
    v_mul_u32_u24 v5, 200, v5
    v_and_b32 v6, 3, v4
    v_lshl_add_u32 v5, v6, 3, v5
    v_bfe_u32 v7, v1, 4, 1
    v_lshl_add_u32 v5, v7, 5, v5
    s_mul_i32 s35, s49, 25600
    v_add_u32 v14, s35, v5
    s_lshl_b32 s35, s48, 6
    v_add_u32 v15, s35, v14
    """)
    ones_pattern(k, 24, 28, 29)
    k(f"""
    s_lshl_b32 s36, s50, 16
    s_lshl_b32 s35, s4, 12
    s_add_u32 s36, s36, s35
    s_lshl_b32 s35, s48, 11
    s_add_u32 s36, s36, s35
    s_add_u32 s36, s36, {hex(WS_KVP[rep])}
    s_lshl_b32 s39, s50, 12
    s_lshl_b32 s35, s4, 8
    s_add_u32 s39, s39, s35
    s_lshl_b32 s35, s48, 7
    s_add_u32 s39, s39, s35
    s_add_u32 s39, s39, {hex(WS_ZP[rep])}
    v_lshlrev_b32 v11, 2, v2
    v_lshlrev_b32 v10, 4, v1
    s_waitcnt lgkmcnt(0)
    s_barrier
    """)
    stamp(k, tag + "_bb")
    PHQ = 144
    k(f"s_cmp_ge_u32 s3, 4\ns_cbranch_scc1 {J1}")
    KVA, ZA = 32, 48
    FR = [176 + 8 * i for i in range(4)]

    def trr(s_):
        blk, t = s_ >> 1, s_ & 1
        f = FR[s_ % 4]
        for rd in range(2):
            off = (32 * blk + 4 * t + 2 * rd) * 200
            k(f"ds_read_b64_tr_b16 {vr(f+2*rd,2)}, v15 offset:{off}")
            k(f"ds_read_b64_tr_b16 {vr(f+4+2*rd,2)}, v14 offset:{off+128}")

    for s_ in range(3):
        trr(s_)
    for s_ in range(8):
        rem = min(7, s_ + 2) - s_
        k(f"s_waitcnt lgkmcnt({4*rem})")
        f = FR[s_ % 4]
        k(M32(KVA, f, f + 4, "0" if s_ == 0 else None))
        k(M16(ZA, 24, f, "0" if s_ == 0 else None))
        if s_ + 3 < 8:
            trr(s_ + 3)
    k(f"buffer_store_dword v{ZA}, v11, s[16:19], s39 offen sc1")
    for i in range(8):
        k(f"v_cvt_pk_bf16_f32 v{56+i}, v{KVA+2*i}, v{KVA+2*i+1}")
    for q in range(2):
        k(f"buffer_store_dwordx4 {vr(56+4*q,4)}, v10, s[16:19], s36 offen offset:{1024*q} sc1")
    stamp(k, tag + "_kvst")
    feat_map(k, QRAW, LC, 176, PHQ)
    k("s_waitcnt vmcnt(0)")
    stamp(k, tag + "_kvdrain")
    signal(k, flag_off(rep, F_COL), "s5", 4, cnt_col, "s4")
    k(f"s_branch {NP}\n{J1}:")
    wpf_issue(k, ORD_A[:9], wloc_a, 4)
    feat_map(k, QRAW, LC, 176, PHQ)
    rdy_poller(k, (flag_off(rep, F_COL), "s5"), rdy_c)
    k(f"{NP}:")
    k(f"""
    s_lshr_b32 s36, s3, 2
    s_and_b32 s37, s3, 3
    s_lshl_b32 s38, s5, 1
    s_add_u32 s38, s38, s36
    v_lshlrev_b32 v11, 2, v1
    s_lshl_b32 s34, s38, 16
    s_lshl_b32 s35, s37, 10
    s_add_u32 s34, s34, s35
    s_add_u32 s34, s34, {hex(WS_KVP[rep])}
    s_lshl_b32 s39, s38, 12
    s_add_u32 s39, s39, s35
    s_add_u32 s39, s39, {hex(WS_ZP[rep])}
    v_mov_b32 v4, {rdy_c}
    s_mov_b32 s63, 0
    """)
    for rt in range(16):
        L = k.label("cp")
        k(f"""s_cmp_gt_u32 s63, {rt}
        s_cbranch_scc1 {L}_ok
        {L}:
        ds_read_b32 v5, v4
        s_waitcnt lgkmcnt(0)
        v_readfirstlane_b32 s63, v5
        s_cmp_gt_u32 s63, {rt}
        s_cbranch_scc0 {L}
        {L}_ok:""")
        if rt == 15:
            stamp(k, tag + "_e2a")
            for q in range(4):
                k(f"buffer_load_dword v{24+q}, v11, s[16:19], s39 offen offset:{256*q} sc1")
        k(f"buffer_load_dwordx4 {vr(48+4*rt,4)}, v10, s[16:19], s34 offen sc1")
        k("s_add_u32 s34, s34, 4096")
    for i in range(8):
        k(f"v_mov_b32 v{32+i}, 0")
    k(f"""s_mov_b32 s52, 0x3f80
    s_mov_b32 s53, 0x3f800000
    s_lshl_b32 s35, s36, 8
    s_add_u32 s35, s35, {KVL+8192}
    v_add_u32 v13, s35, v11
    s_lshl_b32 s35, s3, 10
    s_add_u32 s35, s35, {KVL}
    v_add_u32 v12, s35, v10""")
    for rt in range(15):
        k(f"s_waitcnt vmcnt({15-rt+4})")
        for i in range(4):
            k(f"v_dot2_f32_bf16 v{32+2*i}, v{48+4*rt+i}, s52, v{32+2*i}")
            k(f"v_dot2_f32_bf16 v{33+2*i}, v{48+4*rt+i}, s53, v{33+2*i}")
    k(f"""s_waitcnt vmcnt(1)
    v_add_f32 v24, v24, v25
    v_add_f32 v26, v26, v27
    v_add_f32 v24, v24, v26
    ds_add_f32 v13, v24""")
    for rt in range(15, 16):
        k(f"s_waitcnt vmcnt({15-rt})")
        for i in range(4):
            k(f"v_dot2_f32_bf16 v{32+2*i}, v{48+4*rt+i}, s52, v{32+2*i}")
            k(f"v_dot2_f32_bf16 v{33+2*i}, v{48+4*rt+i}, s53, v{33+2*i}")
    for i in range(4):
        k(f"v_cvt_pk_bf16_f32 v{40+i}, v{32+2*i}, v{33+2*i}")
    KV, ZF, ZT = 32, 48, 64
    k(f"""
    ds_write_b128 v12, v[40:43]
    s_lshl_b32 s35, s49, 12
    s_add_u32 s35, s35, {KVL}
    v_add_u32 v12, s35, v10
    s_lshl_b32 s35, s49, 8
    s_add_u32 s35, s35, {KVL+8192}
    v_lshlrev_b32 v13, 4, v3
    v_add_u32 v13, s35, v13
    s_lshl_b32 s36, s4, 2
    s_add_u32 s36, s36, s51
    s_lshl_b32 s36, s36, 16
    s_lshl_b32 s35, s50, 11
    s_add_u32 s36, s36, s35
    s_add_u32 s36, s36, {hex(WS_O[oi])}
    s_waitcnt lgkmcnt(0)
    s_barrier
    """)
    stamp(k, tag + "_bc")
    for s_ in range(4):
        k(f"ds_read_b128 {vr(KV+4*s_,4)}, v12 offset:{1024*s_}")
    for se in range(8):
        k(f"ds_read_b128 {vr(ZT+4*se,4)}, v13 offset:{32*se}")
    NUM, DEN = 176, 96
    k("s_waitcnt lgkmcnt(8)")
    for s_ in range(4):
        k(M32(NUM, KV + 4 * s_, PHQ + 4 * s_, "0" if s_ == 0 else None))
    k("s_waitcnt lgkmcnt(0)\ns_barrier")
    for i in range(16):
        k(f"v_cvt_pk_bf16_f32 v{ZF+i}, v{ZT+2*i}, v{ZT+2*i+1}")
    for s_ in range(4):
        k(M32(DEN, ZF + 4 * s_, PHQ + 4 * s_, "0" if s_ == 0 else None))
    k(f"v_add_f32 v{DEN}, {f32(1e-6)}, v{DEN}\nv_rcp_f32 v{DEN}, v{DEN}\nv_mov_b32 v{DEN+1}, v{DEN}")
    pk_mul(k, NUM, NUM, DEN, 16)
    for i in range(8):
        k(f"v_cvt_pk_bf16_f32 v{112+i}, v{NUM+2*i}, v{NUM+2*i+1}")
    for t in range(2):
        k(f"buffer_store_dwordx4 {vr(112+4*t,4)}, v10, s[16:19], s36 offen offset:{1024*t} sc1")
    stamp(k, tag + "_st")
    k("s_waitcnt vmcnt(0)")
    stamp(k, tag + "_drain")
    signal(k, flag_off(rep, F_OA), "s4", 8, cnt_o, "s5" if STAGED else None)


def gen_mega():
    k = Kern("interleave_layers__linear_kernel_hedgehog__grouped_kv_mqa__prompt_kernel")
    k(f"""
    s_cmp_ge_u32 s2, 256
    s_cbranch_scc1 mega_exit
    s_load_dwordx16 s[64:79], s[0:1], 0
    s_load_dwordx8 s[80:87], s[0:1], 64
    v_lshrrev_b32 v1, 6, v0
    s_nop 0
    v_readfirstlane_b32 s3, v1
    v_and_b32 v1, 63, v0
    v_and_b32 v2, 31, v1
    v_lshrrev_b32 v3, 5, v1
    v_cmp_eq_u32 s[40:41], 1, v3
    s_waitcnt lgkmcnt(0)
    """)
    if PROF:
        k("v_mov_b32 v255, 0\nv_mov_b32 v254, 0\ns_memrealtime s[88:89]\ns_waitcnt lgkmcnt(0)\nv_writelane_b32 v255, s88, 0")
        stamp(k, "start")
    srd(k, 16, P_WS, WS_END)
    for rep in range(2):
        lin = 2 * rep
        phase_qkva(k, f"qa{rep}", rep, lin, 2 * rep, (flag_off(0, F_XB), "s4", 16) if rep else None)
        phase_wo(k, f"wa{rep}", P_WOA, lin, 2 * rep, (flag_off(rep, F_OA), "s4", 16), flag_off(rep, F_XA), False)
        phase_qkvb(k, f"qb{rep}", rep, lin + 1, (flag_off(rep, F_XA), "s4", 16))
        phase_attn(k, f"at{rep}", rep, 2 * rep + 1)
        phase_wo(k, f"wb{rep}", P_WOB, lin + 1, 2 * rep + 1, (flag_off(rep, F_OB), "s4", 16), flag_off(rep, F_XB),
                 rep == 1)
    stamp(k, "end")
    if PROF:
        k(f"""s_memrealtime s[88:89]
        s_waitcnt lgkmcnt(0)
        v_writelane_b32 v255, s88, 1
        s_add_u32 s84, s{P_WS}, {hex(WS_PROF)}
        s_addc_u32 s85, s{P_WS+1}, 0
        s_and_b32 s85, s85, 0xffff
        s_mov_b32 s86, 0x100000
        s_mov_b32 s87, 0x20000
        s_lshl_b32 s88, s2, 3
        s_add_u32 s88, s88, s3
        s_lshl_b32 s88, s88, 9
        v_lshlrev_b32 v0, 2, v1
        buffer_store_dword v255, v0, s[84:87], s88 offen
        buffer_store_dword v254, v0, s[84:87], s88 offen offset:256""")
    k("mega_exit:\ns_endpgm")
    return k, (256, 512, 163840)


def main():
    ks = [gen_mega()]
    hdr = open("interleave_layers__linear_kernel_hedgehog__grouped_kv_mqa__prompt.s.ref").read()
    hdr = "".join(l + "\n" for l in hdr.split("\n") if l.startswith(";") and "@launch" not in l and "Override" not in l and "grid=ceil" not in l)
    out = hdr
    for kern, (g, b, l) in ks:
        if "list" in sys.argv:
            out += f"; @launch kernel={kern.name} grid=({g},1,1) block=({b},1,1) lds={l}\n"
        else:
            out += f"; @launch grid=({g},1,1) block=({b},1,1) lds={l}\n"
    if PROF:
        out += "; STAMPS " + " ".join(f"{n}={i}" for n, i in STAMPS.items()) + "\n"
    out += """; ---------------------------------------------------------------------------------------------------------
; ---------------------------------------------------------------------------------------------------------
"""
    out += '.amdgcn_target "amdgcn-amd-amdhsa--gfx950"\n.text\n'
    for kern, geo in ks:
        out += kern.text()
    out += '.section .rodata,"a"\n'
    for kern, geo in ks:
        out += kern.desc()
    sys.stdout.write(out)


if __name__ == "__main__":
    main()
```

```python
import sys, struct, math
from asmlib import Kern, vr, sr

S, D, H, DH = 2048, 1024, 32, 32
KA_X, KA_WQKV, KA_WPHI, KA_WOA, KA_BX, KA_WQ, KA_WK, KA_WV, KA_WOB, KA_OUT, KA_DBG, KA_WS = [8 * i for i in range(12)]
P_X, P_WQKV, P_WPHI, P_WOA, P_BX, P_WQ, P_WK, P_WV, P_WOB, P_OUT, P_DBG, P_WS = [64 + 2 * i for i in range(12)]
MB = 1 << 20
WS_X = [None, 0 * MB, 4 * MB, 8 * MB]
WS_O = [12 * MB, 16 * MB, 20 * MB, 24 * MB]
WS_KVP = [28 * MB, 32 * MB]
WS_KV = [36 * MB, 36 * MB + 0x40000]
WS_ZP = [37 * MB, 37 * MB + 0x20000]
WS_ST = [38 * MB + i * 0x40000 for i in range(4)]
WS_CSA = 39 * MB
WS_CSB = 39 * MB + 0x40000
WS_FL = 40 * MB
WS_END = 48 * MB
WS_PROF = 64 * MB
LOG2E = 1.4426950408889634
ONES2 = "0x3f803f80"
PROF = "prof" in sys.argv
X_NOLOAD = "noload" in sys.argv
X_NOMFMA = "nomfma" in sys.argv
NST = 16
STAGED = "nostaged" not in sys.argv
F_COL, F_OA, F_XA, F_KVB, F_OB, F_XB = range(6)


def flag_off(rep, grp):
    return WS_FL + (rep * 6 + grp) * 4096


def f32(x):
    return "0x%08x" % struct.unpack("<I", struct.pack("<f", x))[0]


def srd(k, d, ptr, nbytes):
    k(f"""s_mov_b32 s{d}, s{ptr}
    s_and_b32 s{d+1}, s{ptr+1}, 0xffff
    s_mov_b32 s{d+2}, {hex(nbytes)}
    s_mov_b32 s{d+3}, 0x20000""")


def srd_off(k, d, ptr, off, nbytes):
    k(f"""s_add_u32 s{d}, s{ptr}, {hex(off)}
    s_addc_u32 s{d+1}, s{ptr+1}, 0
    s_and_b32 s{d+1}, s{d+1}, 0xffff
    s_mov_b32 s{d+2}, {hex(nbytes)}
    s_mov_b32 s{d+3}, 0x20000""")


STAMPS = {}


def stamp(k, name):
    if not PROF:
        return
    idx = STAMPS.setdefault(name, len(STAMPS) + 2)
    assert idx < 128
    ins = "s_memtime" if "cyc" in sys.argv else "s_memrealtime"
    k(f"{ins} s[88:89]\ns_waitcnt lgkmcnt(0)\nv_writelane_b32 v{255 - idx // 64}, s88, {idx % 64}")


def M32(d, a, b, c=None):
    c = vr(d, 16) if c is None else c
    return f"v_mfma_f32_32x32x16_bf16 {vr(d,16)}, {vr(a,4)}, {vr(b,4)}, {c}"


def M16(d, a, b, c=None):
    c = vr(d, 4) if c is None else c
    return f"v_mfma_f32_16x16x32_bf16 {vr(d,4)}, {vr(a,4)}, {vr(b,4)}, {c}"


def gen_prep():
    k = Kern("prep_kernel")
    NWG = 258 + 64
    k(f"""
    s_cmp_ge_u32 s2, {NWG}
    s_cbranch_scc1 prep_end
    s_load_dwordx4 s[4:7], s[0:1], {KA_X}
    s_load_dwordx4 s[8:11], s[0:1], {KA_WQ}
    s_load_dwordx2 s[12:13], s[0:1], {KA_WV}
    s_load_dwordx2 s[14:15], s[0:1], {KA_WS}
    s_load_dwordx2 s[36:37], s[0:1], {KA_WOA}
    s_load_dwordx2 s[38:39], s[0:1], {KA_WOB}
    v_lshrrev_b32 v1, 6, v0
    v_and_b32 v2, 63, v0
    v_readfirstlane_b32 s3, v1
    s_waitcnt lgkmcnt(0)
    """)
    srd(k, 16, 14, WS_END)
    k("""s_cmp_ge_u32 s2, 258
    s_cbranch_scc1 prep_touch
    s_cmp_ge_u32 s2, 128
    s_cbranch_scc1 prep_cols""")
    srd(k, 20, 4, S * D * 2)
    k(f"""
    s_lshl_b32 s24, s2, 4
    s_lshl_b32 s25, s3, 2
    s_add_u32 s24, s24, s25
    s_lshl_b32 s25, s24, 11
    v_lshlrev_b32 v3, 4, v2
    s_mov_b32 s26, {ONES2}
    """)
    for i in range(4):
        k(f"buffer_load_dwordx4 {vr(8+8*i,4)}, v3, s[20:23], s25 offen offset:0")
        k(f"buffer_load_dwordx4 {vr(12+8*i,4)}, v3, s[20:23], s25 offen offset:1024")
        k(f"s_add_u32 s25, s25, 2048")
    k(f"""
    s_cmp_ge_u32 s2, 12
    s_cbranch_scc1 prep_nz
    v_mov_b32 v44, 0
    v_mov_b32 v45, 0
    v_mov_b32 v46, 0
    v_mov_b32 v47, 0
    v_lshlrev_b32 v4, 4, v0
    s_lshl_b32 s25, s2, 12
    s_add_u32 s25, s25, {hex(WS_FL)}
    buffer_store_dwordx4 v[44:47], v4, s[16:19], s25 offen
    prep_nz:
    v_and_b32 v4, 1, v2
    v_lshlrev_b32 v4, 7, v4
    v_lshrrev_b32 v5, 2, v2
    v_lshl_add_u32 v4, v5, 10, v4
    s_lshr_b32 s25, s24, 7
    s_lshl_b32 s25, s25, 14
    s_bfe_u32 s27, s24, 0x20005
    s_lshl_b32 s27, s27, 8
    s_add_u32 s25, s25, s27
    s_and_b32 s27, s24, 31
    s_lshl_b32 s28, s27, 2
    s_add_u32 s25, s25, s28
    s_add_u32 s25, s25, {hex(WS_ST[0])}
    v_lshrrev_b32 v6, 1, v2
    v_lshlrev_b32 v6, 10, v6
    v_and_b32 v5, 1, v2
    v_lshl_add_u32 v6, v5, 9, v6
    s_lshr_b32 s29, s24, 5
    s_lshl_b32 s29, s29, 16
    s_lshl_b32 s28, s27, 4
    s_add_u32 s29, s29, s28
    s_add_u32 s29, s29, {hex(WS_X[0])}
    s_add_u32 s30, s29, 32768
    v_cmp_eq_u32 vcc, 1, v5
    s_waitcnt vmcnt(0)
    """)
    for i in range(4):
        k("v_mov_b32 v40, 0\nv_mov_b32 v41, 0")
        for j in range(8):
            k(f"v_dot2_f32_bf16 v40, v{8+8*i+j}, s26, v40")
            k(f"v_dot2_f32_bf16 v41, v{8+8*i+j}, v{8+8*i+j}, v41")
        k("""v_cndmask_b32 v42, v40, v41, vcc
        v_cndmask_b32 v43, v41, v40, vcc
        v_add_f32_dpp v42, v43, v42 quad_perm:[1,0,3,2] row_mask:0xf bank_mask:0xf
        v_add_f32_dpp v48, v42, v42 quad_perm:[2,3,0,1] row_mask:0xf bank_mask:0xf
        """)
        k(f"buffer_store_dword v48, v4, s[16:19], s25 offen offset:{4*i}")
        for hf in range(2):
            a_ = 8 + 8 * i + 4 * hf
            o_ = 52 + 8 * i + 4 * hf
            k(f"""v_cndmask_b32 v50, v{a_+2}, v{a_}, vcc
            v_cndmask_b32 v51, v{a_+3}, v{a_+1}, vcc
            v_mov_b32_dpp v50, v50 quad_perm:[1,0,3,2] row_mask:0xf bank_mask:0xf
            v_mov_b32_dpp v51, v51 quad_perm:[1,0,3,2] row_mask:0xf bank_mask:0xf
            v_cndmask_b32 v{o_}, v{a_}, v50, vcc
            v_cndmask_b32 v{o_+1}, v{a_+1}, v51, vcc
            v_cndmask_b32 v{o_+2}, v50, v{a_+2}, vcc
            v_cndmask_b32 v{o_+3}, v51, v{a_+3}, vcc
            buffer_store_dwordx4 {vr(o_,4)}, v6, s[16:19], s{29+hf} offen offset:{16*i}""")
    k("s_endpgm")
    k(f"""prep_touch:
    s_sub_u32 s24, s2, 258
    s_cmp_ge_u32 s24, 32
    s_cselect_b32 s32, s38, s36
    s_cselect_b32 s33, s39, s37
    s_and_b32 s24, s24, 31
    s_lshl_b32 s24, s24, 16
    v_lshlrev_b32 v3, 4, v0
    """)
    srd(k, 20, 32, D * D * 2)
    for i in range(16):
        k(f"buffer_load_dwordx4 {vr(16+4*i,4)}, v3, s[20:23], s24 offen")
        k("s_add_u32 s24, s24, 4096")
    k("s_waitcnt vmcnt(0)\ns_endpgm")
    k("prep_cols:")
    k(f"""
    s_sub_u32 s24, s2, 128
    s_and_b32 s25, s24, 3
    s_lshr_b32 s26, s24, 2
    s_cmp_ge_u32 s2, 256
    s_cbranch_scc1 prep_small
    s_cmp_ge_u32 s2, 224
    s_cbranch_scc1 prep_wq
    """)
    srd(k, 20, 6, D * 3 * D * 2)
    k(f"""s_mov_b32 s27, 6144
    s_lshl_b32 s28, s26, 11
    s_add_u32 s28, s28, {hex(WS_CSA)}
    s_branch prep_big
    prep_wq:""")
    srd(k, 20, 8, D * D * 2)
    k(f"""s_mov_b32 s27, 2048
    s_sub_u32 s26, s26, 24
    s_lshl_b32 s28, s26, 11
    s_add_u32 s28, s28, {hex(WS_CSB)}
    prep_big:
    s_lshl_b32 s29, s25, 8
    s_lshl_b32 s30, s3, 6
    s_add_u32 s29, s29, s30
    s_mul_i32 s29, s29, s27
    s_lshl_b32 s30, s26, 8
    s_add_u32 s29, s29, s30
    s_lshl_b32 s30, s25, 2
    s_add_u32 s28, s28, s30
    v_lshlrev_b32 v6, 4, v0
    s_mov_b32 s31, 0
    s_branch prep_sum
    prep_small:
    s_cmp_eq_u32 s2, 257
    s_cselect_b32 s32, s12, s10
    s_cselect_b32 s33, s13, s11
    s_cselect_b32 s28, 512, 0
    s_add_u32 s28, s28, {hex(WS_CSB + 1024*16)}
    """)
    srd(k, 20, 32, D * 32 * 2)
    k(f"""s_mov_b32 s27, 256
    s_lshl_b32 s29, s3, 14
    v_and_b32 v6, 31, v0
    v_lshlrev_b32 v6, 4, v6
    v_lshrrev_b32 v7, 5, v0
    v_lshl_add_u32 v6, v7, 2, v6
    s_mov_b32 s31, 1
    prep_sum:
    v_lshrrev_b32 v3, 4, v2
    v_mul_lo_u32 v3, v3, s27
    v_and_b32 v4, 15, v2
    v_lshl_add_u32 v3, v4, 4, v3
    s_lshl_b32 s30, s27, 2
    """)
    for i in range(16):
        k(f"buffer_load_dwordx4 {vr(16+4*i,4)}, v3, s[20:23], s29 offen")
        k("s_add_u32 s29, s29, s30")
    k("s_mov_b32 s34, 0x3f80\ns_mov_b32 s35, 0x3f800000")
    for j in range(8):
        k(f"v_mov_b32 v{8+j}, 0")
    for i in range(16):
        k(f"s_waitcnt vmcnt({15-i})")
        for j in range(4):
            k(f"v_dot2_f32_bf16 v{8+2*j}, v{16+4*i+j}, s34, v{8+2*j}")
            k(f"v_dot2_f32_bf16 v{9+2*j}, v{16+4*i+j}, s35, v{9+2*j}")
    k(f"""
    v_lshlrev_b32 v3, 5, v0
    ds_write_b128 v3, v[8:11]
    ds_write_b128 v3, v[12:15] offset:16
    s_waitcnt lgkmcnt(0)
    s_barrier
    s_cmp_ge_u32 s3, 2
    s_cbranch_scc1 prep_end
    s_cmp_eq_u32 s31, 1
    s_cbranch_scc1 prep_red_small
    v_lshlrev_b32 v3, 2, v0
    """)
    for g in range(16):
        k(f"ds_read_b32 v{16+g}, v3 offset:{g*512}")
    k(f"""s_branch prep_red
    prep_red_small:
    v_and_b32 v3, 31, v0
    v_lshlrev_b32 v3, 2, v3
    v_lshrrev_b32 v4, 5, v0
    v_lshl_add_u32 v3, v4, 11, v3
    """)
    for g in range(16):
        k(f"ds_read_b32 v{16+g}, v3 offset:{(g>>2)*512 + (g&3)*128}")
    k("prep_red:\ns_waitcnt lgkmcnt(0)")
    for st in (8, 4, 2, 1):
        for g in range(st):
            k(f"v_add_f32 v{16+g}, v{16+g}, v{16+g+st}")
    k("""
    v_cvt_pk_bf16_f32 v17, v16, v16
    v_lshlrev_b32 v18, 16, v17
    v_sub_f32 v18, v16, v18
    v_cvt_pk_bf16_f32 v17, v16, v18
    buffer_store_dword v17, v6, s[16:19], s28 offen
    prep_end:
    s_endpgm
    """)
    return k, (NWG, 256, 8192)


def tile_map(k, mode):
    if mode == "4x8":
        k("""s_and_b32 s6, s2, 7
        s_lshr_b32 s7, s2, 3
        s_lshr_b32 s4, s6, 1
        s_lshl_b32 s4, s4, 2
        s_lshr_b32 s5, s7, 3
        s_add_u32 s4, s4, s5
        s_and_b32 s5, s6, 1
        s_lshl_b32 s5, s5, 3
        s_and_b32 s7, s7, 7
        s_add_u32 s5, s5, s7""")
    elif mode == "2x16":
        k("""s_and_b32 s6, s2, 7
        s_lshr_b32 s7, s2, 3
        s_lshl_b32 s4, s6, 1
        s_lshr_b32 s5, s7, 4
        s_add_u32 s4, s4, s5
        s_and_b32 s5, s7, 15""")
    elif mode == "8x4":
        k("""s_and_b32 s6, s2, 7
        s_lshr_b32 s7, s2, 3
        s_lshr_b32 s4, s6, 2
        s_lshl_b32 s4, s4, 3
        s_lshr_b32 s5, s7, 2
        s_add_u32 s4, s4, s5
        s_and_b32 s5, s6, 3
        s_lshl_b32 s5, s5, 2
        s_and_b32 s7, s7, 3
        s_add_u32 s5, s5, s7""")


def lines(txt):
    return [l.strip() for l in txt.split("\n") if l.strip()]


def ln_stats(tmp, out_rstd, out_bop, single=False):
    t = tmp
    o = []
    for g in range(0, 8, 2):
        o.append(f"v_pk_add_f32 {vr(t+g,2)}, {vr(t+g,2)}, {vr(t+g+8,2)}")
    for g in range(0, 4, 2):
        o.append(f"v_pk_add_f32 {vr(t+g,2)}, {vr(t+g,2)}, {vr(t+g+4,2)}")
    o.append(f"v_pk_add_f32 {vr(t,2)}, {vr(t,2)}, {vr(t+2,2)}")
    o.append(f"v_add_f32 v{t}, v{t}, v{t+1}")
    if single:
        o = []
    o += lines(f"""
    v_mul_f32 v{t}, {f32(1.0/D)}, v{t}
    v_mov_b32 v{t+1}, v{t}
    v_permlane32_swap_b32 v{t}, v{t+1}
    v_fma_f32 v{t+1}, -v{t}, v{t}, v{t+1}
    v_max_f32 v{t+1}, 0, v{t+1}
    v_add_f32 v{t+1}, {f32(1e-5)}, v{t+1}
    v_rsq_f32 v{out_rstd}, v{t+1}
    """)
    if out_bop is not None:
        o += lines(f"""
        v_sub_f32 v{t}, 0, v{t}
        v_cvt_pk_bf16_f32 v{t+2}, v{t}, v{t}
        v_lshlrev_b32 v{t+3}, 16, v{t+2}
        v_sub_f32 v{t+3}, v{t}, v{t+3}
        v_cvt_pk_bf16_f32 v{t+3}, v{t+3}, v{t+3}
        v_cndmask_b32 v{out_bop}, v{t+2}, v{t+3}, s[40:41]
        v_mov_b32 v{out_bop+1}, v{out_bop}
        v_mov_b32 v{out_bop+2}, v{out_bop}
        v_mov_b32 v{out_bop+3}, v{out_bop}
        """)
    return o


def pk_mul(k, dst, src, sc, n):
    for i in range(0, n, 2):
        k(f"v_pk_mul_f32 {vr(dst+i,2)}, {vr(src+i,2)}, {vr(sc,2)}")


def feat_map(k, src, cvec, tmp, outp):
    t = tmp
    a, b, c, d = t + 32, t + 34, t + 36, t + 38
    k(f"v_max3_f32 v{a}, v{src}, v{src+1}, v{src+2}\nv_min3_f32 v{b}, v{src}, v{src+1}, v{src+2}")
    for i in range(3, 15, 2):
        k(f"v_max3_f32 v{a}, v{a}, v{src+i}, v{src+i+1}\nv_min3_f32 v{b}, v{b}, v{src+i}, v{src+i+1}")
    k(f"""v_max_f32 v{a}, v{a}, v{src+15}
    v_min_f32 v{b}, v{b}, v{src+15}
    v_mov_b32 v{c}, v{a}
    v_mov_b32 v{d}, v{b}
    v_permlane32_swap_b32 v{a}, v{c}
    v_permlane32_swap_b32 v{b}, v{d}
    v_max_f32 v{a}, v{a}, v{c}
    v_min_f32 v{b}, v{b}, v{d}
    v_mul_f32 v{a}, v{a}, v{cvec}
    v_mul_f32 v{b}, v{b}, v{cvec}
    v_mov_b32 v{a+1}, v{a}
    v_mov_b32 v{b+1}, v{b}
    """)
    for i in range(0, 16, 2):
        k(f"v_pk_fma_f32 {vr(t+i,2)}, {vr(src+i,2)}, {vr(cvec,2)}, {vr(a,2)} neg_lo:[0,0,1] neg_hi:[0,0,1]")
        k(f"v_pk_fma_f32 {vr(t+16+i,2)}, {vr(src+i,2)}, {vr(cvec,2)}, {vr(b,2)} neg_lo:[1,0,0] neg_hi:[1,0,0]")
    for i in range(32):
        k(f"v_exp_f32 v{t+i}, v{t+i}")
    k(f"v_pk_add_f32 {vr(a,2)}, {vr(t,2)}, {vr(t+2,2)}\nv_pk_add_f32 {vr(b,2)}, {vr(t+16,2)}, {vr(t+18,2)}")
    for i in range(4, 16, 2):
        k(f"v_pk_add_f32 {vr(a,2)}, {vr(a,2)}, {vr(t+i,2)}\nv_pk_add_f32 {vr(b,2)}, {vr(b,2)}, {vr(t+16+i,2)}")
    k(f"""v_add_f32 v{a}, v{a}, v{a+1}
    v_add_f32 v{b}, v{b}, v{b+1}
    v_mov_b32 v{c}, v{a}
    v_mov_b32 v{d}, v{b}
    v_permlane32_swap_b32 v{a}, v{c}
    v_permlane32_swap_b32 v{b}, v{d}
    v_add_f32 v{a}, v{a}, v{c}
    v_add_f32 v{b}, v{b}, v{d}
    v_rcp_f32 v{a}, v{a}
    v_rcp_f32 v{b}, v{b}
    v_mov_b32 v{a+1}, v{a}
    v_mov_b32 v{b+1}, v{b}
    """)
    pk_mul(k, t, t, a, 16)
    pk_mul(k, t + 16, t + 16, b, 16)
    for i in range(16):
        k(f"v_cvt_pk_bf16_f32 v{outp+i}, v{t+2*i}, v{t+2*i+1}")


def ones_pattern(k, dst, t0, t1):
    k(f"""v_bfe_u32 v{t0}, v1, 2, 1
    v_bfe_u32 v{t1}, v1, 4, 1
    v_cmp_eq_u32 vcc, v{t0}, v{t1}
    v_mov_b32 v{t0}, {ONES2}
    v_cndmask_b32 v{dst}, 0, v{t0}, vcc
    v_mov_b32 v{dst+1}, v{dst}
    v_mov_b32 v{dst+2}, v{dst}
    v_mov_b32 v{dst+3}, v{dst}""")


def wphi_loads(k, WP, headsreg):
    k(f"""v_lshlrev_b32 v10, 1, v2
    v_lshl_add_u32 v10, v3, 8, v10
    s_lshl_b32 s34, {headsreg}, 11""")
    for t in range(2):
        for e in range(2):
            for j in range(4):
                k(f"buffer_load_ushort v{WP+8*t+4*e+j}, v10, s[20:23], s34 offen offset:{(16*t+8*e+j)*64}")


CNT = 163840 - 64
_cnt = [0]


def new_cnt():
    _cnt[0] = (_cnt[0] + 1) % 16
    return CNT + 4 * _cnt[0]


def zero_cnt(k, addr):
    k(f"v_mov_b32 v4, {addr}\nv_mov_b32 v5, 0\nds_write_b32 v4, v5")


def signal(k, base, idx_sreg, nw=1, cnt=None, word=None):
    L = k.label("sig")
    k(f"""s_lshl_b32 s34, {idx_sreg}, 8
    s_add_u32 s34, s34, {hex(base)}
    v_mov_b32 v4, 1
    v_mov_b32 v5, 0
    s_mov_b64 exec, 1""")
    if nw > 1:
        k(f"""v_mov_b32 v6, {cnt}
        ds_add_rtn_u32 v7, v6, v4
        s_waitcnt lgkmcnt(0)
        v_readfirstlane_b32 s35, v7
        s_cmp_eq_u32 s35, {nw-1}
        s_cbranch_scc0 {L}""")
    if word:
        k(f"""s_lshl_b32 s35, {word}, 2
        s_add_u32 s34, s34, s35
        buffer_store_dword v4, v5, s[16:19], s34 offen sc1""")
    else:
        k("buffer_atomic_add v4, v5, s[16:19], s34 offen sc1")
    k(f"""{L}:
    s_mov_b64 exec, -1""")


def wait_flag(k, base, idx_sreg, target, all16=False, sa=52, sb=53):
    L = k.label("poll")
    if all16:
        k(f"""v_and_b32 v4, 15, v1
        v_lshlrev_b32 v4, 8, v4
        s_mov_b32 s{sa}, {hex(base)}""")
    else:
        k(f"""v_mov_b32 v4, 0
        s_lshl_b32 s{sa}, {idx_sreg}, 8
        s_add_u32 s{sa}, s{sa}, {hex(base)}""")
    if True:
        k(f"""s_mov_b32 s{sb}, 0
        {L}:
        buffer_load_dword v5, v4, s[16:19], s{sa} offen sc1
        s_waitcnt vmcnt(0)
        v_cmp_gt_u32 vcc, {target}, v5
        s_cbranch_vccz {L}_ok
        s_add_u32 s{sb}, s{sb}, 1
        s_cmp_lt_u32 s{sb}, 0x40000
        s_cbranch_scc1 {L}
        {L}_ok:""")
        return
    k(f"""s_mov_b32 s{sb}, 0
    buffer_load_dword v5, v4, s[16:19], s{sa} offen sc1
    s_sleep 2
    buffer_load_dword v6, v4, s[16:19], s{sa} offen sc1
    s_sleep 2
    {L}:""")
    for a_, b_ in ((7, 5), (5, 6), (6, 7)):
        k(f"""buffer_load_dword v{a_}, v4, s[16:19], s{sa} offen sc1
        s_waitcnt vmcnt(2)
        v_cmp_gt_u32 vcc, {target}, v{b_}
        s_cbranch_vccz {L}_ok""")
    k(f"""s_add_u32 s{sb}, s{sb}, 1
    s_cmp_lt_u32 s{sb}, 0x20000
    s_cbranch_scc1 {L}
    {L}_ok:
    s_waitcnt vmcnt(0)""")


class VQ:
    def __init__(self):
        self.q = []

    def add(self, tag, n=1):
        self.q += [tag] * n

    def cnt(self, tag):
        last = max(i for i, t in enumerate(self.q) if t == tag)
        return len(self.q) - 1 - last


def gemm_loader(k, nseg, wstride, R, stage_bytes, extra, relaxed, tag, wt, pre=None, mid=None, npre=None,
                preflag=None, first=1, lims=None, rm=False, staged=False):
    if pre:
        pre()
    k(f"""
    s_sub_u32 s30, s3, 4
    v_lshrrev_b32 v6, 3, v1
    v_and_b32 v7, 7, v1
    s_lshl_b32 s31, s30, 4
    s_mov_b32 s33, {wstride}
    v_lshrrev_b32 v5, 1, v6
    v_and_b32 v5, 1, v5
    v_lshlrev_b32 v5, 2, v5
    v_xor_b32 v5, v5, v7
    v_lshlrev_b32 v5, 4, v5
    s_lshl_b32 s32, s5, 7
    v_add_u32 v5, s32, v5
    """)
    for jj in range(2):
        k(f"""
        v_add_u32 v4, {8*jj}, v6
        v_add_u32 v4, s31, v4
        v_mul_lo_u32 v4, v4, s33
        v_add_u32 v{12+jj}, v4, v5
        """)
        if jj:
            k(f"v_subrev_u32 v{12+jj}, {1024*jj}, v{12+jj}")
    for p in range(1, nseg):
        for jj in range(2):
            k(f"v_add_u32 v{12+2*p+jj}, {2048*p}, v{12+jj}")
    k("v_lshlrev_b32 v8, 4, v1")
    if extra:
        k(f"""s_lshl_b32 s31, s30, 10
        v_add_u32 v20, s31, v8""")
    k(f"""
    s_lshl_b32 s34, s30, 12
    s_lshl_b32 s35, s30, 11
    s_add_u32 s35, s35, 16384
    s_lshl_b32 s36, s30, 10
    s_add_u32 s36, s36, {16384 + nseg*8192}
    s_lshl_b32 s37, s4, 2
    s_add_u32 s37, s37, s30
    s_lshl_b32 s37, s37, 16
    s_mov_b32 s38, 0
    s_mov_b32 s39, 0
    """)
    if rm:
        k(f"""s_lshl_b32 s31, s4, 7
        s_lshl_b32 s32, s30, 5
        s_add_u32 s31, s31, s32
        s_add_u32 s61, s4, s5
        s_and_b32 s61, s61, 15
        s_mov_b32 s62, s61
        s_lshl_b32 s37, s61, 7
        s_mul_i32 s38, s61, {64*wstride}""")
        for jj in range(4):
            k(f"""
            v_add_u32 v4, {8*jj}, v6
            v_lshrrev_b32 v5, 1, v4
            v_and_b32 v5, 7, v5
            v_xor_b32 v5, v5, v7
            v_add_u32 v4, s31, v4
            v_lshlrev_b32 v4, 11, v4
            v_lshl_add_u32 v{20+jj}, v5, 4, v4
            """)
            if jj:
                k(f"v_subrev_u32 v{20+jj}, {1024*jj}, v{20+jj}")
    q = VQ()

    def issueW(st):
        slot = (st % R) * stage_bytes
        for p in range(nseg):
            k(f"s_add_u32 m0, s35, {slot + p*8192}")
            for jj in range(2):
                if not (X_NOLOAD and st >= R):
                    k(f"buffer_load_dwordx4 v{12+2*p+jj}, s[12:15], s38 offen offset:{1024*jj} lds")
                q.add(("s", st))
        if extra:
            k(f"s_add_u32 m0, s36, {slot}")
            k(f"buffer_load_dwordx4 v20, s[20:23], s39 offen lds")
            q.add(("s", st))
            k("s_add_u32 s39, s39, 4096")
        if rm:
            k(f"s_cmp_le_u32 s61, {st}\ns_cselect_b32 s62, {st+1}, {st}\ns_mul_i32 s38, s62, {64*wstride}")
        else:
            k(f"s_add_u32 s38, s38, {64*wstride}")

    def issueX(st):
        slot = (st % R) * stage_bytes
        if staged:
            L = k.label("sp")
            k(f"""s_cmp_gt_u32 s63, {st}
            s_cbranch_scc1 {L}_ok
            s_mov_b32 s53, 0
            {L}:
            buffer_load_dword v5, v4, s[16:19], s52 offen sc1
            s_waitcnt vmcnt(0)
            v_cmp_ne_u32 vcc, 1, v5
            s_or_b32 s63, vcc_lo, 0x10000
            s_ff1_i32_b32 s63, s63
            s_cmp_gt_u32 s63, {st}
            s_cbranch_scc1 {L}_ok
            s_add_u32 s53, s53, 1
            s_cmp_lt_u32 s53, 0x40000
            s_cbranch_scc1 {L}
            {L}_ok:""")
            if st == 0:
                stamp(k, tag + "_flag")
        k(f"s_add_u32 m0, s34, {slot}")
        for jj in range(4):
            if X_NOLOAD and st >= R:
                pass
            elif rm:
                k(f"buffer_load_dwordx4 v{20+jj}, s[8:11], s37 offen offset:{1024*jj} lds")
            else:
                k(f"buffer_load_dwordx4 v8, s[8:11], s37 offen offset:{1024*jj} sc1 lds")
            q.add(("s", st))
        if rm:
            k(f"s_cmp_le_u32 s61, {st}\ns_cselect_b32 s62, {st+1}, {st}\ns_lshl_b32 s37, s62, 7")
        else:
            k("s_add_u32 s37, s37, 4096")

    if wt:
        P_ = R if R * stage_bytes <= CNT else R - 1
        if npre is not None:
            P_ = npre
        for st in range(P_):
            issueW(st)
        if preflag:
            preflag(q)
        if staged:
            k(f"""v_and_b32 v4, 15, v1
            v_lshlrev_b32 v4, 2, v4
            s_lshl_b32 s52, {wt[1]}, 8
            s_add_u32 s52, s52, {hex(wt[0])}
            s_mov_b32 s63, 0""")
        else:
            NPL = k.label("np")
            k(f"s_cmp_lg_u32 s3, 4\ns_cbranch_scc1 {NPL}")
            wait_flag(k, *wt)
            k(f"{NPL}:\ns_waitcnt vmcnt(0)\ns_barrier")
            stamp(k, tag + "_flag")
        xi, wi = 0, P_
    else:
        xi, wi = 0, 0
    D_ = R - 2 if relaxed else R - 1

    def upto(lim):
        nonlocal xi, wi
        while xi <= lim or wi <= lim:
            if xi <= lim:
                issueX(xi)
                xi += 1
            if wi <= lim and wi < xi:
                issueW(wi)
                wi += 1

    upto(first)
    for i in range(NST):
        k(f"s_waitcnt vmcnt({q.cnt(('s', i))})")
        k("s_barrier")
        lim = min(NST - 1, max(R - 1, i + D_))
        if lims and i in lims:
            lim = lims[i]
        upto(lim)
        if mid and i in mid:
            mid[i](q)


def gemm_compute(k, R, stage_bytes, A, bases, xoffs, waddr_list, frag_base, mfmas, nfragregs, ab, tag, nbuf=4,
                 per=None, filler=None, fper=3, after_b0=None, e2=True, after_e2=None, rm=False, late=None, pre_m=0, at_iter=None, mf_first=None, after_first=None):
    loopname = k.label(tag + "_loop")

    def upd():
        for i, b in enumerate(bases):
            k(f"v_add_u32 v{ab+i}, s32, v{b}")

    def reads(t):
        out = []
        fr = frag_base + (t % nbuf) * nfragregs
        for i, xo in enumerate(xoffs):
            if rm:
                out.append(f"ds_read_b128 {vr(fr+4*i,4)}, v{ab+t} offset:{xo}")
            else:
                out.append(f"ds_read_b128 {vr(fr+4*i,4)}, v{ab} offset:{xo + 1024*t}")
        fr += 4 * len(xoffs)
        for i, (wi, wo, rb) in enumerate(waddr_list):
            for rd in range(2):
                if rm:
                    out.append(f"ds_read_b64_tr_b16 {vr(fr+4*i+2*rd,2)}, v{ab+wi+3} offset:{wo + (16*t+4*rd)*rb}")
                else:
                    out.append(f"ds_read_b64_tr_b16 {vr(fr+4*i+2*rd,2)}, v{ab+wi} offset:{wo + (16*t+8*rd)*rb}")
        return out

    n = len(reads(0))

    def stage(last, fill, mfmas=mfmas):
        for t in range(4):
            nxt = t + A
            rd = []
            if nxt < 4:
                rd = reads(nxt)
            elif not last:
                rd = reads(nxt - 4)
            young = sum(1 for u in range(t + 1, t + A) if (u < 4 or not last)) * n
            k(f"s_waitcnt lgkmcnt({min(young,15)})")
            ms = mfmas(frag_base + (t % nbuf) * nfragregs, t)
            if X_NOMFMA:
                ms, rd = ms[:1], []
            p = per or max(1, -(-len(rd) // max(1, len(ms) - 1)))
            if nxt == 4 and not last:
                k(f"""s_add_u32 s32, s32, {stage_bytes}
                s_cmp_eq_u32 s32, {R*stage_bytes}
                s_cselect_b32 s32, 0, s32""")
                for m in ms[:pre_m]:
                    k(m)
                ms = ms[pre_m:]
                upd()
                k("s_barrier")
                if pre_m:
                    p = -(-len(rd) // max(1, len(ms) - 1 if len(ms) > 1 else 1))
                    for r_ in rd[:p]:
                        k(r_)
                    rd = rd[p:]
            if last and t == 3:
                k(ms[0])
                ms = ms[1:]
                k("s_barrier")
            for i, m in enumerate(ms):
                k(m)
                rr = rd[i * p:(i + 1) * p]
                for r_ in rr:
                    k(r_)
                for _ in range(max(0, fper + 2 - len(rr))):
                    if fill:
                        k(fill.pop(0))
            for r_ in rd[len(ms) * p:]:
                k(r_)
        while fill:
            k(fill.pop(0))

    k(f"s_mov_b32 s32, 0\ns_mov_b32 s33, 0")
    stamp(k, tag + "_b0pre")
    if e2:
        k("s_barrier")
    if after_e2:
        after_e2()
    k("s_barrier")
    stamp(k, tag + "_b0")
    upd()
    for t in range(A):
        for r_ in reads(t):
            k(r_)
    if after_b0:
        after_b0()
    nloop = min(late) if late else NST - 1
    if mf_first:
        stage(False, [], mf_first)
        k("s_mov_b32 s33, 1")
        after_first()
    k(f"{loopname}:")
    stage(False, [])
    for it_, fn_ in (at_iter or []):
        SKP = k.label("skip")
        k(f"s_cmp_eq_u32 s33, {it_}\ns_cbranch_scc0 {SKP}")
        fn_()
        k(f"{SKP}:")
    k(f"""s_add_u32 s33, s33, 1
    s_cmp_lt_u32 s33, {nloop}
    s_cbranch_scc1 {loopname}""")
    for st in range(nloop, NST - 1):
        stage(False, list(late.get(st, [])))
    stage(True, list(filler or []))
    stamp(k, tag + "_loopend")


def x_addr(k, dst, rowsreg):
    k(f"""
    v_add_u32 v4, {rowsreg}, v2
    v_bfe_u32 v5, v4, 1, 3
    v_lshlrev_b32 v4, 7, v4
    """)
    for t in range(4):
        k(f"""v_add_u32 v6, {2*t}, v3
        v_xor_b32 v6, v6, v5
        v_lshl_add_u32 v{dst+t}, v6, 4, v4""")


def hilo(src, dst, tmp):
    return lines(f"""v_cvt_pk_bf16_f32 v{tmp}, v{src}, v{src}
    v_lshlrev_b32 v{tmp}, 16, v{tmp}
    v_sub_f32 v{tmp}, v{src}, v{tmp}
    v_cvt_pk_bf16_f32 v{dst}, v{src}, v{tmp}""")


def cs_build(dst, src):
    return [f"v_mov_b32 v{dst}, v{src}"] + [f"v_mov_b32 v{dst+i}, 0" for i in (1, 2, 3)]


def wqkv_warm(k, widx):
    srd(k, 24, P_WQKV, D * 3 * D * 2)
    k(f"""s_bfe_u32 s56, s2, 0x30005
    s_lshl_b32 s56, s56, 2
    s_add_u32 s56, s56, {widx}
    s_mul_i32 s56, s56, {32*6144}
    s_and_b32 s57, s2, 3
    s_lshl_b32 s57, s57, 2
    s_bfe_u32 s58, s2, 0x20003
    s_add_u32 s57, s57, s58
    s_lshl_b32 s57, s57, 7
    s_add_u32 s56, s56, s57
    v_mul_u32_u24 v246, 6144, v2
    v_lshl_add_u32 v247, v3, 11, v246
    buffer_load_dword v245, v247, s[24:27], s56 offen
    s_add_u32 s56, s56, 4096
    buffer_load_dword v245, v246, s[24:27], s56 offen""")


def warm(k, ptr, mode, widx):
    if "nowarm" in sys.argv:
        return
    nseg, stride = (3, 6144) if mode == "8x4" else (1, 2048)
    srd(k, 20, ptr, D * stride)
    if mode == "4x8":
        k(f"""s_bfe_u32 s56, s2, 0x20006
        s_lshl_b32 s56, s56, 2
        s_add_u32 s56, s56, {widx}
        s_lshl_b32 s56, s56, 6
        s_and_b32 s57, s2, 1
        s_lshl_b32 s57, s57, 3
        s_bfe_u32 s58, s2, 0x30003
        s_add_u32 s57, s57, s58""")
        n = 8
    else:
        k(f"""s_bfe_u32 s56, s2, 0x30005
        s_lshl_b32 s56, s56, 2
        s_add_u32 s56, s56, {widx}
        s_lshl_b32 s56, s56, 5
        s_and_b32 s57, s2, 3
        s_lshl_b32 s57, s57, 2
        s_bfe_u32 s58, s2, 0x20003
        s_add_u32 s57, s57, s58""")
        n = 4
    k(f"""s_mul_i32 s56, s56, {stride}
    s_lshl_b32 s57, s57, 7
    s_add_u32 s56, s56, s57
    v_lshrrev_b32 v239, 3, v1
    v_mul_u32_u24 v239, {stride}, v239
    v_and_b32 v238, 7, v1
    v_lshl_add_u32 v239, v238, 4, v239""")
    for i in range(n):
        for p in range(nseg):
            if p < 2:
                k(f"buffer_load_dwordx4 v[244:247], v239, s[20:23], s56 offen offset:{2048*p}")
            else:
                k(f"s_add_u32 s57, s56, 4096\nbuffer_load_dwordx4 v[244:247], v239, s[20:23], s57 offen")
        k(f"s_add_u32 s56, s56, {8*stride}")


def fill_ones(k, bufs, vlane):
    k(f"""v_mov_b32 v232, -1
    v_mov_b32 v233, -1
    v_mov_b32 v234, -1
    v_mov_b32 v235, -1
    s_lshl_b32 s56, s4, 2
    s_add_u32 s56, s56, s3
    s_lshl_b32 s56, s56, 16
    s_lshl_b32 s57, s5, 12
    s_add_u32 s56, s56, s57""")
    for b_ in bufs:
        k(f"s_add_u32 s57, s56, {hex(WS_O[b_])}")
        for i in range(4):
            k(f"buffer_store_dwordx4 v[232:235], v{vlane}, s[16:19], s57 offen offset:{1024*i} sc1")


class Cap:
    def __init__(self):
        self.l = []

    def __call__(self, t):
        self.l += lines(t)


def w_tr_base(k, dst, col0, rb, swz, hs=2):
    k(f"""
    v_and_b32 v4, 15, v1
    v_lshrrev_b32 v5, 2, v4
    v_lshl_add_u32 v5, v3, {hs}, v5
    v_mul_u32_u24 v5, {rb}, v5
    v_and_b32 v6, 3, v4
    v_lshlrev_b32 v6, 3, v6
    v_bfe_u32 v7, v1, 4, 1
    v_lshl_add_u32 v6, v7, 5, v6
    v_add_u32 v6, {col0}, v6
    """)
    if swz:
        k(f"""v_bfe_u32 v7, v1, 3, 1
        v_lshlrev_b32 v7, 6, v7
        v_xor_b32 v6, v6, v7""")
    k(f"v_add_u32 v{dst}, v5, v6")


def stats_loads(k, dst, w32_sreg, tmpv, st_off, q=None):
    k(f"""v_lshlrev_b32 v{tmpv}, 2, v1
    s_lshl_b32 s54, s4, 14
    s_lshl_b32 s55, {w32_sreg}, 8
    s_add_u32 s54, s54, s55
    s_add_u32 s54, s54, {hex(st_off)}""")
    for c in range(16):
        k(f"buffer_load_dword v{dst+c}, v{tmpv}, s[16:19], s54 offen offset:{1024*(c&3)} sc1")
        if q is not None:
            q.add("stats")
        if c & 3 == 3 and c < 15:
            k("s_add_u32 s54, s54, 4096")


XINIT = int(dict(a.split('=') for a in sys.argv if '=' in a).get('xinit', 8))
XDEPTH = int(dict(a.split('=') for a in sys.argv if '=' in a).get('xdepth', 20))
WGRP = [0, 4, 10]


def stage_poll(k, st):
    L = k.label("sp")
    k(f"""s_cmp_gt_u32 s63, {st}
    s_cbranch_scc1 {L}_ok
    s_mov_b32 s53, 0
    {L}:
    buffer_load_dword v5, v4, s[16:19], s52 offen sc1
    s_waitcnt vmcnt(0)
    v_cmp_ne_u32 vcc, 1, v5
    s_or_b32 s63, vcc_lo, 0x10000
    s_ff1_i32_b32 s63, s63
    s_cmp_gt_u32 s63, {st}
    s_cbranch_scc1 {L}_ok
    s_add_u32 s53, s53, 1
    s_cmp_lt_u32 s53, 0x40000
    s_cbranch_scc1 {L}
    {L}_ok:""")


def wpf_setup(k, ptr, nw, widx):
    srd(k, 24, ptr, D * D * 2)
    sh = 3 if nw == 8 else 4
    k(f"""s_and_b32 s57, s2, 1
    s_lshl_b32 s57, s57, 3
    s_bfe_u32 s58, s2, 0x30003
    s_add_u32 s57, s57, s58
    s_lshl_b32 s57, s57, 7
    v_lshrrev_b32 v241, 3, v1
    v_bfe_u32 v242, v241, 1, 1
    v_lshlrev_b32 v242, 2, v242
    v_and_b32 v243, 7, v1
    v_xor_b32 v242, v242, v243
    v_lshlrev_b32 v242, 4, v242
    s_lshl_b32 s58, {widx}, {sh}
    v_add_u32 v241, s58, v241
    v_lshl_add_u32 v241, v241, 11, v242
    v_add_u32 v241, s57, v241
    v_add_u32 v242, {8*2048-1024}, v241
    s_lshl_b32 s60, {widx}, {sh+7}""")


def wpf_issue(k, stages, wloc, nw, q=None):
    for st in stages:
        k(f"s_add_u32 m0, s60, {wloc(st)}\ns_mov_b32 s59, {st*64*2048}")
        k("buffer_load_dwordx4 v241, s[24:27], s59 offen lds")
        if nw == 4:
            k("buffer_load_dwordx4 v242, s[24:27], s59 offen offset:1024 lds")
        if q is not None:
            q.add("wpf", 8 // nw)


ORD_A = [0, 1, 2, 4, 5, 6, 7, 8, 9, 10, 12, 13, 14, 15, 3, 11]


def wloc_a(st):
    p = ORD_A.index(st)
    return 81920 + 8192 * p if p < 9 else 8192 * (p - 9)


def wloc_b(st):
    return 8192 * st if st < 12 else (131072 + 8192 * (st - 12) if st < 15 else 98304)


def gemm2_loader(k, tag, wloc, order=None, hooks=None):
    k(f"""
    s_sub_u32 s30, s3, 4
    v_lshrrev_b32 v6, 3, v1
    v_and_b32 v7, 7, v1
    s_lshl_b32 s31, s30, 4
    v_lshrrev_b32 v5, 1, v6
    v_and_b32 v5, 1, v5
    v_lshlrev_b32 v5, 2, v5
    v_xor_b32 v5, v5, v7
    v_lshlrev_b32 v5, 4, v5
    s_lshl_b32 s32, s5, 7
    v_add_u32 v5, s32, v5
    v_add_u32 v4, s31, v6
    v_lshl_add_u32 v12, v4, 11, v5
    v_add_u32 v13, {8*2048-1024}, v12
    v_lshlrev_b32 v8, 4, v1
    s_lshl_b32 s35, s30, 11
    """)
    q = VQ()
    if order is None:
        order = list(range(16)) + [("bar", g) for g in (3, 9, 15)]
    for o in order:
        if callable(o):
            o(q)
        elif o == ("bar0",):
            k("s_barrier")
        elif isinstance(o, tuple):
            k(f"s_waitcnt vmcnt({q.cnt(('s', o[1]))})\ns_barrier")
        else:
            k(f"s_add_u32 m0, s35, {wloc(o)}\ns_mov_b32 s38, {o*64*2048}")
            for jj in range(2):
                k(f"buffer_load_dwordx4 v{12+jj}, s[12:15], s38 offen offset:{1024*jj} lds")
                q.add(("s", o))


def rdy_poller(k, wt, rdy, perm=False, until=16, wave=7):
    L = k.label("rp")
    k(f"""s_cmp_lg_u32 s3, {wave}
    s_cbranch_scc1 {L}_ok
    v_and_b32 v4, 15, v1""")
    if perm:
        lo = sum(ORD_A[i] << (4 * i) for i in range(8))
        hi = sum(ORD_A[8 + i] << (4 * i) for i in range(8))
        k(f"""v_mov_b32 v5, {hex(lo)}
        v_mov_b32 v6, {hex(hi)}
        v_cmp_lt_u32 vcc, 7, v4
        v_cndmask_b32 v5, v5, v6, vcc
        v_and_b32 v4, 7, v4
        v_lshlrev_b32 v4, 2, v4
        v_bfe_u32 v4, v5, v4, 4""")
    k(f"""v_lshlrev_b32 v4, 2, v4
    s_lshl_b32 s52, {wt[1]}, 8
    s_add_u32 s52, s52, {hex(wt[0])}
    s_mov_b32 s53, 0
    v_mov_b32 v6, {rdy}
    {L}:
    buffer_load_dword v5, v4, s[16:19], s52 offen sc1
    s_waitcnt vmcnt(0)
    v_cmp_ne_u32 vcc, 1, v5
    s_or_b32 s63, vcc_lo, 0x10000
    s_ff1_i32_b32 s63, s63
    s_add_u32 s53, s53, 1
    s_cmp_lt_u32 s53, 0x40000
    s_cselect_b32 s63, s63, 16
    v_mov_b32 v7, s63
    ds_max_u32 v6, v7
    s_cmp_lt_u32 s63, {until}
    s_cbranch_scc1 {L}
    {L}_ok:""")


def gemm2_compute(k, tag, ACC, XR, WF, wb, wloc, wt, filler=None, extra=None, late=None, groups=WGRP, pre=None, rdy=None,
                  before_x=None, ring=32, fill_from=48, kord=None, cpoll=2, cpoll_first=False, tagged=None):
    q = VQ()
    kord = kord or list(range(16))
    fill = list(filler or [])
    k(f"""v_add_u32 v{wb+2}, 0x10000, v{wb}
    v_add_u32 v{wb+3}, 0x10000, v{wb+1}
    v_add_u32 v{wb+4}, 0x20000, v{wb}
    v_add_u32 v{wb+5}, 0x20000, v{wb+1}""")
    if wt:
        k(f"v_mov_b32 v4, {rdy}\ns_mov_b32 s63, 0")

    def xload(j):
        if j % 4 == 0 and wt:
            L = k.label("lp")
            k(f"""s_cmp_gt_u32 s63, {j//4}
            s_cbranch_scc1 {L}_ok
            {L}:
            ds_read_b32 v5, v4
            s_waitcnt lgkmcnt(0)
            v_readfirstlane_b32 s63, v5
            s_cmp_gt_u32 s63, {j//4}
            s_cbranch_scc0 {L}
            {L}_ok:""")
            if j == 0:
                stamp(k, tag + "_flag")
        k(f"buffer_load_dwordx4 {vr(XR+4*(j%ring),4)}, v10, s[8:11], s39 offen offset:{1024*(j&3)} sc1")
        q.add(("x", j))
        if j % 4 == 3 and j < 63:
            d_ = (kord[j // 4 + 1] - kord[j // 4]) * 4096
            k(f"s_add_u32 s39, s39, {d_}" if d_ > 0 else f"s_sub_u32 s39, s39, {-d_}")

    def chk(st):
        r0 = [XR + 4 * ((4 * st + i) % ring) + e for i in range(4) for e in range(4)]
        o = [f"v_max3_u32 v6, v{r0[0]}, v{r0[1]}, v{r0[2]}", f"v_max3_u32 v7, v{r0[3]}, v{r0[4]}, v{r0[5]}"]
        for i in range(6, 16, 4):
            o.append(f"v_max3_u32 v6, v6, v{r0[i]}, v{r0[i+1]}")
            if i + 3 < 16:
                o.append(f"v_max3_u32 v7, v7, v{r0[i+2]}, v{r0[i+3]}")
        o += ["v_max_u32 v6, v6, v7", "v_cmp_eq_u32 vcc, -1, v6"]
        return o

    def check(st, nx_now):
        L = k.label("tg")
        k(f"s_waitcnt vmcnt({q.cnt(('x', 4*st+3))})")
        for l_ in chk(st):
            k(l_)
        k(f"s_cbranch_vccnz {L}_r\n{L}_c:")

        def blk():
            k(f"""{L}_r:
            s_add_u32 s62, s62, 1
            s_cmp_gt_u32 s62, 0x20000
            s_cbranch_scc1 {L}_c
            s_sleep 1
            s_waitcnt vmcnt(0)
            s_add_u32 s91, s90, {kord[st]*4096}""")
            for j in range(4 * st, 4 * st + 4):
                k(f"buffer_load_dwordx4 {vr(XR+4*(j%ring),4)}, v10, s[8:11], s91 offen offset:{1024*(j&3)} sc1")
            k("s_waitcnt vmcnt(0)")
            for l_ in chk(st):
                k(l_)
            k(f"s_cbranch_vccnz {L}_r")
            for j in range(4 * st + 4, nx_now):
                if j % 4 == 0:
                    k(f"s_add_u32 s91, s90, {kord[j//4]*4096}")
                k(f"buffer_load_dwordx4 {vr(XR+4*(j%ring),4)}, v10, s[8:11], s91 offen offset:{1024*(j&3)} sc1")
            k(f"s_branch {L}_c")
        tagged.append(blk)

    def wreads(j):
        off = wloc(kord[j // 4]) + (16 * (j % 4)) * 128
        hi = off >> 16
        return [f"ds_read_b64_tr_b16 {vr(WF+8*(j%4)+4*bl+2*rd,2)}, v{wb+2*hi+bl} offset:{(off & 0xffff) + 1024*rd}"
                for bl in range(2) for rd in range(2)]

    stamp(k, tag + "_b0pre")
    k("s_barrier")
    if before_x and not cpoll_first:
        before_x()
    if wt and "cpoll" in sys.argv:
        rdy_poller(k, wt, rdy, kord != list(range(16)), cpoll, wave=3)
        k(f"v_mov_b32 v4, {rdy}")
    if before_x and cpoll_first:
        before_x()
    nx = 0
    if tagged is not None:
        k("s_mov_b32 s90, s39\ns_mov_b32 s62, 0")
    for j in range(XINIT):
        xload(j)
        nx += 1
    if pre:
        pre(q)
    for j in range(2):
        for r_ in wreads(j):
            k(r_)
    if tagged is not None:
        check(0, nx)
    stamp(k, tag + "_b0")
    for j in range(64):
        if late and j in late:
            late[j](q)
        rd = wreads(j + 2) if j + 2 < 64 else []
        k(f"s_waitcnt vmcnt({min(63, q.cnt(('x', j)))}) lgkmcnt({4 if j < 63 else 0})")
        x, w = XR + 4 * (j % ring), WF + 8 * (j % 4)
        k(M32(ACC, w, x))
        if j == 63 or ((j + 2) % 4 == 0 and (j + 2) // 4 in groups[1:]):
            k("s_barrier")
        for r_ in rd[:2]:
            k(r_)
        for _ in range(2):
            if j >= fill_from and fill:
                k(fill.pop(0))
        k(M32(ACC + 16, w + 4, x))
        if extra:
            extra(j, w)
        for r_ in rd[2:]:
            k(r_)
        if tagged is not None and j % 4 == 2 and j < 60:
            check(j // 4 + 1, nx)
        for _ in range(2):
            if nx < 64 and nx <= j + XDEPTH:
                xload(nx)
                nx += 1
        for _ in range(2):
            if j >= fill_from and fill:
                k(fill.pop(0))
    while fill:
        k(fill.pop(0))
    stamp(k, tag + "_loopend")


def phase_wo(k, tag, p_w, lin, oi, wt, sig_base, final):
    LD, END = k.label(tag + "_ld"), k.label(tag + "_end")
    tile_map(k, "4x8")
    srd_off(k, 8, P_WS, WS_O[oi], S * D * 2)
    srd(k, 12, p_w, D * D * 2)
    if final:
        srd(k, 24, P_OUT, S * D * 2)
    if lin == 0:
        srd(k, 24, P_X, S * D * 2)
    k(f"s_cmp_ge_u32 s3, 4\ns_cbranch_scc1 {LD}")
    k(f"""
    s_lshl_b32 s30, s4, 2
    s_add_u32 s30, s30, s3
    s_lshl_b32 s39, s30, 16
    s_lshl_b32 s31, s5, 12
    s_add_u32 s36, s39, s31
    s_add_u32 s37, s36, {hex(WS_X[lin] or 0)}
    v_lshlrev_b32 v10, 4, v1
    """)
    rm_addr = lines(f"""s_lshl_b32 s31, s30, 5
        v_add_u32 v9, s31, v2
        v_lshlrev_b32 v9, 11, v9
        v_lshl_add_u32 v9, v3, 4, v9
        s_lshl_b32 s31, s5, 7
        v_add_u32 v9, s31, v9""")
    ACC, RES, XR, WF = 32, 64, 96, 64
    if lin == 0:
        for l_ in rm_addr:
            k(l_)
    for q in range(4):
        if lin == 0:
            k(f"buffer_load_dwordx4 {vr(RES+4*q,4)}, v9, s[24:27], 0 offen offset:{32*q}")
        else:
            k(f"buffer_load_dwordx4 {vr(RES+4*q,4)}, v10, s[16:19], s37 offen offset:{1024*q} sc1")
    if lin == 0:
        fill_ones(k, [1], 10)
    w_tr_base(k, 12, "0", 128, True)
    k("v_xor_b32 v13, 64, v12")
    cnt = new_cnt()
    zero_cnt(k, cnt)
    rdy = new_cnt()
    zero_cnt(k, rdy)
    k("s_waitcnt lgkmcnt(0)")

    def acc_init():
        k(f"s_waitcnt vmcnt({XINIT})")
        if lin == 0:
            for q in range(4):
                a = RES + 4 * q
                k(f"v_permlane32_swap_b32 v{a}, v{a+2}\nv_permlane32_swap_b32 v{a+1}, v{a+3}")
        for i in range(16):
            k(f"v_lshlrev_b32 v{ACC+2*i}, 16, v{RES+i}\nv_and_b32 v{ACC+2*i+1}, 0xffff0000, v{RES+i}")
    if final:
        fill = list(rm_addr)
    else:
        fill = lines(f"""s_add_u32 s37, s36, {hex(WS_X[lin+1])}
        s_mov_b32 s35, {ONES2}
        v_mov_b32 v24, 0
        v_mov_b32 v25, 0
        s_lshl_b32 s38, s4, 14
        s_lshl_b32 s31, s5, 10
        s_add_u32 s38, s38, s31
        s_lshl_b32 s31, s3, 8
        s_add_u32 s38, s38, s31
        s_add_u32 s38, s38, {hex(WS_ST[lin+1])}
        v_lshlrev_b32 v9, 2, v1""")
    if p_w == P_WOA:
        wloc, groups, order = wloc_a, [0, 9], ORD_A[9:] + [("bar0",), ("bar", 11),
                                                          lambda q: (qkvb_early(k, 0), qkvb_early(k, 1))]
    else:
        wloc, groups, order = wloc_b, [0, 15], [15, ("bar0",), ("bar", 15)]
    blocks = []
    gemm2_compute(k, tag, ACC, XR, WF, 12, wloc, None, filler=fill, groups=groups, pre=lambda q: acc_init(),
                  kord=ORD_A if p_w == P_WOA else None, tagged=blocks)
    RES = 96
    for q in range(4):
        a = RES + 4 * q
        for j in range(4):
            ac = ACC + 8 * q + 2 * j
            k(f"v_cvt_pk_bf16_f32 v{a+j}, v{ac}, v{ac+1}")
        if final:
            k(f"v_permlane32_swap_b32 v{a}, v{a+2}\nv_permlane32_swap_b32 v{a+1}, v{a+3}")
            k(f"buffer_store_dwordx4 {vr(a,4)}, v9, s[24:27], 0 offen offset:{32*q}")
        else:
            k(f"buffer_store_dwordx4 {vr(a,4)}, v10, s[16:19], s37 offen offset:{1024*q} sc1")
    if not final:
        for i in range(16):
            k(f"v_dot2_f32_bf16 v24, v{RES+i}, s35, v24\nv_dot2_f32_bf16 v25, v{RES+i}, v{RES+i}, v25")
        k(f"""
        v_permlane32_swap_b32 v24, v25
        v_add_f32 v24, v24, v25
        buffer_store_dword v24, v9, s[16:19], s38 offen sc1
        """)
        stamp(k, tag + "_st")
        k("s_waitcnt vmcnt(0)")
        stamp(k, tag + "_drain")
        signal(k, sig_base, "s4", 4, cnt, "s5")
    k(f"s_branch {END}")
    for b_ in blocks:
        b_()
    k(f"{LD}:")
    gemm2_loader(k, tag, wloc, order)
    k(f"s_barrier\n{END}:")
    if False:
        k("s_barrier")


QX_B = 147456
WKV_L = 81920
VT_B = 155648
CSP_L = VT_B + 2304
CSX_L = 131072


def wloc_q(st):
    if st < 3:
        return 57344 + 8192 * st
    if st < 10:
        return 8192 * (st - 3)
    if st == 10:
        return 147456
    if st < 15:
        return WKV_L + 16384 * (st - 11) + 8192
    return WKV_L


def qkvb_early(k, part):
    if part == 0:
        wpf_setup(k, P_WQ, 4, "s30")
        wpf_issue(k, [0, 1, 2], wloc_q, 4)
        return
    A_, B_ = k.label("qe"), k.label("qe")
    k(f"s_cmp_ge_u32 s5, 8\ns_cbranch_scc1 {A_}")
    k(f"""s_bitcmp1_b32 s5, 0
    s_cselect_b32 s46, s{P_WV}, s{P_WK}
    s_cselect_b32 s47, s{P_WV+1}, s{P_WK+1}""")
    srd(k, 20, 46, D * 32 * 2)
    k(f"""s_lshl_b32 s39, s30, 14
    s_add_u32 s31, s39, {WKV_L}""")
    for g in range(4):
        k(f"s_add_u32 m0, s31, {4096*g}")
        for jj in range(4):
            k(f"buffer_load_dwordx4 v8, s[20:23], s39 offen offset:{1024*jj} lds")
        k("s_add_u32 s39, s39, 4096")
    k(f"s_branch {B_}\n{A_}:")
    wpf_issue(k, [11, 12, 13, 14, 15], wloc_q, 4)
    k(f"{B_}:")


def phase_qkvb(k, tag, rep, lin, wt):
    LD, END, NOKV, SG = [k.label(tag + x) for x in ("_ld", "_end", "_nokv", "_sg")]
    first = rep == 0
    tile_map(k, "4x8")
    srd_off(k, 8, P_WS, WS_X[lin], S * D * 2)
    srd(k, 12, P_WQ, D * D * 2)
    k("s_lshr_b32 s48, s5, 1")
    rdy = new_cnt()
    k(f"s_cmp_ge_u32 s3, 4\ns_cbranch_scc1 {LD}")
    ACC, WF, XR = 32, 64, 96
    STT, CS, RSTD, SC, BOP = 224, 20, 18, 28, 240
    CA, ON = 224 - 16, 224 - 8
    k(f"""
    v_lshlrev_b32 v10, 4, v1
    s_lshl_b32 s39, s4, 2
    s_add_u32 s36, s39, s48
    s_add_u32 s39, s39, s3
    s_lshl_b32 s39, s39, 16
    s_lshl_b32 s36, s36, 16
    s_lshl_b32 s31, s3, 14
    s_add_u32 s36, s36, s31
    """)
    w_tr_base(k, 12, "0", 128, True)
    k("v_xor_b32 v13, 64, v12")
    w_tr_base(k, 30, "0", 64, False)
    k(f"""s_lshl_b32 s31, s3, 14
    s_add_u32 s31, s31, {WKV_L}
    v_add_u32 v30, s31, v30
    v_add_u32 v31, s31, v10""")
    zero_cnt(k, rdy)
    for i in range(32):
        k(f"v_mov_b32 v{ACC+i}, 0")
    if first:
        ones_pattern(k, ON, 4, 5)
        for i in range(8):
            k(f"v_mov_b32 v{CA+i}, 0")
    k("s_waitcnt lgkmcnt(0)")

    def extra(j, w):
        if first:
            L_ = k.label("cs")
            k(f"""s_cmp_eq_u32 s3, {j % 4}
            s_cbranch_scc0 {L_}
            {M16(CA, ON, w)}
            {M16(CA + 4, ON, w + 4)}
            {L_}:""")

    fill = ["s_waitcnt vmcnt(0)"] + ln_stats(STT, RSTD, BOP) + [
        f"v_mul_f32 v{SC}, {f32(LOG2E * DH**-0.5)}, v{RSTD}",
        f"v_mov_b32 v{SC+1}, v{SC}"] + lines(f"""s_lshl_b32 s34, s3, 11
        s_add_u32 s34, s34, {QX_B}
        v_add_u32 v11, s34, v10""")
    if not first:
        fill += cs_build(CS, 251) + cs_build(CS + 4, 252)

    XF, WP_, E_ = 128, 64, 192

    def prepass_a():
        L = k.label("pp")
        k(f"""s_cmp_ge_u32 s5, 8
        s_cbranch_scc1 {NOKV}_a
        s_lshl_b32 s31, s3, 2
        s_add_u32 s31, s31, 3
        {L}:
        ds_read_b32 v5, v4
        s_waitcnt lgkmcnt(0)
        v_readfirstlane_b32 s63, v5
        s_cmp_gt_u32 s63, s31
        s_cbranch_scc0 {L}""")
        for t in range(16):
            k(f"buffer_load_dwordx4 {vr(XF+4*t,4)}, v10, s[8:11], s36 offen offset:{1024*(t&3)} sc1")
            if t & 3 == 3:
                k("s_add_u32 s36, s36, 4096")
        k(f"{NOKV}_a:")

    def prepass_b(q):
        k(f"s_cmp_ge_u32 s5, 8\ns_cbranch_scc1 {NOKV}")

        def wr(t):
            for rd in range(2):
                k(f"ds_read_b64_tr_b16 {vr(WP_+4*(t%8)+2*rd,2)}, v30 offset:{(16*t+8*rd)*64}")
        for t in range(7):
            wr(t)
        for t in range(16):
            k(f"s_waitcnt vmcnt({15-t+XINIT}) lgkmcnt({2*min(6, 15-t)})")
            k(M32(E_, WP_ + 4 * (t % 8), XF + 4 * t, "0" if t == 0 else None))
            if first:
                k(M16(224, ON, WP_ + 4 * (t % 8), "0" if t == 0 else None))
            if t + 7 < 16:
                wr(t + 7)
        for qq in range(4):
            k(f"ds_write_b128 v31, {vr(E_+4*qq,4)} offset:{1024*qq}")
        if first:
            k(f"""s_lshl_b32 s31, s3, 8
            s_add_u32 s31, s31, {CSP_L}
            v_lshlrev_b32 v9, 2, v1
            v_add_u32 v9, s31, v9
            ds_write_b32 v9, v224""")
        k(f"s_waitcnt lgkmcnt(0)\n{NOKV}:\ns_barrier")

    gemm2_compute(k, tag, ACC, XR, WF, 12, wloc_q, wt, filler=fill, extra=extra, groups=[0, 11, 15], rdy=rdy,
                  before_x=prepass_a, pre=prepass_b, ring=28, cpoll=16, cpoll_first=True,
                  late={46: lambda q: stats_loads(k, STT, "s3", 9, WS_ST[lin], q)}, fill_from=58)
    if first:
        k(f"""v_lshlrev_b32 v9, 2, v1
        v_add_u32 v9, {CSX_L}, v9
        s_lshl_b32 s31, s3, 9
        v_add_u32 v4, s31, v9
        ds_write_b32 v4, v{CA}
        ds_write_b32 v4, v{CA+4} offset:256
        s_waitcnt lgkmcnt(0)
        s_barrier""")
        for w in range(4):
            for bl in range(2):
                k(f"ds_read_b32 v{144+4*bl+w}, v9 offset:{512*w+256*bl}")
        k("s_waitcnt lgkmcnt(0)")
        for bl in range(2):
            t_ = 144 + 4 * bl
            k(f"v_add_f32 v{t_}, v{t_}, v{t_+1}\nv_add_f32 v{t_+2}, v{t_+2}, v{t_+3}\nv_add_f32 v{t_}, v{t_}, v{t_+2}")
            for l_ in hilo(t_, 251 + bl, 4) + cs_build(CS + 4 * bl, 251 + bl):
                k(l_)
    k(M32(ACC + 16, CS + 4, BOP))
    k(M32(ACC, CS, BOP))
    pk_mul(k, ACC + 16, ACC + 16, SC, 16)
    for i in range(8):
        k(f"v_cvt_pk_bf16_f32 v{88+i}, v{ACC+16+2*i}, v{ACC+16+2*i+1}")
    for t in range(2):
        k(f"ds_write_b128 v11, {vr(88+4*t,4)} offset:{1024*t}")
    pk_mul(k, ACC, ACC, SC, 16)
    for i in range(8):
        k(f"v_cvt_pk_bf16_f32 v{180+i}, v{ACC+2*i}, v{ACC+2*i+1}")
    k(f"s_branch {END}\n{LD}:")

    E = 32

    def g0(q):
        k("s_waitcnt vmcnt(16)\ns_barrier")
        rdy_poller(k, wt, rdy)
        S6, L6 = k.label("s6"), k.label("l6")
        k(f"""s_cmp_lg_u32 s3, 6
        s_cbranch_scc1 {S6}
        s_setprio 3
        v_mov_b32 v4, {rdy}
        {L6}:
        ds_read_b32 v5, v4
        s_waitcnt lgkmcnt(0)
        v_readfirstlane_b32 s63, v5
        s_cmp_gt_u32 s63, 15
        s_cbranch_scc0 {L6}
        s_and_b32 s49, s48, 3""")
        stats_loads(k, STT, "s49", 9, WS_ST[lin])
        k(f"""s_lshl_b32 s54, s4, 2
        s_add_u32 s54, s54, s48
        s_lshl_b32 s54, s54, 12
        s_add_u32 s54, s54, {hex(WS_KV[rep])}
        v_mul_u32_u24 v26, 72, v2
        v_lshl_add_u32 v26, v3, 3, v26
        v_add_u32 v26, {VT_B}, v26
        v_and_b32 v24, 15, v1
        v_lshrrev_b32 v25, 2, v24
        v_lshl_add_u32 v25, v3, 2, v25
        v_mul_u32_u24 v25, 72, v25
        v_and_b32 v24, 3, v24
        v_lshl_add_u32 v25, v24, 3, v25
        v_bfe_u32 v24, v1, 4, 1
        v_lshl_add_u32 v25, v24, 5, v25
        v_add_u32 v25, {VT_B}, v25
        s_waitcnt vmcnt(0)""")
        for l_ in ln_stats(STT, RSTD, BOP):
            k(l_)
        k(f"v_mov_b32 v{RSTD+1}, v{RSTD}")
        if not first:
            for l_ in cs_build(CS, 248):
                k(l_)
        k(f"{S6}:\ns_waitcnt vmcnt(0)\ns_barrier")

    def w1114():
        for st in (11, 12, 13, 14):
            k(f"s_add_u32 m0, s35, {wloc_q(st)}\ns_mov_b32 s38, {st*64*2048}")
            for jj in range(2):
                k(f"buffer_load_dwordx4 v{12+jj}, s[12:15], s38 offen offset:{1024*jj} lds")

    def kvfin(q):
        SK, S2, W6 = k.label("kvs"), k.label("kvs"), k.label("kvs")
        k(f"""s_cmp_ge_u32 s5, 8
        s_cbranch_scc1 {SK}
        s_cmp_eq_u32 s3, 6
        s_cbranch_scc1 {W6}""")
        w1114()
        k(f"s_branch {SK}\n{W6}:")
        k(f"v_add_u32 v9, {WKV_L}, v8")
        for w in range(4):
            for qq in range(4):
                k(f"ds_read_b128 {vr(E+16*w+4*qq,4)}, v9 offset:{16384*w+1024*qq}")
        if first:
            k(f"v_lshlrev_b32 v9, 2, v1\nv_add_u32 v9, {CSP_L}, v9")
            for w in range(4):
                k(f"ds_read_b32 v{100+w}, v9 offset:{256*w}")
        k("s_waitcnt lgkmcnt(0)")
        for i in range(0, 16, 2):
            k(f"v_pk_add_f32 {vr(E+i,2)}, {vr(E+i,2)}, {vr(E+16+i,2)}")
            k(f"v_pk_add_f32 {vr(E+32+i,2)}, {vr(E+32+i,2)}, {vr(E+48+i,2)}")
            k(f"v_pk_add_f32 {vr(E+i,2)}, {vr(E+i,2)}, {vr(E+32+i,2)}")
        if first:
            k("v_add_f32 v100, v100, v101\nv_add_f32 v102, v102, v103\nv_add_f32 v100, v100, v102")
            for l_ in hilo(100, 248, 4) + cs_build(CS, 248):
                k(l_)
        k(M32(E, CS, BOP))
        pk_mul(k, E, E, RSTD, 16)
        for i in range(8):
            k(f"v_cvt_pk_bf16_f32 v{96+i}, v{E+2*i}, v{E+2*i+1}")
        k(f"s_bitcmp1_b32 s5, 0\ns_cbranch_scc0 {SG}")
        for i in range(4):
            k(f"ds_write_b64 v26, {vr(96+2*i,2)} offset:{16*i}")
        k("s_waitcnt lgkmcnt(0)")
        for t in range(2):
            for e in range(2):
                k(f"ds_read_b64_tr_b16 {vr(96+4*t+2*e,2)}, v25 offset:{(16*t+8*e)*72}")
        k(f"s_waitcnt lgkmcnt(0)\ns_add_u32 s54, s54, 2048\n{SG}:")
        for t in range(2):
            k(f"buffer_store_dwordx4 {vr(96+4*t,4)}, v8, s[16:19], s54 offen offset:{1024*t} sc1")
        k("s_waitcnt vmcnt(0)\ns_mov_b32 s61, s35")
        signal(k, flag_off(rep, F_KVB), "s4")
        k("s_mov_b32 s35, s61")
        stamp(k, tag + "_kvsig")
        w1114()
        k(f"""{SK}:
        s_setprio 0
        s_waitcnt vmcnt(0)
        s_barrier
        s_cmp_ge_u32 s5, 8
        s_cbranch_scc1 {S2}
        s_add_u32 m0, s35, {wloc_q(15)}
        s_mov_b32 s38, {15*64*2048}""")
        for jj in range(2):
            k(f"buffer_load_dwordx4 v{12+jj}, s[12:15], s38 offen offset:{1024*jj} lds")
        k(f"{S2}:")
        NPK = k.label("npk")
        k(f"s_cmp_lg_u32 s3, 7\ns_cbranch_scc1 {NPK}")
        wait_flag(k, flag_off(rep, F_KVB), None, 8, True)
        stamp(k, tag + "_kvflag")
        k(f"""{NPK}:
        s_waitcnt vmcnt(0)
        s_barrier
        s_lshl_b32 s31, s30, 13
        s_add_u32 s39, s31, {hex(WS_KV[rep])}""")
        for hf in range(2):
            k(f"s_add_u32 m0, s31, {4096*hf}")
            for qq in range(4):
                k(f"buffer_load_dwordx4 v8, s[16:19], s39 offen offset:{1024*qq} sc1 lds")
            k("s_add_u32 s39, s39, 4096")

    gemm2_loader(k, tag, wloc_q, list(range(3, 11)) + [g0, kvfin])
    k("s_barrier\n" * (2 if first else 1) + f"{END}:")


def phase_attn(k, tag, rep, oi):
    name = k.label(tag)
    Q, NEG, SA, SB, P, O, L, ONE, KF, VF = 8, 16, 32, 48, 64, 80, 96, 100, 104, 120
    k(f"""
    s_lshr_b32 s36, s3, 2
    s_and_b32 s37, s3, 3
    s_lshl_b32 s38, s5, 1
    s_add_u32 s38, s38, s36
    s_lshl_b32 s39, s4, 2
    s_add_u32 s39, s39, s37
    v_lshlrev_b32 v128, 4, v1
    """)
    cnt = new_cnt()
    zero_cnt(k, cnt)
    k(f"""
    v_mov_b32 v4, v128
    s_lshl_b32 s30, s3, 12
    s_add_u32 s31, s30, {hex(WS_KV[rep] + 32768)}
    """)

    def dma():
        for q in range(4):
            k(f"buffer_load_dwordx4 v4, s[16:19], s31 offen offset:{1024*q} sc1 lds")
        k("s_add_u32 s31, s31, 32768")

    for c in range(2):
        k(f"s_add_u32 m0, s30, {32768*(c+1)}")
        dma()
    ones_pattern(k, ONE, 5, 6)
    for i in range(16):
        k(f"v_mov_b32 v{O+i}, 0")
    for i in range(4):
        k(f"v_mov_b32 v{L+i}, 0")
    for i in range(8):
        k(f"v_mov_b32 v{P+i}, 0")
    k(f"v_mov_b32 v129, v4\ns_waitcnt vmcnt(8) lgkmcnt(0)")
    stamp(k, tag + "_e2")
    k(f"""s_barrier
    s_cmp_ge_u32 s3, 4
    s_cbranch_scc1 {name}_qld
    """)
    for i in range(8):
        k(f"v_mov_b32 v{Q+i}, v{180+i}")
    k(f"""s_branch {name}_go
    {name}_qld:
    s_lshl_b32 s34, s37, 11
    s_add_u32 s34, s34, {QX_B}
    v_add_u32 v5, s34, v128
    ds_read_b128 {vr(Q,4)}, v5
    ds_read_b128 {vr(Q+4,4)}, v5 offset:1024
    {name}_go:""")
    stamp(k, tag + "_b0")
    K1, K2, V1, V2 = KF, KF + 4, VF, VF + 4
    k(f"""ds_read_b128 {vr(K1,4)}, v129
    ds_read_b128 {vr(K2,4)}, v129 offset:1024
    s_waitcnt lgkmcnt(0)
    """)
    k(M32(SA, K1, Q, "0"))
    k(M32(SA, K2, Q + 4))
    k(f"v_max3_f32 v5, v{SA}, v{SA+1}, v{SA+2}")
    for i in range(3, 15, 2):
        k(f"v_max3_f32 v5, v5, v{SA+i}, v{SA+i+1}")
    k(f"""v_max_f32 v5, v5, v{SA+15}
    v_mov_b32 v6, v5
    v_permlane32_swap_b32 v5, v6
    v_max_f32 v5, v5, v6
    """)
    for i in range(16):
        k(f"v_sub_f32 v{NEG+i}, 0, v5")
    for i in range(16):
        k(f"v_sub_f32 v{SA+i}, v{SA+i}, v5")
    if "at_prio" in sys.argv:
        k(f"s_cmp_lt_u32 s3, 4\ns_cbranch_scc1 {name}_pr\ns_setprio 1\n{name}_pr:")
    if rep == 0 and "warmA1" in sys.argv:
        k(f"s_cmp_lt_u32 s3, 4\ns_cbranch_scc1 {name}_nw")
        wqkv_warm(k, "s37")
        k(f"{name}_nw:")
    if rep == 0:
        k(f"s_cmp_ge_u32 s3, 4\ns_cbranch_scc1 {name}_nf")
        fill_ones(k, [2, 3], 4)
        k(f"{name}_nf:")
    wpf_setup(k, P_WOB, 8, "s3")
    k(f"""s_mov_b32 s92, s24
    s_mov_b32 s93, s25
    s_mov_b32 s94, s26
    s_mov_b32 s95, 0x20000
    v_mov_b32 v130, v241
    s_add_u32 s96, s60, 131072
    s_mov_b32 s97, {12*131072}
    s_movk_i32 s98, 8192
    s_mov_b32 s99, 0x20000""")
    k(f"""ds_read_b128 {vr(V2,4)}, v129 offset:3072
    ds_read_b128 {vr(K1,4)}, v129 offset:4096
    ds_read_b128 {vr(K2,4)}, v129 offset:5120
    ds_read_b128 {vr(V1,4)}, v129 offset:2048
    s_mov_b32 s32, 0
    v_mov_b32 v5, v129
    v_add_u32 v6, 32768, v4
    s_mov_b32 s33, 0x18000
    {name}_loop:""")

    def ex(cur, a, b):
        for i in range(a, b):
            k(f"v_exp_f32 v{cur+i}, v{cur+i}")

    def cv(cur, a, b):
        for i in range(a, b):
            k(f"v_cvt_pk_bf16_f32 v{P+i}, v{cur+2*i}, v{cur+2*i+1}")

    def rd(dst, tile, part):
        if "at_nord" in sys.argv:
            return
        bb, oo = (5, tile * 4096) if tile < 8 else (6, (tile - 8) * 4096)
        k(f"ds_read_b128 {vr(dst,4)}, v{bb} offset:{oo+1024*part}")

    def slot():
        k("""s_mov_b32 m0, s96
        s_add_u32 s96, s96, s98
        buffer_load_dwordx4 v130, s[92:95], s97 offen sc1 lds
        s_add_u32 s97, s97, s99""")

    for j in range(8):
        cur, nxt = (SA, SB) if j % 2 == 0 else (SB, SA)
        k("s_waitcnt lgkmcnt(3)")
        k(M32(O, V2, P + 4))
        rd(V2, j, 3)
        ex(cur, 0, 4)
        k(M16(L, ONE, P + 4))
        ex(cur, 4, 6)
        if j == 6:
            k(f"""s_waitcnt vmcnt(4)
            s_barrier
            s_cmp_ge_u32 s32, 5
            s_cbranch_scc1 {name}_wm
            s_mov_b32 s92, s16
            s_mov_b32 s93, s17
            s_mov_b32 s94, s18
            v_mov_b32 v130, v4
            s_add_u32 s96, s30, s33
            s_mov_b32 s97, s31
            s_add_u32 s31, s31, 32768
            s_movk_i32 s98, 1024
            s_movk_i32 s99, 1024
            s_branch {name}_dd
            {name}_wm:
            s_mov_b32 s92, s24
            s_mov_b32 s93, s25
            s_mov_b32 s94, s26
            v_mov_b32 v130, v241
            s_sub_u32 s97, s32, 5
            s_lshl_b32 s96, s97, 15
            s_add_u32 s96, s96, s60
            s_lshl_b32 s97, s97, 19
            s_movk_i32 s98, 8192
            s_mov_b32 s99, 0x20000""")
            if rep == 0 and "warmF" in sys.argv:
                k(f"""s_cmp_lg_u32 s32, 5
                s_cbranch_scc1 {name}_dd
                s_cmp_lt_u32 s3, 4
                s_cbranch_scc1 {name}_dd""")
                warm(k, P_WQKV, "8x4", "s37")
            k(f"""{name}_dd:""")
        if j % 2 == 0:
            k(f"s_setprio {3 - ((j - 6) % 8) // 2}")
        k("s_waitcnt lgkmcnt(3)")
        k(M32(nxt, K1, Q, vr(NEG, 16)))
        rd(K1, j + 2, 0)
        ex(cur, 6, 8)
        cv(cur, 0, 4)
        k("s_waitcnt lgkmcnt(3)")
        k(M32(nxt, K2, Q + 4))
        rd(K2, j + 2, 1)
        ex(cur, 8, 12)
        if j in (6, 7, 0, 1):
            slot()
        k("s_waitcnt lgkmcnt(3)")
        k(M32(O, V1, P))
        rd(V1, j + 1, 2)
        ex(cur, 12, 16)
        k(M16(L, ONE, P))
        cv(cur, 4, 8)
        if j == 7:
            k(f"""
            v_mov_b32 v5, v6
            s_add_u32 s33, s33, 0x8000
            s_and_b32 s33, s33, 0x1ffff
            s_add_u32 s34, s33, 0x10000
            s_and_b32 s34, s34, 0x1ffff
            v_add_u32 v6, s34, v4
            s_add_u32 s32, s32, 1
            s_cmp_lt_u32 s32, 8
            s_cbranch_scc1 {name}_loop
            s_waitcnt lgkmcnt(0)
            s_barrier
            """)
    k(M32(O, V2, P + 4))
    k(M16(L, ONE, P + 4))
    slot()
    slot()
    wpf_issue(k, [14], wloc_b, 8)
    stamp(k, tag + "_loopend")
    k("s_setprio 0")
    k(f"v_max3_f32 v5, abs(v{O}), abs(v{O+1}), abs(v{O+2})")
    for i in range(3, 15, 2):
        k(f"v_max3_f32 v5, v5, abs(v{O+i}), abs(v{O+i+1})")
    k(f"""v_max3_f32 v5, v5, abs(v{O+15}), v{L}
    v_mov_b32 v6, 0
    """)
    for i in range(16):
        k(f"v_fma_f32 v6, v{O+i}, 0, v6")
    k(f"""v_fma_f32 v6, v{L}, 0, v6
    v_add_f32 v5, v5, v6
    s_mov_b32 s34, {f32(2.0**100 if 'forceslow' not in sys.argv else 0.0)}
    v_cmp_nlt_f32 vcc, v5, s34
    s_cbranch_vccz {name}_fin
    """)
    for i in range(16):
        k(f"v_mov_b32 v{O+i}, 0")
    for i in range(4):
        k(f"v_mov_b32 v{L+i}, 0")
    k(f"""v_mov_b32 v7, 0xff800000
    s_mov_b32 s31, {hex(WS_KV[rep])}
    s_mov_b32 s32, 0
    {name}_sloop:
    buffer_load_dwordx4 {vr(KF,4)}, v4, s[16:19], s31 offen sc1
    buffer_load_dwordx4 {vr(KF+4,4)}, v4, s[16:19], s31 offen offset:1024 sc1
    buffer_load_dwordx4 {vr(VF,4)}, v4, s[16:19], s31 offen offset:2048 sc1
    buffer_load_dwordx4 {vr(VF+4,4)}, v4, s[16:19], s31 offen offset:3072 sc1
    s_waitcnt vmcnt(0)
    """)
    k(M32(SA, KF, Q, "0"))
    k(M32(SA, KF + 4, Q + 4))
    k(f"v_max3_f32 v5, v{SA}, v{SA+1}, v{SA+2}")
    for i in range(3, 15, 2):
        k(f"v_max3_f32 v5, v5, v{SA+i}, v{SA+i+1}")
    k(f"""v_max_f32 v5, v5, v{SA+15}
    v_mov_b32 v6, v5
    v_permlane32_swap_b32 v5, v6
    v_max3_f32 v5, v5, v6, v7
    v_sub_f32 v6, v7, v5
    v_exp_f32 v6, v6
    v_mov_b32 v7, v5
    """)
    for i in range(16):
        k(f"v_sub_f32 v{SA+i}, v{SA+i}, v5")
    for i in range(16):
        k(f"v_exp_f32 v{SA+i}, v{SA+i}")
    for i in range(16):
        k(f"v_mul_f32 v{O+i}, v{O+i}, v6")
    for i in range(4):
        k(f"v_mul_f32 v{L+i}, v{L+i}, v6")
    for i in range(8):
        k(f"v_cvt_pk_bf16_f32 v{P+i}, v{SA+2*i}, v{SA+2*i+1}")
    k(M32(O, VF, P))
    k(M16(L, ONE, P))
    k(M32(O, VF + 4, P + 4))
    k(M16(L, ONE, P + 4))
    k(f"""s_add_u32 s31, s31, 4096
    s_add_u32 s32, s32, 1
    s_cmp_lt_u32 s32, 64
    s_cbranch_scc1 {name}_sloop
    {name}_fin:
    v_rcp_f32 v6, v{L}
    s_lshl_b32 s34, s39, 16
    s_lshl_b32 s35, s38, 11
    s_add_u32 s34, s34, s35
    s_add_u32 s34, s34, {hex(WS_O[oi])}
    v_mov_b32 v7, v6
    """)
    pk_mul(k, O, O, 6, 16)
    for i in range(8):
        k(f"v_cvt_pk_bf16_f32 v{P+i}, v{O+2*i}, v{O+2*i+1}")
    for t in range(2):
        k(f"buffer_store_dwordx4 {vr(P+4*t,4)}, v4, s[16:19], s34 offen offset:{1024*t} sc1")
    stamp(k, tag + "_st")
    k("s_waitcnt vmcnt(2)")


def prep_jobs(k):
    def j_zero(q):
        k(f"""s_lshl_b32 s56, s2, 2
        s_add_u32 s56, s56, s30
        s_mul_i32 s56, s56, 48
        s_add_u32 s56, s56, {hex(WS_FL)}
        v_min_u32 v25, 11, v1
        v_lshlrev_b32 v25, 2, v25
        v_mov_b32 v26, 0
        buffer_store_dword v26, v25, s[16:19], s56 offen sc1""")
        q.add("jst")

    def j_wait(q):
        k(f"s_waitcnt vmcnt({q.cnt('jst')})")
        stamp(k, "job_drained")

    def j_sig(q):
        srd(k, 24, P_DBG, 256)
        k(f"""s_and_b32 s56, s2, 1
        s_lshl_b32 s56, s56, 7
        s_cmp_eq_u32 s3, 4
        s_cselect_b32 s56, s56, 0x7ffff000
        v_mov_b32 v4, 1
        v_mov_b32 v5, 0
        s_mov_b64 exec, 1
        buffer_atomic_add v4, v5, s[24:27], s56 offen sc1
        s_mov_b64 exec, -1""")
        q.add("jsig")

    def j_poll(q):
        L = k.label("ipoll")
        stamp(k, "job_prepoll")
        k(f"""s_cmp_lg_u32 s3, 4
        s_cbranch_scc1 {L}_ok
        v_and_b32 v4, 1, v1
        v_lshlrev_b32 v4, 7, v4
        s_mov_b32 s53, 0
        {L}:
        buffer_load_dword v5, v4, s[24:27], 0 offen sc1
        s_waitcnt vmcnt(0)
        v_cmp_gt_u32 vcc, 128, v5
        s_cbranch_vccz {L}_ok
        s_sleep 4
        s_add_u32 s53, s53, 1
        s_cmp_lt_u32 s53, 0x40000
        s_cbranch_scc1 {L}
        {L}_ok:""")
        stamp(k, "job_polled")

    return {0: j_zero, 3: j_wait, 5: j_sig, 9: j_poll}


def phase_qkva(k, tag, rep, lin, oi, wt):
    R, STG = 4, 40960
    LD, J0, J1, J2, NP = [k.label(tag + x) for x in ("_ld", "_j0", "_j1", "_j2", "_np")]
    tile_map(k, "4x8" if "qa48" in sys.argv else ("2x16" if "qa216" in sys.argv else "8x4"))
    first = lin == 0
    if first:
        srd(k, 8, P_X, S * D * 2)
    else:
        srd_off(k, 8, P_WS, WS_X[lin], S * D * 2)
    srd(k, 12, P_WQKV, D * 3 * D * 2)
    srd(k, 20, P_WPHI, H * DH * DH * 2)
    k(f"""
    s_bfe_u32 s48, s3, 0x10001
    s_and_b32 s49, s3, 1
    s_lshl_b32 s50, s5, 1
    s_add_u32 s50, s50, s49
    s_lshl_b32 s51, s48, 1
    s_lshr_b32 s31, s3, 2
    s_add_u32 s51, s51, s31
    """)
    STT, CS, WP = 176, 208, 220
    QXL = 51200
    KVL = 69632
    cnt_col, cnt_o, rdy_c = new_cnt(), new_cnt(), new_cnt()
    RSTD = [168, 170]
    LC = 172
    BOP = [240, 244]
    addr_setup = lines(f"""
    s_lshl_b32 s35, s51, 5
    v_add_u32 v238, s35, v2
    v_mul_u32_u24 v238, 200, v238
    v_lshl_add_u32 v238, v3, 3, v238
    s_mul_i32 s35, s49, 25600
    v_add_u32 v238, s35, v238
    s_and_b32 s35, s3, 3
    s_lshl_b32 s35, s35, 12
    s_add_u32 s35, s35, {QXL}
    v_lshlrev_b32 v239, 4, v1
    v_add_u32 v239, s35, v239
    """)
    wp_pack = [f"v_lshl_or_b32 v{WP+i}, v{WP+2*i+1}, 16, v{WP+2*i}" for i in range(8)]
    k(f"s_cmp_ge_u32 s3, 4\ns_cbranch_scc1 {LD}")
    LCL = QXL + 16384
    STL, CSL = 81920, 83968
    wphi_loads(k, WP, "s50")
    if first:
        k(f"""v_mov_b32 v240, -1
        v_mov_b32 v241, -1
        v_mov_b32 v242, -1
        v_mov_b32 v243, -1
        v_lshlrev_b32 v9, 4, v1
        s_lshl_b32 s34, s2, 2
        s_add_u32 s34, s34, s3
        s_lshl_b32 s34, s34, 12
        s_add_u32 s34, s34, {hex(WS_O[0])}""")
        for bi in range(1):
            for i in range(4):
                k(f"buffer_store_dwordx4 v[240:243], v9, s[16:19], s34 offen offset:{1024*i} sc1")
            k(f"s_add_u32 s34, s34, {4*MB}")
        k("s_lshl_b32 s35, s48, 6")
        x_addr(k, 12, "s35")
        k("s_lshl_b32 s35, s49, 6")
        w_tr_base(k, 16, "s35", 128, True, hs=3)
    else:
        k(f"""v_lshlrev_b32 v12, 4, v1
        s_lshl_b32 s35, s48, 13
        v_add_u32 v12, s35, v12
        s_lshl_b32 s35, s49, 6""")
        w_tr_base(k, 13, "s35", 128, True)
    ACC = 32
    for i in range(96):
        k(f"v_mov_b32 v{ACC+i}, 0")

    def acc(p, b):
        return ACC + 32 * p + 16 * b

    def mf(fr, t):
        return [M32(acc(p, b), fr + 8 + 4 * p, fr + 4 * b) for p in range(3) for b in range(2)]

    def st_l(kk=k):
        stats_loads(kk, STT, "s51", 10, WS_ST[lin])
        kk("s_add_u32 s31, s51, 1")
        stats_loads(kk, STT + 16, "s31", 10, WS_ST[lin])

    SL = 0
    tail = lines(f"""v_lshlrev_b32 v237, 2, v1
    s_lshl_b32 s35, s51, 9
    v_add_u32 v236, s35, v237
    ds_read_b32 v{RSTD[0]}, v236 offset:{SL}
    ds_read_b32 v{BOP[0]}, v236 offset:{SL+256}
    ds_read_b32 v{RSTD[1]}, v236 offset:{SL+512}
    ds_read_b32 v{BOP[1]}, v236 offset:{SL+768}""")
    if first:
        tail += ["s_mul_i32 s35, s49, 768", "v_add_u32 v236, s35, v237"]
        tail += [f"ds_read_b32 v{248+p}, v236 offset:{SL+2048+256*p}" for p in range(3)]
    tail += ["s_waitcnt vmcnt(0)"] + wp_pack + addr_setup + ["s_waitcnt lgkmcnt(0)"]
    for b in range(2):
        tail += [f"v_mov_b32 v{RSTD[b]+1}, v{RSTD[b]}"] + [f"v_mov_b32 v{BOP[b]+i}, v{BOP[b]}" for i in (1, 2, 3)]
    tail += [f"v_mul_f32 v{LC}, {f32(LOG2E)}, v{RSTD[0]}", f"v_mov_b32 v{LC+1}, v{LC}"]
    for p in range(3):
        tail += cs_build(CS + 4 * p, 248 + p)
    wl = [(1, 16384, 128), (1, 16384 + 8192, 128), (1, 16384 + 16384, 128)]
    if first:
        def touch2():
            if "notouch2" in sys.argv:
                return
            k(f"""s_lshl_b32 s34, s2, 2
            s_add_u32 s34, s34, s30
            s_lshl_b32 s37, s34, 11
            v_lshlrev_b32 v10, 4, v1""")
            for pw in (P_WOA, P_WQ, P_WOB):
                srd(k, 24, pw, D * D * 2)
                for i in range(2):
                    k(f"buffer_load_dwordx4 v[244:247], v10, s[24:27], s37 offen offset:{1024*i}")
            for pw in (P_WK, P_WV):
                srd(k, 24, pw, D * 32 * 2)
                k(f"buffer_load_dwordx4 v[244:247], v10, s[24:27], s37 offen")
                k(f"buffer_load_dwordx4 v[244:247], v10, s[24:27], s37 offen offset:1024")

        CA, SX, SQ, ON, TT = 176, 184, 188, 192, 196
        ones_pattern(k, ON, 4, 5)
        for i in range(176, 192):
            k(f"v_mov_b32 v{i}, 0")

        def mf0(fr, t):
            o = mf(fr, t)
            L1, L2, L3, L4 = [k.label("st") for _ in range(4)]

            def xs(b):
                r_ = M16(SX, ON, fr + 4 * b) + "\n"
                for i in range(4):
                    r_ += f"v_lshlrev_b32 v{TT+2*i}, 16, v{fr+4*b+i}\nv_and_b32 v{TT+2*i+1}, 0xffff0000, v{fr+4*b+i}\n"
                for i in range(8):
                    r_ += f"v_fmac_f32 v{SQ+(i&3)}, v{TT+i}, v{TT+i}\n"
                return r_
            o[4] += f"""
            s_cmp_eq_u32 s49, 0
            s_cbranch_scc0 {L1}
            {xs(0)}
            s_branch {L2}
            {L1}:
            {xs(1)}
            {L2}:"""
            o[5] += f"""
            s_cmp_eq_u32 s48, 0
            s_cbranch_scc0 {L3}
            {M16(CA, ON, fr + 8)}
            {M16(CA + 4, ON, fr + 12)}
            s_branch {L4}
            {L3}:
            {M16(CA, ON, fr + 16)}
            {L4}:"""
            return o

        def publish():
            k(f"""v_add_f32 v{SQ}, v{SQ}, v{SQ+1}
            v_add_f32 v{SQ+2}, v{SQ+2}, v{SQ+3}
            v_add_f32 v{SQ}, v{SQ}, v{SQ+2}
            v_mov_b32 v{SQ+1}, v{SQ}
            s_add_u32 s34, s4, s5
            s_and_b32 s34, s34, 15
            v_permlane32_swap_b32 v{SQ}, v{SQ+1}
            s_lshl_b32 s35, s4, 14
            s_lshl_b32 s36, s34, 10
            s_add_u32 s35, s35, s36
            s_lshl_b32 s36, s3, 8
            s_add_u32 s35, s35, s36
            s_add_u32 s35, s35, {hex(WS_ST[0])}
            v_add_f32 v{SQ}, v{SQ}, v{SQ+1}
            v_cndmask_b32 v{SQ}, v{SX}, v{SQ}, s[40:41]
            v_lshlrev_b32 v10, 2, v1
            buffer_store_dword v{SQ}, v10, s[16:19], s35 offen sc1
            s_mul_i32 s35, s50, 6144
            s_lshl_b32 s36, s34, 7
            s_add_u32 s35, s35, s36
            s_lshl_b32 s36, s48, 12
            s_add_u32 s35, s35, s36
            s_add_u32 s35, s35, {hex(WS_CSA)}
            s_cmp_eq_u32 s48, 0
            s_cselect_b32 s36, s35, 0x7ffff000
            v_lshlrev_b32 v10, 2, v2
            buffer_store_dword v{CA}, v10, s[16:19], s35 offen sc1
            buffer_store_dword v{CA+4}, v10, s[16:19], s36 offen offset:2048 sc1""")
            if "warmA0" in sys.argv:
                wqkv_warm(k, "s3")

        gemm_compute(k, R, STG, 1, [12, 13, 14, 15, 16], [0, 4096], wl, 128, mf, 20, 17, tag, nbuf=2, per=2,
                     filler=tail, e2=False, rm=True, pre_m=2,
                     at_iter=[(3, lambda: k("s_waitcnt vmcnt(0)"))], mf_first=mf0, after_first=publish)
    else:
        gemm_compute(k, R, STG, 1, [12, 13], [0, 4096], wl, 128, mf, 20, 20, tag, nbuf=2, per=2,
                     filler=tail, e2=False, pre_m=2)
    for p, b in ((1, 1), (0, 1), (1, 0), (2, 0), (2, 1), (0, 0)):
        k(M32(acc(p, b), CS + 4 * p, BOP[b]))
    k(f"""v_lshlrev_b32 v4, 3, v1
    v_mov_b32 v6, 0
    v_mov_b32 v7, 0
    ds_write_b64 v4, v[6:7] offset:{KVL+8192-65536+65536 if KVL+8192 < 65536 else 0}""" if False else "")
    k(f"""v_lshlrev_b32 v4, 3, v1
    v_add_u32 v4, {KVL+8192}, v4
    v_mov_b32 v6, 0
    v_mov_b32 v7, 0
    ds_write_b64 v4, v[6:7]""")
    zero_cnt(k, cnt_col)
    zero_cnt(k, cnt_o)
    zero_cnt(k, rdy_c)
    for p, d_ in ((1, 128), (0, 136)):
        for i in range(8):
            k(f"v_cvt_pk_bf16_f32 v{d_+i}, v{acc(p,1)+2*i}, v{acc(p,1)+2*i+1}")
        for t in range(2):
            k(f"ds_write_b128 v239, {vr(d_+4*t,4)} offset:{(d_-128)*256+1024*t}")
    for i in range(8):
        k(f"v_cvt_pk_bf16_f32 v{144+i}, v{acc(1,0)+2*i}, v{acc(1,0)+2*i+1}")
    k("s_waitcnt lgkmcnt(0)\ns_barrier")
    stamp(k, tag + "_ba")
    k(M32(acc(1, 0), WP, 144, "0"))
    k(M32(acc(1, 0), WP + 4, 148))
    for b in range(2):
        pk_mul(k, acc(2, b), acc(2, b), RSTD[b], 16)
        for i in range(8):
            k(f"v_cvt_pk_bf16_f32 v{128+8*b+i}, v{acc(2,b)+2*i}, v{acc(2,b)+2*i+1}")
        for i in range(4):
            k(f"ds_write_b64 v238, {vr(128+8*b+2*i,2)} offset:{6400*b+128+16*i}")
    for i in range(8):
        k(f"v_cvt_pk_bf16_f32 v{160+i}, v{acc(0,0)+2*i}, v{acc(0,0)+2*i+1}")
    KRAW = acc(1, 0)
    k(f"s_branch {J0}\n{LD}:")

    def l2pf(q):
        if "l2pf" not in sys.argv:
            return
        if not first:
            stage_poll(k, 15)
        if first:
            k(f"""s_and_b32 s56, s5, 3
            s_lshl_b32 s56, s56, 2
            s_add_u32 s56, s56, s30
            s_lshl_b32 s56, s56, 14
            s_lshl_b32 s57, s4, 18
            s_add_u32 s56, s56, s57""")
        else:
            k(f"""s_and_b32 s56, s5, 3
            s_lshl_b32 s56, s56, 2
            s_add_u32 s56, s56, s30
            s_lshl_b32 s56, s56, 14
            s_lshl_b32 s57, s4, 18
            s_add_u32 s56, s56, s57""")
        k(f"""v_lshlrev_b32 v240, 7, v1
        buffer_load_dword v244, v240, s[8:11], s56 offen
        s_add_u32 s56, s56, 8192
        buffer_load_dword v244, v240, s[8:11], s56 offen
        s_and_b32 s56, s4, 7
        s_lshl_b32 s56, s56, 2
        s_add_u32 s56, s56, s30
        s_mul_i32 s56, s56, {32*6144}
        s_lshl_b32 s57, s5, 7
        s_add_u32 s56, s56, s57
        v_and_b32 v240, 31, v1
        v_mul_u32_u24 v240, 6144, v240
        v_lshl_add_u32 v240, v3, 11, v240
        buffer_load_dword v244, v240, s[12:15], s56 offen
        s_add_u32 s56, s56, 4096
        buffer_load_dword v244, v240, s[12:15], s56 offen""")
        q.add("pf", 4)

    def ls_load(q):
        if not first:
            stage_poll(k, 15)
        stats_loads(k, STT, "s30", 10, WS_ST[lin], q)
        if first:
            k(f"""v_lshlrev_b32 v9, 2, v2
            v_lshl_add_u32 v9, v3, 10, v9
            s_mul_i32 s54, s50, 6144
            s_lshl_b32 s55, s48, 12
            s_add_u32 s54, s54, s55
            s_add_u32 s54, s54, {hex(WS_CSA)}""")
            for p in range(2):
                for i in range(8):
                    k(f"buffer_load_dword v{32+8*p+i}, v9, s[16:19], s54 offen offset:{2048*p+128*i} sc1")
                    q.add("stats")

    def ls_work(q):
        k(f"s_setprio 2\ns_waitcnt vmcnt({q.cnt('stats')})")
        for l_ in ln_stats(STT, 64, 68):
            k(l_)
        k(f"""v_lshlrev_b32 v237, 2, v1
        s_lshl_b32 s54, s30, 9
        v_add_u32 v236, s54, v237
        ds_write_b32 v236, v64 offset:{SL}
        ds_write_b32 v236, v68 offset:{SL+256}""")
        if first:
            SK = k.label("lsk")
            k(f"""s_mul_i32 s54, s49, 768
            s_lshl_b32 s55, s48, 9
            s_add_u32 s54, s54, s55
            v_add_u32 v236, s54, v237""")
            for p in range(2):
                c_ = 32 + 8 * p
                if p == 1:
                    k(f"s_cmp_lg_u32 s48, 0\ns_cbranch_scc1 {SK}")
                for st_ in (4, 2, 1):
                    for i in range(st_):
                        k(f"v_add_f32 v{c_+i}, v{c_+i}, v{c_+i+st_}")
                k(f"v_mov_b32 v{c_+1}, v{c_}\nv_permlane32_swap_b32 v{c_}, v{c_+1}\nv_add_f32 v{c_}, v{c_}, v{c_+1}")
                for l_ in hilo(c_, c_ + 2, c_ + 1):
                    k(l_)
                k(f"ds_write_b32 v236, v{c_+2} offset:{SL+2048+256*p}")
            k(f"{SK}:")
        k("s_waitcnt lgkmcnt(0)\ns_setprio 0")

    if first:
        mid_ = prep_jobs(k)
        mid_.update({10: ls_load, 13: ls_work, 14: lambda q: (touch2(), q.add('t', 10))})
        gemm_loader(k, 3, 6144, R, STG, False, False, tag, None, pre=lambda: wphi_loads(k, WP, "s50"),
                    mid=mid_, rm=True)
    else:
        gemm_loader(k, 3, 6144, R, STG, False, False, tag, wt, pre=lambda: wphi_loads(k, WP, "s50"), staged=STAGED,
                    mid={9: ls_load, 13: ls_work})
    for l_ in addr_setup + wp_pack:
        k(l_)
    k(f"""s_lshl_b32 s35, s51, 9
    v_add_u32 v236, s35, v237
    ds_read_b32 v{LC}, v236 offset:{SL}
    s_waitcnt lgkmcnt(0)
    v_mul_f32 v{LC}, {f32(LOG2E)}, v{LC}
    v_mov_b32 v{LC+1}, v{LC}""")
    wpf_setup(k, P_WOA, 4, "s30")
    k("s_barrier\ns_barrier")
    k(f"""ds_read_b128 {vr(144,4)}, v239
    ds_read_b128 {vr(148,4)}, v239 offset:1024
    ds_read_b128 {vr(160,4)}, v239 offset:2048
    ds_read_b128 {vr(164,4)}, v239 offset:3072
    s_waitcnt lgkmcnt(2)""")
    k(M32(KRAW, WP, 144, "0"))
    k(M32(KRAW, WP + 4, 148))
    k(f"{J0}:")
    feat_map(k, KRAW, LC, 176, 144)
    for s_ in range(2):
        for i in range(4):
            k(f"ds_write_b64 v238, {vr(144+8*s_+2*i,2)} offset:{64*s_+16*i}")
    QRAW = 96
    k("s_waitcnt lgkmcnt(8)")
    k(M32(QRAW, WP, 160, "0"))
    k(M32(QRAW, WP + 4, 164))
    k(f"""
    v_and_b32 v4, 15, v1
    v_lshrrev_b32 v5, 2, v4
    v_lshl_add_u32 v5, v5, 3, v3
    v_mul_u32_u24 v5, 200, v5
    v_and_b32 v6, 3, v4
    v_lshl_add_u32 v5, v6, 3, v5
    v_bfe_u32 v7, v1, 4, 1
    v_lshl_add_u32 v5, v7, 5, v5
    s_mul_i32 s35, s49, 25600
    v_add_u32 v14, s35, v5
    s_lshl_b32 s35, s48, 6
    v_add_u32 v15, s35, v14
    """)
    ones_pattern(k, 24, 28, 29)
    k(f"""
    s_lshl_b32 s36, s50, 16
    s_lshl_b32 s35, s4, 12
    s_add_u32 s36, s36, s35
    s_lshl_b32 s35, s48, 11
    s_add_u32 s36, s36, s35
    s_add_u32 s36, s36, {hex(WS_KVP[rep])}
    s_lshl_b32 s39, s50, 12
    s_lshl_b32 s35, s4, 8
    s_add_u32 s39, s39, s35
    s_lshl_b32 s35, s48, 7
    s_add_u32 s39, s39, s35
    s_add_u32 s39, s39, {hex(WS_ZP[rep])}
    v_lshlrev_b32 v11, 2, v2
    v_lshlrev_b32 v10, 4, v1
    s_waitcnt lgkmcnt(0)
    s_barrier
    """)
    stamp(k, tag + "_bb")
    PHQ = 144
    k(f"s_cmp_ge_u32 s3, 4\ns_cbranch_scc1 {J1}")
    KVA, ZA = 32, 48
    FR = [176 + 8 * i for i in range(4)]

    def trr(s_):
        blk, t = s_ >> 1, s_ & 1
        f = FR[s_ % 4]
        for rd in range(2):
            off = (32 * blk + 4 * t + 2 * rd) * 200
            k(f"ds_read_b64_tr_b16 {vr(f+2*rd,2)}, v15 offset:{off}")
            k(f"ds_read_b64_tr_b16 {vr(f+4+2*rd,2)}, v14 offset:{off+128}")

    for s_ in range(3):
        trr(s_)
    for s_ in range(8):
        rem = min(7, s_ + 2) - s_
        k(f"s_waitcnt lgkmcnt({4*rem})")
        f = FR[s_ % 4]
        k(M32(KVA, f, f + 4, "0" if s_ == 0 else None))
        k(M16(ZA, 24, f, "0" if s_ == 0 else None))
        if s_ + 3 < 8:
            trr(s_ + 3)
    k(f"buffer_store_dword v{ZA}, v11, s[16:19], s39 offen sc1")
    for i in range(8):
        k(f"v_cvt_pk_bf16_f32 v{56+i}, v{KVA+2*i}, v{KVA+2*i+1}")
    for q in range(2):
        k(f"buffer_store_dwordx4 {vr(56+4*q,4)}, v10, s[16:19], s36 offen offset:{1024*q} sc1")
    stamp(k, tag + "_kvst")
    feat_map(k, QRAW, LC, 176, PHQ)
    k("s_waitcnt vmcnt(0)")
    stamp(k, tag + "_kvdrain")
    signal(k, flag_off(rep, F_COL), "s5", 4, cnt_col, "s4")
    k(f"s_branch {NP}\n{J1}:")
    wpf_issue(k, ORD_A[:9], wloc_a, 4)
    feat_map(k, QRAW, LC, 176, PHQ)
    rdy_poller(k, (flag_off(rep, F_COL), "s5"), rdy_c)
    k(f"{NP}:")
    k(f"""
    s_lshr_b32 s36, s3, 2
    s_and_b32 s37, s3, 3
    s_lshl_b32 s38, s5, 1
    s_add_u32 s38, s38, s36
    v_lshlrev_b32 v11, 2, v1
    s_lshl_b32 s34, s38, 16
    s_lshl_b32 s35, s37, 10
    s_add_u32 s34, s34, s35
    s_add_u32 s34, s34, {hex(WS_KVP[rep])}
    s_lshl_b32 s39, s38, 12
    s_add_u32 s39, s39, s35
    s_add_u32 s39, s39, {hex(WS_ZP[rep])}
    v_mov_b32 v4, {rdy_c}
    s_mov_b32 s63, 0
    """)
    for rt in range(16):
        L = k.label("cp")
        k(f"""s_cmp_gt_u32 s63, {rt}
        s_cbranch_scc1 {L}_ok
        {L}:
        ds_read_b32 v5, v4
        s_waitcnt lgkmcnt(0)
        v_readfirstlane_b32 s63, v5
        s_cmp_gt_u32 s63, {rt}
        s_cbranch_scc0 {L}
        {L}_ok:""")
        if rt == 15:
            stamp(k, tag + "_e2a")
            for q in range(4):
                k(f"buffer_load_dword v{24+q}, v11, s[16:19], s39 offen offset:{256*q} sc1")
        k(f"buffer_load_dwordx4 {vr(48+4*rt,4)}, v10, s[16:19], s34 offen sc1")
        k("s_add_u32 s34, s34, 4096")
    for i in range(8):
        k(f"v_mov_b32 v{32+i}, 0")
    k(f"""s_mov_b32 s52, 0x3f80
    s_mov_b32 s53, 0x3f800000
    s_lshl_b32 s35, s36, 8
    s_add_u32 s35, s35, {KVL+8192}
    v_add_u32 v13, s35, v11
    s_lshl_b32 s35, s3, 10
    s_add_u32 s35, s35, {KVL}
    v_add_u32 v12, s35, v10""")
    for rt in range(15):
        k(f"s_waitcnt vmcnt({15-rt+4})")
        for i in range(4):
            k(f"v_dot2_f32_bf16 v{32+2*i}, v{48+4*rt+i}, s52, v{32+2*i}")
            k(f"v_dot2_f32_bf16 v{33+2*i}, v{48+4*rt+i}, s53, v{33+2*i}")
    k(f"""s_waitcnt vmcnt(1)
    v_add_f32 v24, v24, v25
    v_add_f32 v26, v26, v27
    v_add_f32 v24, v24, v26
    ds_add_f32 v13, v24""")
    for rt in range(15, 16):
        k(f"s_waitcnt vmcnt({15-rt})")
        for i in range(4):
            k(f"v_dot2_f32_bf16 v{32+2*i}, v{48+4*rt+i}, s52, v{32+2*i}")
            k(f"v_dot2_f32_bf16 v{33+2*i}, v{48+4*rt+i}, s53, v{33+2*i}")
    for i in range(4):
        k(f"v_cvt_pk_bf16_f32 v{40+i}, v{32+2*i}, v{33+2*i}")
    KV, ZF, ZT = 32, 48, 64
    k(f"""
    ds_write_b128 v12, v[40:43]
    s_lshl_b32 s35, s49, 12
    s_add_u32 s35, s35, {KVL}
    v_add_u32 v12, s35, v10
    s_lshl_b32 s35, s49, 8
    s_add_u32 s35, s35, {KVL+8192}
    v_lshlrev_b32 v13, 4, v3
    v_add_u32 v13, s35, v13
    s_lshl_b32 s36, s4, 2
    s_add_u32 s36, s36, s51
    s_lshl_b32 s36, s36, 16
    s_lshl_b32 s35, s50, 11
    s_add_u32 s36, s36, s35
    s_add_u32 s36, s36, {hex(WS_O[oi])}
    s_waitcnt lgkmcnt(0)
    s_barrier
    """)
    stamp(k, tag + "_bc")
    for s_ in range(4):
        k(f"ds_read_b128 {vr(KV+4*s_,4)}, v12 offset:{1024*s_}")
    for se in range(8):
        k(f"ds_read_b128 {vr(ZT+4*se,4)}, v13 offset:{32*se}")
    NUM, DEN = 176, 96
    k("s_waitcnt lgkmcnt(8)")
    for s_ in range(4):
        k(M32(NUM, KV + 4 * s_, PHQ + 4 * s_, "0" if s_ == 0 else None))
    k("s_waitcnt lgkmcnt(0)\ns_barrier")
    for i in range(16):
        k(f"v_cvt_pk_bf16_f32 v{ZF+i}, v{ZT+2*i}, v{ZT+2*i+1}")
    for s_ in range(4):
        k(M32(DEN, ZF + 4 * s_, PHQ + 4 * s_, "0" if s_ == 0 else None))
    k(f"v_add_f32 v{DEN}, {f32(1e-6)}, v{DEN}\nv_rcp_f32 v{DEN}, v{DEN}\nv_mov_b32 v{DEN+1}, v{DEN}")
    pk_mul(k, NUM, NUM, DEN, 16)
    for i in range(8):
        k(f"v_cvt_pk_bf16_f32 v{112+i}, v{NUM+2*i}, v{NUM+2*i+1}")
    for t in range(2):
        k(f"buffer_store_dwordx4 {vr(112+4*t,4)}, v10, s[16:19], s36 offen offset:{1024*t} sc1")
    stamp(k, tag + "_st")


def gen_mega():
    k = Kern("interleave_layers__linear_kernel_hedgehog__grouped_kv_mqa__prompt_kernel")
    k(f"""
    s_cmp_ge_u32 s2, 256
    s_cbranch_scc1 mega_exit
    s_load_dwordx16 s[64:79], s[0:1], 0
    s_load_dwordx8 s[80:87], s[0:1], 64
    v_lshrrev_b32 v1, 6, v0
    s_nop 0
    v_readfirstlane_b32 s3, v1
    v_and_b32 v1, 63, v0
    v_and_b32 v2, 31, v1
    v_lshrrev_b32 v3, 5, v1
    v_cmp_eq_u32 s[40:41], 1, v3
    s_waitcnt lgkmcnt(0)
    """)
    if PROF:
        k("v_mov_b32 v255, 0\nv_mov_b32 v254, 0\ns_memrealtime s[88:89]\ns_waitcnt lgkmcnt(0)\nv_writelane_b32 v255, s88, 0")
        stamp(k, "start")
    srd(k, 16, P_WS, WS_END)
    for rep in range(2):
        lin = 2 * rep
        phase_qkva(k, f"qa{rep}", rep, lin, 2 * rep, (flag_off(0, F_XB), "s4", 16) if rep else None)
        phase_wo(k, f"wa{rep}", P_WOA, lin, 2 * rep, (flag_off(rep, F_OA), "s4", 16), flag_off(rep, F_XA), False)
        phase_qkvb(k, f"qb{rep}", rep, lin + 1, (flag_off(rep, F_XA), "s4", 16))
        phase_attn(k, f"at{rep}", rep, 2 * rep + 1)
        phase_wo(k, f"wb{rep}", P_WOB, lin + 1, 2 * rep + 1, (flag_off(rep, F_OB), "s4", 16), flag_off(rep, F_XB),
                 rep == 1)
    stamp(k, "end")
    if PROF:
        k(f"""s_memrealtime s[88:89]
        s_waitcnt lgkmcnt(0)
        v_writelane_b32 v255, s88, 1
        s_add_u32 s84, s{P_WS}, {hex(WS_PROF)}
        s_addc_u32 s85, s{P_WS+1}, 0
        s_and_b32 s85, s85, 0xffff
        s_mov_b32 s86, 0x100000
        s_mov_b32 s87, 0x20000
        s_lshl_b32 s88, s2, 3
        s_add_u32 s88, s88, s3
        s_lshl_b32 s88, s88, 9
        v_lshlrev_b32 v0, 2, v1
        buffer_store_dword v255, v0, s[84:87], s88 offen
        buffer_store_dword v254, v0, s[84:87], s88 offen offset:256""")
    k("mega_exit:\ns_endpgm")
    return k, (256, 512, 163840)


def main():
    ks = [gen_mega()]
    hdr = open("interleave_layers__linear_kernel_hedgehog__grouped_kv_mqa__prompt.s.ref").read()
    hdr = "".join(l + "\n" for l in hdr.split("\n") if l.startswith(";") and "@launch" not in l and "Override" not in l and "grid=ceil" not in l)
    out = hdr
    for kern, (g, b, l) in ks:
        if "list" in sys.argv:
            out += f"; @launch kernel={kern.name} grid=({g},1,1) block=({b},1,1) lds={l}\n"
        else:
            out += f"; @launch grid=({g},1,1) block=({b},1,1) lds={l}\n"
    if PROF:
        out += "; STAMPS " + " ".join(f"{n}={i}" for n, i in STAMPS.items()) + "\n"
    out += '.amdgcn_target "amdgcn-amd-amdhsa--gfx950"\n.text\n'
    for kern, geo in ks:
        out += kern.text()
    out += '.section .rodata,"a"\n'
    for kern, geo in ks:
        out += kern.desc()
    sys.stdout.write(out)


if __name__ == "__main__":
    main()
```
